```python
import torch

def _softmax(x, axis=-1):
    return torch.softmax(x, dim=axis)

def _gelu(x):
    return torch.nn.functional.gelu(x, approximate='tanh')

def _silu(x):
    return torch.nn.functional.silu(x)

def _sigmoid(x):
    return torch.sigmoid(x)

def _layernorm(x, axis=-1, eps=1e-05):
    m = x.mean(dim=axis, keepdim=True)
    v = x.var(dim=axis, keepdim=True, unbiased=False)
    return (x - m) / torch.sqrt(v + eps)

def _scatter_add(tgt, idx, src, axis=0):
    return tgt.clone().index_add_(axis, idx, src)

def _segment_sum(src, seg, n):
    out = torch.zeros((n,) + src.shape[1:], dtype=src.dtype)
    return out.index_add_(0, seg, src)

def _pad(x, pw):
    flat = tuple((v for pair in reversed(pw) for v in pair))
    return torch.nn.functional.pad(x, flat)
kernel_name = 'parallel_sum__memory_aug_recurrent_mem_tr__mixer_token_mlp__prompt'

def setup_inputs():

    _w = lambda a: (lambda t: t.to(torch.bfloat16) if t.is_floating_point() else t)(torch.as_tensor(a))

    def _A_setup():
        B, S, Dm = (1, 2048, 512)
        H, Dh = (32, 128)
        M, seg = (8, 32)
        seg = min(seg, S)
        S = S // seg * seg
        return {'x': _w((lambda *s: torch.randn(*s, dtype=torch.bfloat16) * 0.05)(B, S, Dm)), 'mem0': _w((lambda *s: torch.randn(*s, dtype=torch.bfloat16) * 0.2)(B, M, Dm)), 'Wq': _w((lambda *s: torch.randn(*s, dtype=torch.bfloat16) * 1.6)(Dm, H, Dh) * Dm ** (-0.5)), 'Wk': _w((lambda *s: torch.randn(*s, dtype=torch.bfloat16) * 1.6)(Dm, H, Dh) * Dm ** (-0.5)), 'Wv': _w((lambda *s: torch.randn(*s, dtype=torch.bfloat16) * 0.2)(Dm, H, Dh) * Dm ** (-0.5)), 'Wo': _w((lambda *s: torch.randn(*s, dtype=torch.bfloat16) * 0.2)(H, Dh, Dm) * (H * Dh) ** (-0.5)), 'seg_len': seg}
    _A_in = _A_setup()

    def _B_setup():
        B, S, D, F = (1, 2048, 512, 1792)
        return {'x': _w((lambda *s: torch.randn(*s, dtype=torch.bfloat16) * 0.05)(B, S, D)), 'w1': _w((lambda *s: torch.randn(*s, dtype=torch.bfloat16) * 0.4)(S, F) * S ** (-0.5)), 'b1': _w((lambda *s: torch.randn(*s, dtype=torch.bfloat16) * 3.2)(F) * 0.02), 'w2': _w((lambda *s: torch.randn(*s, dtype=torch.bfloat16) * 0.2)(F, S) * F ** (-0.5)), 'b2': _w((lambda *s: torch.randn(*s, dtype=torch.bfloat16) * 0.4)(S) * 0.02)}
    _B_in = _B_setup()
    return {'A_x': _A_in['x'], 'A_mem0': _A_in['mem0'], 'A_Wq': _A_in['Wq'], 'A_Wk': _A_in['Wk'], 'A_Wv': _A_in['Wv'], 'A_Wo': _A_in['Wo'], 'A_seg_len': _A_in['seg_len'], 'B_x': _B_in['x'], 'B_w1': _B_in['w1'], 'B_b1': _B_in['b1'], 'B_w2': _B_in['w2'], 'B_b2': _B_in['b2']}

def reference(A_x, A_mem0, A_Wq, A_Wk, A_Wv, A_Wo, A_seg_len, B_x, B_w1, B_b1, B_w2, B_b2):

    def _A_ref(x, mem0, Wq, Wk, Wv, Wo, seg_len):
        B, S, Dm = x.shape
        H, Dh = (Wq.shape[1], Wq.shape[2])
        M = mem0.shape[1]
        scale = Dh ** (-0.5)
        n_seg = S // seg_len
        L = M + seg_len
        idx = torch.arange(L)
        mask = (idx[:, None] < M) | (idx[:, None] >= idx[None, :])
        mem = mem0
        outs = []
        for s in range(n_seg):
            xs = x[:, s * seg_len:(s + 1) * seg_len, :].clone()
            h = torch.concatenate([mem, xs], axis=1)
            q = torch.einsum('btd,dhe->bhte', h, Wq)
            k = torch.einsum('btd,dhe->bhte', h, Wk)
            v = torch.einsum('btd,dhe->bhte', h, Wv)
            scores = torch.einsum('bhqe,bhke->bhqk', q, k) * scale
            scores = torch.where(mask[None, None], scores, -1000000000.0)
            p = _softmax(scores, axis=-1)
            o = torch.einsum('bhqk,bhke->bhqe', p, v)
            o = torch.einsum('bhte,hed->btd', o, Wo)
            mem = o[:, :M, :].clone()
            outs.append(o[:, M:, :])
        return torch.concatenate(outs, axis=1)

    def _B_ref(x, w1, b1, w2, b2):
        B, S, D = x.shape
        h = _layernorm(x, axis=-1)
        u = torch.einsum('bsd,sf->bdf', h, w1) + b1
        u = _gelu(u)
        y = torch.einsum('bdf,fs->bds', u, w2) + b2
        return (lambda x, *d: x.permute(*d))(y, 0, 2, 1)
    x = A_x
    xn = _layernorm(x, axis=-1)
    return x + _A_ref(xn, A_mem0, A_Wq, A_Wk, A_Wv, A_Wo, A_seg_len) + _B_ref(xn, B_w1, B_b1, B_w2, B_b2)
```

```python
class Asm:
    def __init__(self):
        self.lines = []
        self.lg = []
        self.vm = []
        self._uid = 0

    def __call__(self, text):
        for ln in text.strip("\n").split("\n"):
            ln = ln.strip()
            if ln:
                self.lines.append(ln)

    def c(self, text):
        self.lines.append("; " + text)

    def label(self, name):
        self.lines.append(name + ":")

    def uid(self, p="L"):
        self._uid += 1
        return f"{p}_{self._uid}"

    def ds(self, text, tag=None):
        self(text)
        self.lg.append(tag)

    def vmem(self, text, tag=None):
        self(text)
        self.vm.append(tag)

    def _n_after(self, lst, tags):
        if not isinstance(tags, (list, set)):
            tags = [tags]
        last = -1
        for i, t in enumerate(lst):
            if t in tags:
                last = i
        return last

    def wl(self, tags=None):
        if tags is None:
            self("s_waitcnt lgkmcnt(0)")
            self.lg = []
            return
        last = self._n_after(self.lg, tags)
        if last < 0:
            return
        n = len(self.lg) - 1 - last
        n = min(n, 15)
        self(f"s_waitcnt lgkmcnt({n})")
        self.lg = self.lg[len(self.lg) - n:] if n else []

    def wv(self, tags=None):
        if tags is None:
            self("s_waitcnt vmcnt(0)")
            self.vm = []
            return
        last = self._n_after(self.vm, tags)
        if last < 0:
            return
        n = len(self.vm) - 1 - last
        n = min(n, 63)
        self(f"s_waitcnt vmcnt({n})")
        self.vm = self.vm[len(self.vm) - n:] if n else []

    def nop(self, states):
        while states > 0:
            k = min(states, 16)
            self(f"s_nop {k-1}")
            states -= k

    def text(self):
        out = []
        for ln in self.lines:
            if ln.endswith(":") or ln.startswith(";") or ln.startswith("."):
                out.append(ln)
            else:
                out.append("    " + ln)
        return "\n".join(out) + "\n"


def vr(b, n=1):
    return f"v{b}" if n == 1 else f"v[{b}:{b+n-1}]"


def ar(b, n=1):
    return f"a{b}" if n == 1 else f"a[{b}:{b+n-1}]"


def sr(b, n=1):
    return f"s{b}" if n == 1 else f"s[{b}:{b+n-1}]"


class Reg:
    def __init__(self, kind, base):
        self.kind, self.base = kind, base

    def r(self, off=0, n=1):
        return (vr if self.kind == "v" else ar)(self.base + off, n)
```

```python
from common import *

L_KX = 0x0000
L_MEM = 0x4000
L_Q = 0x6000
L_O = 0x7200
L_W = 0x8000

vL16, vIDX, vQW, vTQ, vTK, vTO, vKX, vWL, vPS, vOW, vRS, vFL = range(12)
vONE = 12
vSEL = 16
MF = 20
AQ, AK, AV = 52, 60, 68
KX = 76
VB = 108
TT = 124
vZ = VB + 6

sODL = 10
sStep = 60
sP = 61
sPF = 63
sVXb = 64
sPR = 65
sRL, sFLc, sMO, sMRs, sG, sKXo, sVXo, sKM, sFLo, sM0K = 69, 70, 71, 72, 73, 74, 75, 76, 77, 78
sProg = 79
sODD = 80
sEVL = 82
sC = 84
sF0 = 85
sW11 = 86
sNeed = 87
sT = 88
SENT_P = 0x7F817F81

LDSF = {('Q', 1, 0): 0, ('Q', 1, 1): 1, ('Q', 1, 2): 2, ('Q', 1, 3): 3,
        ('K', 1, 0): 4, ('K', 1, 1): 5, ('K', 1, 2): 6, ('K', 1, 3): 7,
        ('O', 0, 0): 8, ('O', 0, 1): 9, ('O', 2, 0): 10, ('O', 2, 1): 11,
        ('O', 4, 0): 12, ('O', 4, 1): 13, ('O', 6, 0): 14, ('O', 6, 1): 15}
RFF = {}
_slots = [Reg('a', 8 * i) for i in range(32)] + [Reg('v', 128 + 8 * i) for i in range(16)]
for m in 'QKV':
    for tau in range(2):
        for t in range(8):
            if (m, tau, t) not in LDSF:
                RFF[(m, tau, t)] = _slots.pop(0)
for j in range(8):
    for t in range(2):
        if ('O', j, t) not in LDSF:
            RFF[('O', j, t)] = _slots.pop(0)
assert not _slots
WS = f"s[{S_WS}:{S_WS+3}]"
import common


def smf(A, acc, a, b):
    A(f"v_smfmac_f32_16x16x64_bf16 {vr(acc,4)}, {vr(a,4)}, {b.r(0,8)}, v{vIDX}")


def lds_frag_load(A, key, dst, tag):
    f = LDSF[key]
    A.ds(f"ds_read_b128 {vr(dst,4)}, v{vWL} offset:{f*2048}", tag)
    A.ds(f"ds_read_b128 {vr(dst+4,4)}, v{vWL} offset:{f*2048+1024}", tag)


def chain_startup(A, cfg):
    A.c("===== chain startup =====")
    A(f"""
    v_and_b32 v1, 63, v0              ; lane
    v_and_b32 v2, 15, v1              ; n
    v_lshrrev_b32 v3, 4, v1           ; g
    v_lshrrev_b32 v4, 1, v3           ; g>>1
    v_and_b32 v5, 1, v3               ; g&1
    v_lshrrev_b32 v6, 2, v2           ; r = n>>2
    v_and_b32 v7, 3, v2               ; c = n&3
    ; vPS = (n>>2)*8192 + h*256 + ((n&3)*4+g)*16
    v_lshl_add_u32 v8, v7, 2, v3
    v_lshlrev_b32 v8, 4, v8
    v_lshl_add_u32 v8, v6, 13, v8
    s_lshl_b32 s{sT}, s{S_ID}, 8
    v_add_u32 v8, s{sT}, v8
    ; vRS = h*256 + (2*(n&3) + (g&1))*32 + (n>>2)*8
    v_lshl_add_u32 v10, v7, 1, v5
    v_lshlrev_b32 v10, 5, v10
    v_lshl_add_u32 v10, v6, 3, v10
    v_add_u32 v10, s{sT}, v10
    v_mov_b32 v16, {SENT_P:#x}
    v_mov_b32 v17, {SENT_P:#x}
    v_mov_b32 v18, {SENT_P:#x}
    v_mov_b32 v19, {SENT_P:#x}
    v_mov_b32 v20, -1
    v_mov_b32 v21, -1
    s_lshl_b32 s{sT+2}, s{S_W}, 16
    """)
    for sl in range(4):
        for b in range(2):
            A(f"s_add_u32 s{sT+1}, s{sT+2}, {PRING + sl*0x40000 + b*32768:#x}")
            A.vmem(f"buffer_store_dwordx4 v[16:19], v8, {WS}, s{sT+1} offen sc1", "init")
        A(f"s_mov_b32 s{sT+1}, {MRING + sl*0x2000:#x}")
        A.vmem(f"buffer_store_dwordx2 v[20:21], v10, {WS}, s{sT+1} offen sc1", "init")
    A(f"""
    v_lshlrev_b32 v9, 1, v3
    v_xor_b32 v9, v2, v9
    v_lshlrev_b32 v9, 4, v9
    s_lshl_b32 s{sT}, s{S_W}, 2
    v_add_u32 v13, s{sT}, v3          ; 4w+g
    v_lshl_add_u32 v11, v13, 13, v9   ; vDmaA
    v_lshl_add_u32 v12, v13, 10, v9   ; vDmaB
    v_and_b32 v9, 1, v6               ; r&1
    v_lshrrev_b32 v13, 1, v6          ; r>>1
    v_lshl_add_u32 v14, v13, 1, v5    ; 2(r>>1)+(g&1)
    v_lshl_add_u32 v15, v9, 2, v14    ; phi
    v_lshl_add_u32 v14, v4, 2, v14
    v_lshl_add_u32 v14, v9, 4, v14    ; row
    v_lshlrev_b32 v14, 8, v14
    v_lshl_add_u32 v14, v15, 5, v14
    s_lshl_b32 s{sT}, s{S_W}, 6
    v_xor_b32 v14, s{sT}, v14
    v_lshrrev_b32 v15, 1, v7
    v_lshlrev_b32 v15, 5, v15
    v_xor_b32 v1, v15, v14
    v_and_b32 v15, 1, v7
    v_lshl_add_u32 v2, v15, 3, v1
    v_lshl_add_u32 v14, v7, 3, v14
    v_lshlrev_b32 v15, 1, v5
    v_lshl_add_u32 v1, v13, 2, v15
    v_lshl_add_u32 v1, v4, 3, v1
    v_lshl_add_u32 v1, v9, 4, v1      ; row
    v_lshl_add_u32 v15, v9, 2, v15    ; phi
    v_lshlrev_b32 v1, 8, v1
    v_lshl_add_u32 v1, v7, 3, v1
    v_lshl_add_u32 v13, v15, 5, v1
    v_xor_b32 v5, 128, v11
    v_xor_b32 v6, 128, v12
    """)
    chunks = [('O', t, c) for t in range(2) for c in range(4)]
    chunks += [('V', t, None) for t in range(8)]
    chunks += [('Q', t, None) for t in range(1, 8)] + [('K', t, None) for t in range(1, 8)]
    chunks += [('Q', 0, None), ('K', 0, None)]
    slot = lambda ci: 2 + (ci % 8) if ci < 30 else (ci - 30)
    A(f"""
    s_lshl_b32 s{sT+2}, s{S_ID}, 8        ; h*256
    s_lshl_b32 s{sT+3}, s{S_ID}, 17       ; h*128*1024
    s_lshl_b32 s{sT+4}, s{S_W}, 10        ; w*4*256
    """)

    def issue(ci):
        m, t, c = chunks[ci]
        srd = {'Q': S_WQ, 'K': S_WK, 'V': S_WV, 'O': S_WO}[m]
        for i in range(4):
            A(f"s_add_u32 m0, s{sT+4}, {slot(ci)*16384 + i*4096:#x}")
            if m == 'O':
                A(f"s_add_u32 s{sT+1}, s{sT+3}, {(64*t+16*i)*1024 + c*256:#x}")
                va = 6 if i & 1 else 12
            else:
                A(f"s_add_u32 s{sT+1}, s{sT+2}, {(64*t+16*i)*8192:#x}")
                va = 5 if i & 1 else 11
            A.vmem(f"buffer_load_dwordx4 v{va}, s[{srd}:{srd+3}], s{sT+1} offen lds", ("ch", ci))

    held = {}
    hfree = [16 + 8 * i for i in range(14)]
    for ci in [0, 1, 2, 3, 4, 5, 6, 7, 30, 31]:
        issue(ci)
    for ci in range(32):
        m, t, c = chunks[ci]
        if ci == 30:
            A(f"""
            v_and_b32 v9, 63, v0
            v_lshlrev_b32 v9, 4, v9
            s_lshl_b32 s{sT+1}, s{S_W}, 15
            s_add_u32 s{sT+1}, s{sT+1}, {L_W:#x}
            v_add_u32 v7, s{sT+1}, v9          ; vWL
            """)
            for key, r in held.items():
                f = LDSF[key]
                A.ds(f"ds_write_b128 v7, {vr(r,4)} offset:{f*2048}", "hw")
                A.ds(f"ds_write_b128 v7, {vr(r+4,4)} offset:{f*2048+1024}", "hw")
            A.wl()
        A.wv(("ch", ci))
        A("s_barrier")
        sb = slot(ci) * 16384
        hi = sb & ~0x7fff
        lo = sb - hi
        if m == 'O':
            lab = A.uid("Lskipo")
            A(f"s_cmp_lg_u32 s{S_W}, {c}")
            A(f"s_cbranch_scc1 {lab}")
            for j in range(8):
                key = ('O', j, t)
                if key in LDSF:
                    if key not in held:
                        held[key] = hfree.pop(0)
                    dst = Reg('v', held[key])
                else:
                    dst = RFF[key]
                A(f"v_xor_b32 v9, {j*32}, v13")
                A(f"v_add_u32 v9, {hi:#x}, v9")
                A(f"v_xor_b32 v15, 32, v9")
                for k, (ad, off) in enumerate([(9, 0), (15, 256), (9, 8192), (15, 8192 + 256)]):
                    A.ds(f"ds_read_b64_tr_b16 {dst.r(2*k,2)}, v{ad} offset:{lo+off}", "tr")
                A.wl()
            A.label(lab)
        else:
            for tau in range(2):
                key = (m, tau, t)
                if key in LDSF:
                    if ci < 30:
                        held[key] = hfree.pop(0)
                        dst = Reg('v', held[key])
                    else:
                        dst = Reg('v', 16)
                else:
                    dst = RFF[key]
                if m == 'V':
                    A(f"v_xor_b32 v9, {tau*32}, v14")
                    A(f"v_add_u32 v9, {hi:#x}, v9")
                else:
                    A(f"v_add_u32 v9, {hi + tau*16:#x}, v2")
                for k, off in enumerate([0, 8192, 2048, 8192 + 2048]):
                    A.ds(f"ds_read_b64_tr_b16 {dst.r(2*k,2)}, v9 offset:{lo+off}", "tr")
                A.wl()
                if key in LDSF and ci >= 30:
                    f = LDSF[key]
                    A.ds(f"ds_write_b128 v7, {vr(16,4)} offset:{f*2048}", "hw")
                    A.ds(f"ds_write_b128 v7, {vr(20,4)} offset:{f*2048+1024}", "hw")
                    A.wl()
        A("s_barrier")
        nxt = ci + 8
        if nxt < 30:
            issue(nxt)
    assert not hfree
    A.c("chain address registers")
    A(f"""
    v_and_b32 v20, 63, v0             ; lane
    v_and_b32 v21, 15, v20            ; n
    v_lshrrev_b32 v22, 4, v20         ; g
    v_lshrrev_b32 v23, 1, v22         ; g>>1
    v_and_b32 v24, 1, v22             ; g&1
    v_lshrrev_b32 v25, 2, v21         ; r
    v_and_b32 v26, 3, v21             ; c
    v_lshlrev_b32 v{vL16}, 4, v20
    v_mov_b32 v{vIDX}, 0x4444
    v_mov_b32 v27, 0xeeee
    s_mov_b32 s{sODD}, 0xaaaaaaaa
    s_mov_b32 s{sODD+1}, 0xaaaaaaaa
    s_mov_b32 s{sEVL}, 0x55555555
    s_mov_b32 s{sEVL+1}, 0
    s_mov_b32 s{sODL}, 0xaaaaaaaa
    s_mov_b32 s{sODL+1}, 0
    s_mov_b32 s{sC}, {f32bits(SM_C):#x}
    s_mov_b32 s{sT+11}, {L_Q:#x}
    s_mov_b32 s{sT+10}, {L_O:#x}
    v_cndmask_b32 v{vIDX}, v{vIDX}, v27, s[{sODD}:{sODD+1}]
    s_lshl_b32 s{sT}, s{S_W}, 6
    v_lshlrev_b32 v27, 2, v21
    v_add_u32 v27, s{sT}, v27
    v_mul_u32_u24 v28, 1088, v22
    v_add3_u32 v{vQW}, v27, v28, s{sT+11}
    v_mul_u32_u24 v28, 640, v22
    v_add3_u32 v{vOW}, v27, v28, s{sT+10}
    v_lshrrev_b32 v27, 1, v21
    v_mul_u32_u24 v28, 544, v27
    v_lshl_add_u32 v28, v22, 4, v28
    v_add_u32 v{vTQ}, {L_Q:#x}, v28
    v_mul_u32_u24 v28, 320, v27
    v_lshl_add_u32 v28, v22, 5, v28
    v_and_b32 v29, 1, v21
    v_lshl_add_u32 v28, v29, 4, v28
    v_add_u32 v{vTO}, {L_O:#x}, v28
    v_and_b32 v27, 7, v21
    v_mul_u32_u24 v28, 544, v27
    v_lshl_add_u32 v28, v22, 4, v28
    v_add_u32 v{vTK}, {L_Q + 256:#x}, v28
    v_lshlrev_b32 v27, 9, v22
    v_lshl_add_u32 v{vKX}, v21, 4, v27
    v_and_b32 v29, 1, v25
    v_mov_b32 v30, 0x3f80
    v_mov_b32 v31, 0x3f800000
    v_cmp_eq_u32 vcc, 1, v29
    s_nop 1
    v_cndmask_b32 v30, v30, v31, vcc
    """)
    for d in range(4):
        A(f"v_cmp_eq_u32 vcc, {d}, v26\ns_nop 1\nv_cndmask_b32 v{vSEL+d}, 0, v30, vcc")
    for z in (VB + 6, VB + 7, VB + 14, VB + 15):
        A(f"v_mov_b32 v{z}, 0")
    A(f"v_bfrev_b32 v30, 1\nv_cmp_ne_u32 vcc, 0, v20\ns_nop 1\nv_cndmask_b32 v{vZ}, v{vZ}, v30, vcc")
    for z in range(4):
        A(f"v_mov_b32 v{vONE+z}, 0x3f803f80")
    lab = A.uid("Lci")
    A(f"v_lshrrev_b32 v40, 4, v{vL16}")
    common.validate(A, 40)
    A(f"s_mov_b32 s{sT+7}, s3\nv_lshrrev_b32 v33, 2, v{vL16}\nv_mov_b32 v32, 0")
    A(f"""
    s_lshl_b32 s{sT}, s{S_ID}, 2
    s_add_u32 s{sT}, s{sT}, {F_CI:#x}
    v_mov_b32 v35, 1
    buffer_store_dword v35, v{vZ}, {WS}, s{sT} offen sc1
    v_and_b32 v33, 0x7c, v33
    s_mov_b32 s{sT}, {F_CI:#x}
    {lab}_p2:
    {GUARD}
    buffer_load_dword v34, v33, {WS}, s{sT} offen sc1
    s_waitcnt vmcnt(0)
    v_cmp_ne_u32 vcc, 1, v34
    s_cbranch_vccnz {lab}_p2
    """)
    lab = A.uid("Lf0")
    A(f"""
    s_lshl_b32 s{sFLc}, s{S_ID}, 9
    s_add_u32 s{sFLc}, s{sFLc}, {F_P2:#x}
    {lab}:
    {GUARD}
    buffer_load_dword v{vFL}, v32, {WS}, s{sFLc} offen sc1
    buffer_load_dword v34, v32, {WS}, s{sFLc} offen offset:128 sc1
    s_waitcnt vmcnt(0)
    v_min_u32 v{vFL}, v{vFL}, v34
    s_nop 0
    v_readfirstlane_b32 s{sF0}, v{vFL}
    s_cmp_eq_u32 s{sF0}, 0
    s_cbranch_scc1 {lab}
    s_lshl_b32 s{sT}, s{S_ID}, 13
    s_lshl_b32 s{sT+1}, s{S_W}, 11
    s_add_u32 s{sVXb}, s{sT}, s{sT+1}
    s_add_u32 s{sVXb}, s{sVXb}, {WS_VX:#x}
    s_mov_b32 s{sVXo}, s{sVXb}
    s_add_u32 s{sKXo}, s{sT}, s{sT+1}
    s_add_u32 s{sKXo}, s{sKXo}, {WS_KX:#x}
    s_mov_b32 s{sM0K}, s{sT+1}
    s_lshl_b32 s{sT+2}, s{S_W}, 9
    s_add_u32 s{sKM}, s{sT}, s{sT+2}
    s_add_u32 s{sKM}, s{sKM}, {WS_KVM - 0x40000:#x}
    s_add_u32 s{sPF}, s{sT}, s{sT+1}
    s_add_u32 s{sPF}, s{sPF}, {WS_VX:#x}
    s_mov_b32 m0, s{sM0K}
    s_nop 0
    buffer_load_dwordx4 v{vL16}, {WS}, s{sKXo} offen lds
    buffer_load_dwordx4 v{vL16}, {WS}, s{sKXo} offen offset:1024 lds
    v_lshrrev_b32 v27, 1, v21
    v_lshlrev_b32 v27, 10, v27
    v_lshl_add_u32 v27, v22, 3, v27
    v_and_b32 v28, 1, v21
    v_lshl_add_u32 v27, v28, 2, v27
    s_lshl_b32 s{sT}, s{S_W}, 8
    """)
    for u in range(2):
        for tl in range(4):
            A(f"buffer_load_dword v{36+4*u+tl}, v27, s[{S_MEM0}:{S_MEM0+3}], s{sT} offen offset:{u*128+tl*32}")
    A(f"""
    s_mov_b32 s{sT}, 0x05040100
    s_mov_b32 s{sT+1}, 0x07060302
    s_lshl_b32 s{sT+2}, s{S_W}, 11
    v_add_u32 v27, s{sT+2}, v{vL16}
    s_waitcnt vmcnt(0)
    """)
    for u in range(2):
        b = 36 + 4 * u
        A(f"""
        v_perm_b32 v44, v{b+1}, v{b}, s{sT}
        v_perm_b32 v45, v{b+3}, v{b+2}, s{sT}
        v_perm_b32 v46, v{b+1}, v{b}, s{sT+1}
        v_perm_b32 v47, v{b+3}, v{b+2}, s{sT+1}
        ds_write_b128 v27, v[44:47] offset:{L_MEM+u*1024}
        s_waitcnt lgkmcnt(0)
        """)
    A(f"""
    s_mov_b32 s{sStep}, 0
    s_lshl_b32 s{sProg}, s{S_ID}, 7
    s_add_u32 s{sProg}, s{sProg}, {F_PROG:#x}
    """)
    A.vm = []
    A.lg = []
    step_offsets(A)
    pre_step(A)
    A("s_waitcnt lgkmcnt(0)\ns_barrier")
    A.lg = []


def step_offsets(A):
    A(f"""
    s_and_b32 s{sT}, s{sStep}, 3
    s_lshl_b32 s{sT+1}, s{sT}, 18
    s_add_u32 s{sT+1}, s{sT+1}, {PRING:#x}
    s_lshl_b32 s{sT+2}, s{S_W}, 16
    s_add_u32 s{sP}, s{sT+1}, s{sT+2}
    s_add_u32 s{sP+1}, s{sP}, 0x8000
    s_lshl_b32 s{sT+2}, s{S_ID}, 13
    s_add_u32 s{sRL}, s{sT+1}, s{sT+2}
    s_add_u32 s{sT+1}, s{sStep}, 3
    s_and_b32 s{sT+1}, s{sT+1}, 3
    s_lshl_b32 s{sT+1}, s{sT+1}, 18
    s_lshl_b32 s{sT+2}, s{S_W}, 16
    s_add_u32 s{sT+1}, s{sT+1}, s{sT+2}
    s_add_u32 s{sPR}, s{sT+1}, {PRING:#x}
    s_add_u32 s{sPR+1}, s{sPR}, 0x8000
    s_lshl_b32 s{sMRs}, s{sT}, 13
    s_add_u32 s{sMRs}, s{sMRs}, {MRING:#x}
    s_add_u32 s{sT+1}, s{sStep}, 1
    s_and_b32 s{sT+1}, s{sT+1}, 3
    s_lshl_b32 s{sT+1}, s{sT+1}, 13
    s_add_u32 s{sMO}, s{sT+1}, {MRING:#x}
    s_lshl_b32 s{sT+1}, s{S_W}, 11
    s_add_u32 s{sG}, s{sMO}, s{sT+1}
    s_add_u32 s{sKXo}, s{sKXo}, 0x40000
    s_add_u32 s{sPF}, s{sPF}, 0x40000
    s_add_u32 s{sKM}, s{sKM}, 0x40000
    s_xor_b32 s{sM0K}, s{sM0K}, 0x2000
    s_add_u32 s{sFLo}, s{sFLc}, 256
    s_mov_b32 s{sNeed}, 0
    s_lshl_b32 s{sW11}, s{S_W}, 11
    """)


def pre_step(A):
    for t in range(4):
        lds_frag_load(A, ('Q', 1, t), KX + 8 * t, ("sb", t))
    for r in range(AQ, AQ + 16, 2):
        A(f"v_mov_b64 {vr(r,2)}, 0")


def emit(A, f):
    f() if callable(f) else A(f)


def weave(A, mf, fill, per=1, lead=0):
    fill = list(fill)
    for i, m in enumerate(mf):
        m()
        if i >= lead:
            for _ in range(per):
                if fill:
                    emit(A, fill.pop(0))
    for f in fill:
        emit(A, f)


def stamp(A, cfg, name):
    d = cfg.get('diag', ())
    if name in d:
        k = list(d).index(name)
        A(f"{'s_memrealtime' if cfg.get('abs') else 's_memtime'} s[{12+2*k}:{13+2*k}]")


def fold(x):
    return [f"v_add_f32 v{x}, v{x}, v{x+1}", f"v_add_f32 v{x+2}, v{x+2}, v{x+3}"]


def chain_loop(A, cfg, mode):
    st = " sc1" if mode == 'slow' else ""
    L = f"Lchain_{mode}"
    dA, dB, dB2 = cfg.get('dA', 24), cfg.get('dB', 8), cfg.get('dB2', 24)
    noside = cfg.get('noside', 0)
    A.c(f"===== chain loop ({mode}) =====")
    Lg = A.uid("Lhop")

    def isvalu(f):
        return isinstance(f, str) and f.startswith("v_")

    def gap(m, *items):
        m()
        its = [f for f in items if f is not None]
        for f in its:
            if not isvalu(f):
                emit(A, f)
        for f in its:
            if isvalu(f):
                A(f)

    def pop(lst):
        return lst.pop(0) if lst else None

    def ldsf(key, dst, tag):
        f = LDSF[key]
        return [lambda: A.ds(f"ds_read_b128 {vr(dst,4)}, v{vWL} offset:{f*2048}", tag),
                lambda: A.ds(f"ds_read_b128 {vr(dst+4,4)}, v{vWL} offset:{f*2048+1024}", tag)]

    def v_convert():
        ins = []
        for tau in range(2):
            x, b = AV + 4 * tau, VB + 8 * tau
            ins += fold(x) + [f"v_cvt_pk_bf16_f32 v{b+2}, v{x}, v{x+2}", f"v_cvt_pk_bf16_f32 v{b+3}, v{x}, v{x+2}"]
        return ins

    vL4 = TT + 2

    def v_publish(so):
        if cfg.get('nopub'):
            return []
        return [lambda: A.vmem(f"buffer_store_dword v{VB+2}, v{vL4}, {WS}, s{so} offen offset:2048 sc1", "vm"),
                lambda: A.vmem(f"buffer_store_dword v{VB+10}, v{vL4}, {WS}, s{so} offen offset:2304 sc1", "vm")]

    def pairfold(x):
        return fold(x) + fold(x + 4) + [f"v_cvt_pk_bf16_f32 v{x}, v{x}, v{x+4}", f"v_cvt_pk_bf16_f32 v{x+1}, v{x+2}, v{x+6}"]

    def qkv_phases(last):
        mfr = [lambda t=t: A.ds(f"ds_read_b128 {vr(MF+4*t,4)}, v{vL16} offset:{L_MEM+t*1024}", ("mf", t)) for t in range(8)]
        for _ in range(3):
            pop(mfr)()
        side = []
        slowlab = A.uid("Lflagslow")
        A(f"v_mov_b32 v{TT}, s{sT+11}")
        A(f"v_lshrrev_b32 v{vL4}, 2, v{vL16}")
        if not last:
            A(f"s_cmp_le_u32 s{sF0}, s{sNeed}\ns_cbranch_scc1 {slowlab}\n{slowlab}_ret:")
            A(f"s_mov_b32 m0, s{sM0K}")
            A(f"v_lshlrev_b32 v{TT+1}, 1, v{vL16}")
        side += v_publish(sT + 8)
        if not last and not noside:
            for tau in range(2):
                side += [lambda tau=tau: A.vmem(f"buffer_load_dwordx4 {vr(VB+8*tau,4)}, v{vKX}, {WS}, s{sVXo} offen offset:{tau*256}", "vx")]
        side += [lambda: A.vmem(f"buffer_store_dword v{TT}, v{vZ}, {WS}, s{sProg} offen sc1", "prog")]
        if not last and not noside:
            side += [lambda: A.vmem(f"buffer_load_dwordx4 v{vL16}, {WS}, s{sKXo} offen lds", "kx"),
                     lambda: A.vmem(f"buffer_load_dwordx4 v{vL16}, {WS}, s{sKXo} offen offset:1024 lds", "kx"),
                     lambda: A.vmem(f"buffer_load_dword v{vFL}, v{TT+1}, {WS}, s{sPF} offen", "pf"),
                     lambda: A.vmem(f"buffer_load_dword v{vFL}, v{vZ}, {WS}, s{sFLo} offen sc1", "fl")]
        kl = []
        for t in range(4):
            kl += ldsf(('K', 1, t), KX + 8 * t, "sb")
        dsq = mfr + kl
        z = [f"v_mov_b64 {vr(r,2)}, 0" for r in range(AV, AV + 8, 2)]
        A.wl(("mf", 0))
        if not last:
            stamp(A, cfg, 'mf')
        wq = {1: ("mf", 2), 5: ("mf", 4), 9: ("mf", 7)}
        sq = cfg.get('sq', [2, 4, 7, 10, 13, 14])
        for i in range(16):
            t, tau = i // 2, i & 1
            b = Reg('v', KX + 8 * t) if (tau and t < 4) else RFF[('Q', tau, t)]
            it = [pop(dsq)]
            if i in wq:
                it.append(lambda i=i: A.wl(wq[i]))
            elif i in sq:
                it.append(pop(side))
            if i == 11:
                it.append(lambda: A.wv("poll"))
            if i == 15:
                it.append(lambda: A.wl("sb"))
            if i >= 12:
                it.append(pop(z))
            gap(lambda: smf(A, AQ + 4 * tau, MF + 4 * t, b), *it)
        if not last:
            stamp(A, cfg, 'q')
        fill, kxr = [], []
        if not last:
            fill = pairfold(AQ)
            kxr = [lambda t=t, a=a: A.ds(f"ds_read_b128 {vr(KX+8*t+4*a,4)}, v{vKX} offset:{t*2048+a*256}", "kxf")
                   for t in range(4) for a in range(2)]
        sk = cfg.get('sk', [0, 9, 12])
        for i in range(16):
            t, tau = i // 2, i & 1
            b = Reg('v', KX + 8 * t) if (tau and t < 4) else RFF[('K', tau, t)]
            it = []
            if i >= 1:
                it.append(pop(fill))
            if i == 8 and not last:
                it.append(lambda: A.ds(f"ds_write2_b32 v{vQW}, v{AQ}, v{AQ+1} offset0:0 offset1:136", "qw"))
            elif i >= 2 and (i < 8 or i > 8) and len(kxr) > 0 and (8 - len(kxr)) // 2 <= (i - 2) // 2:
                it.append(pop(kxr))
            if i in sk:
                it.append(pop(side))
            gap(lambda: smf(A, AK + 4 * tau, MF + 4 * t, b), *it)
        assert not kxr and not fill
        if not last:
            stamp(A, cfg, 'k')
        mf = [lambda t=t, tau=tau: smf(A, AV + 4 * tau, MF + 4 * t, RFF[('V', tau, t)]) for t in range(8) for tau in range(2)]
        pub = [lambda: A.vmem(f"buffer_store_dword v{AK}, v{vL4}, {WS}, s{sKM} offen sc1", "km"),
               lambda: A.vmem(f"buffer_store_dword v{AK+1}, v{vL4}, {WS}, s{sKM} offen offset:256 sc1", "km")]
        if cfg.get('nopub'):
            pub = []
        return mf, pub, side, slowlab

    GW = VB + 3

    def house():
        A(f"""
        s_mov_b32 s{sT+4}, s{sMO}
        s_mov_b32 s{sT+5}, s{sMRs}
        s_mov_b32 s{sT+3}, s{sG}
        s_mov_b32 s{sT+6}, s{sRL}
        s_add_u32 s{sT+7}, s{sRL}, 0x1000
        s_mov_b32 s{sT+9}, 0
        s_mov_b32 s{sT+10}, 0
        s_mov_b32 s{sT+8}, s{sKM}
        s_mov_b32 s{sT+11}, s{sStep}
        s_add_u32 s{sStep}, s{sStep}, 1
        s_mov_b32 s{sPR}, s{sP}
        s_mov_b32 s{sPR+1}, s{sP+1}
        s_mov_b32 s{sMRs}, s{sMO}
        s_add_u32 s{sP}, s{sP}, 0x40000
        s_bitset0_b32 s{sP}, 20
        s_add_u32 s{sP+1}, s{sP}, 0x8000
        s_add_u32 s{sRL}, s{sRL}, 0x40000
        s_bitset0_b32 s{sRL}, 20
        s_add_u32 s{sMO}, s{sMO}, 0x2000
        s_bitset0_b32 s{sMO}, 15
        s_add_u32 s{sG}, s{sG}, 0x2000
        s_bitset0_b32 s{sG}, 15
        s_add_u32 s{sKXo}, s{sKXo}, 0x40000
        s_add_u32 s{sVXb}, s{sVXb}, 0x40000
        s_and_b32 s{sT}, s{sM0K}, 0x2000
        s_sub_u32 s{sVXo}, s{sVXb}, s{sT}
        s_add_u32 s{sPF}, s{sPF}, 0x40000
        s_add_u32 s{sKM}, s{sKM}, 0x40000
        s_xor_b32 s{sM0K}, s{sM0K}, 0x2000
        s_add_u32 s{sT}, s{sStep}, 1
        s_lshr_b32 s{sNeed}, s{sT}, 2
        s_add_u32 s{sT}, s{sStep}, 2
        s_and_b32 s{sT}, s{sT}, 3
        s_lshl_b32 s{sT}, s{sT}, 7
        s_add_u32 s{sFLo}, s{sFLc}, s{sT}
        v_add_u32 v{GW}, s{sW11}, v{vL16}
        """)

    def rload(u, s0):
        A(f"buffer_load_dwordx4 {vr(MF+4*u,4)}, v{vL16}, {WS}, s{s0+u//4} offen offset:{(u%4)*1024} sc1")

    def rround():
        for u in range(8):
            rload(u, sT + 6)
    A(f"{L}:\ns_branch {Lg}_compute")
    A(".p2align 6")
    A.label(Lg)
    house()
    A.nop(dA)
    stamp(A, cfg, 'r0')
    rround()
    stamp(A, cfg, 'ri')
    pre_step(A)
    A.label(Lg + "_red")
    nr = cfg.get('nr', 4)
    for u in range(nr):
        rload(u, sT + 6)
    for u in range(8):
        A(f"s_waitcnt vmcnt({7 - u + min(8, nr + u)})")
        A(f"v_mfma_f32_16x16x32_bf16 {vr(TT,4)}, {vr(vSEL,4)}, {vr(MF+4*u,4)}, {'0' if u==0 else vr(TT,4)}")
        if nr + u < 8:
            rload(nr + u, sT + 6)
    stamp(A, cfg, 'rm')
    A(f"""
    s_nop 7
    v_cmp_u_f32 vcc, v{TT}, v{TT}
    v_cvt_pk_bf16_f32 v{TT}, v{TT}, v{TT+1}
    v_cvt_pk_bf16_f32 v{TT+1}, v{TT+2}, v{TT+3}
    s_cbranch_vccnz {Lg}_nan
    {Lg}_ok:
    v_min_u32 v{TT}, -2, v{TT}
    v_min_u32 v{TT+1}, -2, v{TT+1}
    buffer_store_dwordx2 {vr(TT,2)}, v{vRS}, {WS}, s{sT+4} offen{st}
    """)
    stamp(A, cfg, 'r1')
    A(f"""
    v_mov_b32 v{TT+2}, -1
    v_mov_b32 v{TT+3}, -1
    buffer_store_dwordx2 {vr(TT+2,2)}, v{vRS}, {WS}, s{sT+5} offen{st}
    {Lg}_bar:
    s_barrier
    """)
    stamp(A, cfg, 6)
    A.nop(dB)
    G = AV

    def ground():
        A(f"buffer_load_dwordx4 {vr(G,4)}, v{vL16}, {WS}, s{sT+3} offen sc1")
        A(f"buffer_load_dwordx4 {vr(G+4,4)}, v{vL16}, {WS}, s{sT+3} offen offset:1024 sc1")
    ground()
    A.nop(dB2)
    A.label(Lg + "_poll")
    ground()
    A(f"s_add_u32 s{sT+10}, s{sT+10}, 1\ns_cmp_gt_u32 s{sT+10}, 0x400000\ns_cbranch_scc1 L_end")
    A(f"""
    s_waitcnt vmcnt(3)
    v_max3_u32 v{TT}, v{G}, v{G+1}, v{G+2}
    s_waitcnt vmcnt(2)
    v_max3_u32 v{TT+1}, v{G+3}, v{G+4}, v{G+5}
    v_max3_u32 v{TT}, v{TT}, v{G+6}, v{G+7}
    v_max_u32 v{TT}, v{TT}, v{TT+1}
    v_cmp_eq_u32 vcc, -1, v{TT}
    ds_write_b128 v{GW}, {vr(G,4)} offset:{L_MEM}
    ds_write_b128 v{GW}, {vr(G+4,4)} offset:{L_MEM+1024}
    s_cbranch_vccnz {Lg}_poll
    v_readfirstlane_b32 s{sF0}, v{vFL}
    """)
    stamp(A, cfg, 7)
    if cfg.get('diag'):
        A("s_waitcnt lgkmcnt(0)")
        for k in range(len(cfg['diag'])):
            A(f"v_writelane_b32 v{TT+2}, s{12+2*k}, {k}")
        A(f"v_writelane_b32 v{TT+2}, s{sT+9}, 30")
        A(f"v_writelane_b32 v{TT+2}, s{sT+10}, 31")
        A(f"""
        s_lshl_b32 s{sT}, s{sStep}, 7
        s_lshl_b32 s{sT+1}, s{S_ID}, 2
        s_add_u32 s{sT+1}, s{sT+1}, s{S_W}
        s_lshl_b32 s{sT+1}, s{sT+1}, 13
        s_add_u32 s{sT}, s{sT}, s{sT+1}
        s_add_u32 s{sT}, s{sT}, {DIAG - 128:#x}
        v_lshrrev_b32 v{TT}, 2, v{vL16}
        s_mov_b32 exec_hi, 0
        buffer_store_dword v{TT+2}, v{TT}, {WS}, s{sT} offen
        s_mov_b64 exec, -1
        """)
    A(f"""
    s_cmp_eq_u32 s{sStep}, 63
    s_waitcnt lgkmcnt(0)
    s_barrier
    s_cbranch_scc1 {Lg}_last
    {Lg}_compute:
    """)
    A.lg = []
    A.vm = ["poll", "poll"]
    stamp(A, cfg, 0)
    mf, pub, side, slowlab = qkv_phases(False)
    assert not side
    pop(mf)()
    pop(mf)()
    A("\n".join(pairfold(AK)))
    A.ds(f"ds_write2_b32 v{vQW}, v{AK}, v{AK+1} offset0:64 offset1:200", "kw")
    stamp(A, cfg, 'kw')
    nv1, nv2 = cfg.get('nv1', 4), cfg.get('nv2', 4)
    RS = AQ + 4
    rs = [f"v_mov_b32 v{RS+i}, {SENT_P:#x}" for i in range(4)]
    rst = [lambda b=b: A.vmem(f"buffer_store_dwordx4 {vr(RS,4)}, v{vPS}, {WS}, s{sPR+b} offen{st}", "rst") for b in range(2)]
    for i in range(nv1):
        gap(pop(mf), pop(pub), pop(rs))
    for f in rst:
        f()
    stamp(A, cfg, 'v1')
    A.wl()
    A("s_barrier")
    stamp(A, cfg, 1)
    qr = [lambda u=u: A.ds(f"ds_read_b128 {vr(AQ+4*u,4)}, v{vTQ} offset:{u*64}", ("qf", u)) for u in range(4)]
    kr = [lambda u=u: A.ds(f"ds_read_b128 {vr(KX+4*u,4)}, v{vTK} offset:{u*64}", ("kf", u)) for u in range(4)]
    pop(qr)()
    pop(qr)()
    S0, S1, SM = MF, MF + 4, MF + 8
    O0, O1, SU = MF + 12, MF + 16, MF + 20
    for i in range(nv2):
        gap(pop(mf), pop(qr), pop(rs))
    assert 2 + nv1 + nv2 >= 10 and not qr and not rs
    stamp(A, cfg, 'v2')
    zero = [f"v_mov_b64 {vr(r,2)}, 0" for r in range(O0, O0 + 8, 2)]
    A.wl(("qf", 1))

    def xs(u, a):
        c = "0" if u == 0 else vr(S0 + 4 * a, 4)
        return lambda: A(f"v_mfma_f32_16x16x32_bf16 {vr(S0+4*a,4)}, {vr(KX+8*u+4*a,4)}, {vr(AQ+4*u,4)}, {c}")

    def ms(u):
        c = "0" if u == 0 else vr(SM, 4)
        return lambda: A(f"v_mfma_f32_16x16x32_bf16 {vr(SM,4)}, {vr(KX+4*u,4)}, {vr(AQ+4*u,4)}, {c}")
    gap(xs(0, 0), pop(kr), pop(zero))
    gap(xs(0, 1), pop(kr), pop(zero))
    gap(xs(1, 0), pop(kr), pop(zero))
    gap(xs(1, 1), pop(kr), lambda: A.wl(("qf", 3)))
    gap(xs(2, 0), pop(zero))
    gap(xs(2, 1), lambda: A.wv("vx"), f"v_mov_b64 {vr(VB+4,2)}, {vr(VB+2,2)}")
    gap(xs(3, 0), f"v_mov_b64 {vr(VB+12,2)}, {vr(VB+10,2)}")
    gap(xs(3, 1), lambda: A.wl(("kf", 3)), f"v_xor_b32 v{vKX}, 0x2000, v{vKX}")
    stamp(A, cfg, 'sx')
    wl_ = ldsf(('O', 0, 0), KX + 16, "wo0") + ldsf(('O', 0, 1), KX + 24, "wo0") + ldsf(('O', 2, 0), KX, "wo2") + ldsf(('O', 2, 1), KX + 8, "wo2")
    m_, t_ = TT, TT + 1
    OD = f"s[{sODD}:{sODD+1}]"
    gap(ms(0), pop(wl_))
    gap(ms(1), pop(wl_))
    gap(ms(2), pop(wl_), f"v_max3_f32 v{m_}, v{S0}, v{S0+1}, v{S0+2}")
    gap(ms(3), pop(wl_), f"v_max3_f32 v{t_}, v{S0+3}, v{S1}, v{S1+1}")
    gap(pop(mf), pop(wl_), f"v_max3_f32 v{m_}, v{m_}, v{S1+2}, v{S1+3}")
    gap(pop(mf), pop(wl_), f"v_cndmask_b32 v{S0}, v{S0}, v{S0+2}, {OD}")
    stamp(A, cfg, 2)
    sm = f"""
    v_max3_f32 v{t_}, v{t_}, v{SM}, v{SM+1}
    v_max3_f32 v{m_}, v{m_}, v{SM+2}, v{SM+3}
    v_max_f32 v{m_}, v{m_}, v{t_}
    v_mov_b32 v{t_}, v{m_}
    X
    v_cndmask_b32 v{S0+1}, v{S0+1}, v{S0+3}, {OD}
    v_permlane32_swap_b32 v{m_}, v{t_}
    v_max_f32 v{m_}, v{m_}, v{t_}
    v_mov_b32 v{t_}, v{m_}
    X
    v_cndmask_b32 v{S1}, v{S1}, v{S1+2}, {OD}
    v_permlane16_swap_b32 v{m_}, v{t_}
    v_max_f32 v{m_}, v{m_}, v{t_}
    v_mul_f32 v{m_}, s{sC}, v{m_}
    X
    v_cndmask_b32 v{S1+1}, v{S1+1}, v{S1+3}, {OD}
    v_fma_f32 v{S0}, v{S0}, s{sC}, -v{m_}
    v_fma_f32 v{S0+1}, v{S0+1}, s{sC}, -v{m_}
    X
    v_cndmask_b32 v{SM}, v{SM}, v{SM+2}, {OD}
    v_cndmask_b32 v{SM+1}, v{SM+1}, v{SM+3}, {OD}
    v_exp_f32 v{S0}, v{S0}
    v_exp_f32 v{S0+1}, v{S0+1}
    v_fma_f32 v{S1}, v{S1}, s{sC}, -v{m_}
    v_fma_f32 v{S1+1}, v{S1+1}, s{sC}, -v{m_}
    v_fma_f32 v{SM}, v{SM}, s{sC}, -v{m_}
    v_fma_f32 v{SM+1}, v{SM+1}, s{sC}, -v{m_}
    v_exp_f32 v{S1}, v{S1}
    v_exp_f32 v{S1+1}, v{S1+1}
    v_exp_f32 v{SM}, v{SM}
    v_exp_f32 v{SM+1}, v{SM+1}
    """
    for ln in sm.strip().split("\n"):
        m_after_mov = A.lines[-1].startswith("v_mov_b32")
        ln = ln.strip()
        if ln == "X":
            if mf:
                gap(pop(mf), pop(wl_))
            elif wl_:
                pop(wl_)()
            elif m_after_mov:
                A("s_nop 0")
        else:
            A(ln)
    assert not mf and not wl_
    vc = v_convert()
    P = TT
    A(f"""
    v_cvt_pk_bf16_f32 v{P}, v{S0}, v{S0+1}
    v_cvt_pk_bf16_f32 v{P+2}, v{S1}, v{S1+1}
    v_cvt_pk_bf16_f32 v{S0+2}, v{SM}, v{SM+1}
    {vc[0]}
    v_cndmask_b32 v{P+1}, 0, v{S0+2}, s[{sEVL}:{sEVL+1}]
    v_cndmask_b32 v{P+3}, 0, v{S0+2}, s[{sODL}:{sODL+1}]
    {vc[1]}
    {vc[2]}
    """)
    stamp(A, cfg, 3)
    WA = MF
    A(f"v_mfma_f32_16x16x32_bf16 {vr(SU,4)}, {vr(P,4)}, {vr(vONE,4)}, 0")
    A("\n".join(vc[3:6]))
    smf(A, O0, P, Reg('v', VB))
    A("\n".join(vc[6:8]))
    A("\n".join(fold(SU)))
    smf(A, O1, P, Reg('v', VB + 8))
    A(f"v_rcp_f32 v{SU}, v{SU}\nv_rcp_f32 v{SU+2}, v{SU+2}")
    A("\n".join(fold(O0)))
    A(f"v_mul_f32 v{O0}, v{O0}, v{SU}\nv_mul_f32 v{O0+2}, v{O0+2}, v{SU+2}")
    A(f"v_mov_b64 {vr(WA,2)}, 0\nv_mov_b64 {vr(WA+2,2)}, 0")
    A("\n".join(fold(O1)))
    A(f"v_mul_f32 v{O1}, v{O1}, v{SU}\nv_mul_f32 v{O1+2}, v{O1+2}, v{SU+2}")
    A(f"v_cvt_pk_bf16_f32 v{TT}, v{O0}, v{O1}\nv_cvt_pk_bf16_f32 v{TT+1}, v{O0+2}, v{O1+2}")
    A.ds(f"ds_write2_b32 v{vOW}, v{TT}, v{TT+1} offset0:0 offset1:80", "ow")
    stamp(A, cfg, 'ow')
    A("\n".join(f"v_mov_b64 {vr(r,2)}, 0" for r in range(WA + 4, WA + 32, 2)))
    A.wl("ow")
    A("s_barrier")
    stamp(A, cfg, 4)
    OA = AQ
    for t in range(2):
        A.ds(f"ds_read_b128 {vr(OA+4*t,4)}, v{vTO} offset:{t*128}", ("of", t))
    wol = ldsf(('O', 4, 0), AK, "wo4") + ldsf(('O', 4, 1), AV, "wo4") + ldsf(('O', 6, 0), KX + 16, "wo6") + ldsf(('O', 6, 1), KX + 24, "wo6")
    npre = cfg.get('npre', 2)
    for _ in range(npre):
        pop(wol)()
    loc = {('O', 0, 0): Reg('v', KX + 16), ('O', 0, 1): Reg('v', KX + 24), ('O', 2, 0): Reg('v', KX), ('O', 2, 1): Reg('v', KX + 8),
           ('O', 4, 0): Reg('v', AK), ('O', 4, 1): Reg('v', AV), ('O', 6, 0): Reg('v', KX + 16), ('O', 6, 1): Reg('v', KX + 24)}
    seq = [(j, t) for j in range(8) for t in range(2)]
    tails = []
    for j in range(8):
        x = WA + 4 * j
        d = WA + 16 * (j // 4) + (j % 4)
        it = fold(x) + [f"v_cvt_pk_bf16_f32 v{d}, v{x}, v{x+2}"]
        if j % 4 == 3:
            b = j // 4
            it.append(lambda b=b: A.vmem(f"buffer_store_dwordx4 {vr(WA+16*b,4)}, v{vPS}, {WS}, s{sP+b} offen{st}", "ps"))
        tails.append((2 * j + 3, it))
    pend = []
    A.wl(("of", 1))
    for i, (j, t) in enumerate(seq):
        key = ('O', j, t)
        while tails and tails[0][0] <= i:
            pend += tails.pop(0)[1]
        it = []
        if wol and (len(wol) > 4 or i >= 1):
            it.append(pop(wol))
        if i == 7:
            it.append(lambda: A.wl("wo4"))
        if i == 11:
            it.append(lambda: A.wl("wo6"))
        smf(A, WA + 4 * j, OA + 4 * t, loc.get(key) or RFF[key])
        for f in it:
            emit(A, f)
        n = 2 if (i & 1) else 1
        while pend and (n > 0 or not isvalu(pend[0])):
            f = pend.pop(0)
            emit(A, f)
            n -= 1
        stamp(A, cfg, f'w{i}')
    n = 2
    for f in pend:
        emit(A, f); n += 1
    A.nop(max(0, 8 - n))
    for f in tails.pop(0)[1]:
        emit(A, f)
    assert not tails
    stamp(A, cfg, 5)
    A(f"s_cmp_lg_u32 s{S_W}, 0\ns_cbranch_scc1 {Lg}_other\ns_branch {Lg}")
    A.label(Lg + "_last")
    A.lg = []
    A.vm = ["poll", "poll"]
    mf, pub, side, _ = qkv_phases(True)
    weave(A, mf, pairfold(AK) + pub, per=1, lead=2)
    A.nop(8)
    A("\n".join(v_convert()))
    for f in v_publish(sKM):
        emit(A, f)
    A(f"""
    v_mov_b32 v{TT}, 64
    s_waitcnt vmcnt(0)
    s_barrier
    buffer_store_dword v{TT}, v{vZ}, {WS}, s{sProg} offen sc1
    s_waitcnt vmcnt(0)
    s_branch L_end
    """)
    A.label(Lg + "_other")
    pre_step(A)
    house()
    A(f"s_branch {Lg}_bar")
    A(f"""
    {slowlab}:
    s_add_u32 s{sT}, s{sStep}, 1
    s_and_b32 s{sT}, s{sT}, 3
    s_lshl_b32 s{sT}, s{sT}, 7
    s_add_u32 s{sT}, s{sT}, s{sFLc}
    {slowlab}_l:
    {GUARD}
    buffer_load_dword v{vFL}, v{vZ}, {WS}, s{sT} offen sc1
    s_waitcnt vmcnt(0)
    v_readfirstlane_b32 s{sF0}, v{vFL}
    s_cmp_le_u32 s{sF0}, s{sNeed}
    s_cbranch_scc1 {slowlab}_l
    s_branch {slowlab}_ret
    {Lg}_nan:
    {GUARD}
    s_add_u32 s{sT+9}, s{sT+9}, 1
    s_cmp_lt_u32 s{sT+9}, 64
    s_cbranch_scc1 {Lg}_red
    s_mov_b32 s{sT+2}, {SENT_P:#x}
    s_mov_b64 s[{sT}:{sT+1}], 0
    s_waitcnt vmcnt(0)
    """)
    for i in range(32):
        A(f"v_cmp_eq_u32 vcc, s{sT+2}, v{MF+i}\ns_or_b64 s[{sT}:{sT+1}], s[{sT}:{sT+1}], vcc")
    A(f"""
    s_cmp_eq_u64 s[{sT}:{sT+1}], 0
    s_cbranch_scc1 {Lg}_acc
    """)
    rround()
    A(f"s_branch {Lg}_red\n{Lg}_acc:")
    for u in range(8):
        A(f"v_mfma_f32_16x16x32_bf16 {vr(TT,4)}, {vr(vSEL,4)}, {vr(MF+4*u,4)}, {'0' if u==0 else vr(TT,4)}")
    A(f"""
    s_nop 7
    v_cvt_pk_bf16_f32 v{TT}, v{TT}, v{TT+1}
    v_cvt_pk_bf16_f32 v{TT+1}, v{TT+2}, v{TT+3}
    s_branch {Lg}_ok
    """)


def chain(A, cfg):
    chain_startup(A, cfg)
    A(f"s_mov_b32 s{sT+8}, s{sKM}\ns_mov_b32 s{sT+11}, 0")
    A(f"s_cmp_lt_u32 s{sT+7}, 32\ns_cbranch_scc1 Lchain_slow")
    if cfg.get('forceslow'):
        A("s_branch Lchain_slow")
    chain_loop(A, cfg, 'fast')
    chain_loop(A, cfg, 'slow')
```

```python
import math
from asmlib import *

KNAME = "parallel_sum__memory_aug_recurrent_mem_tr__mixer_token_mlp__prompt_kernel"

F_RS = 0x0000
F_LN = 0x0100
F_U = 0x0400
F_BASE = 0x0800
F_PROG = 0x1000
F_PART = 0x4000
F_TAB = 0x2000
F_P2 = 0x8000
PRING = 0x0200000
MRING = 0x0100000
DIAG = 0x0300000
WS_H = 0x0400000
WS_U = 0x0600000
WS_BASE = 0x0800000
WS_XN = 0x0C00000
WS_KX = 0x1000000
WS_VX = 0x2000000
WS_QX = 0x3000000
WS_KVM = 0x4000000
WS_PART = 0x5000000
WS_BYTES = 0x10000000


S_WS = 4
S_DBG = 8
S_WQ, S_WK, S_WV, S_WO = 12, 16, 20, 24
S_X, S_MEM0, S_W1, S_W2 = 28, 32, 36, 40
S_OUT, S_B1, S_B2 = 44, 48, 52
S_W = 56
S_ID = 57
S_XCC = 58
S_T = 59

SM_C = (128 ** -0.5) * math.log2(math.e)


def f32bits(x):
    import struct
    return struct.unpack("<I", struct.pack("<f", x))[0]


def build_srds(A):
    A("""
    s_load_dwordx16 s[56:71], s[0:1], 0
    s_load_dwordx8 s[72:79], s[0:1], 64
    s_load_dwordx4 s[80:83], s[0:1], 96
    s_load_dwordx2 s[84:85], s[0:1], 112
    s_waitcnt lgkmcnt(0)
    """)
    def srd(d, p, nbytes):
        A(f"""
        s_mov_b32 s{d}, s{p}
        s_mov_b32 s{d+1}, s{p+1}
        s_mov_b32 s{d+2}, {nbytes:#x}
        s_mov_b32 s{d+3}, 0x20000
        """)
    srd(S_X, 56, 2048 * 512 * 2)
    srd(S_MEM0, 58, 8 * 512 * 2)
    srd(S_WQ, 60, 512 * 4096 * 2)
    srd(S_WK, 62, 512 * 4096 * 2)
    srd(S_WV, 64, 512 * 4096 * 2)
    srd(S_WO, 66, 512 * 4096 * 2)
    srd(S_W1, 72, 2048 * 1792 * 2)
    srd(S_B1, 74, 1792 * 2)
    srd(S_W2, 76, 2048 * 1792 * 2)
    srd(S_B2, 78, 2048 * 2)
    srd(S_OUT, 80, 2048 * 512 * 2)
    srd(S_WS, 84, WS_BYTES)
    A("""
    s_mov_b32 s8, s82
    s_mov_b32 s9, s83
    """)


S_SPIN = 101


def spin_guard(A):
    A(f"s_add_u32 s{S_SPIN}, s{S_SPIN}, 1\ns_cmp_gt_u32 s{S_SPIN}, 0x400000\ns_cbranch_scc1 L_end")


WSR = f"s[{S_WS}:{S_WS+3}]"
GUARD = f"s_add_u32 s{S_SPIN}, s{S_SPIN}, 1\ns_cmp_gt_u32 s{S_SPIN}, 0x400000\ns_cbranch_scc1 L_end"
EPS = f32bits(1e-5)


def layernorm8(A, src, dst, t):
    ones, a0, a1, b0, b1 = t, t + 1, t + 2, t + 3, t + 4
    A(f"v_mov_b32 v{ones}, 0x3f803f80")
    for r in (a0, a1, b0, b1):
        A(f"v_mov_b32 v{r}, 0")
    for i in range(32):
        a, b = (a0, b0) if i & 1 else (a1, b1)
        A(f"v_dot2_f32_bf16 v{a}, v{src+i}, v{ones}, v{a}")
        A(f"v_dot2_f32_bf16 v{b}, v{src+i}, v{src+i}, v{b}")
    m, q, c = t + 5, t + 6, t + 8
    A(f"s_nop 2\nv_add_f32 v{a0}, v{a0}, v{a1}\nv_add_f32 v{b0}, v{b0}, v{b1}")
    for dpp in ("quad_perm:[1,0,3,2]", "quad_perm:[2,3,0,1]", "row_half_mirror"):
        A(f"""
        s_nop 1
        v_add_f32_dpp v{a0}, v{a0}, v{a0} {dpp} row_mask:0xf bank_mask:0xf
        v_add_f32_dpp v{b0}, v{b0}, v{b0} {dpp} row_mask:0xf bank_mask:0xf
        """)
    A(f"""
    v_mul_f32 v{m}, 0x3b000000, v{a0}          ; mean
    v_mul_f32 v{q}, 0x3b000000, v{b0}          ; E[x^2]
    v_fma_f32 v{q}, -v{m}, v{m}, v{q}          ; var
    v_max_f32 v{q}, 0, v{q}
    v_cvt_pk_bf16_f32 v{q}, v{q}, v{m}
    v_and_b32 v{m}, 0xffff0000, v{q}
    v_lshlrev_b32 v{q}, 16, v{q}
    v_add_f32 v{q}, {EPS:#x}, v{q}
    v_cvt_pk_bf16_f32 v{q}, v{q}, v{q}
    v_lshlrev_b32 v{q}, 16, v{q}
    v_sqrt_f32 v{q}, v{q}
    s_nop 0
    v_cvt_pk_bf16_f32 v{q}, v{q}, v{q}
    v_lshlrev_b32 v{q}, 16, v{q}
    v_rcp_f32 v{t+10}, v{q}
    s_nop 0
    v_mov_b32 v{t+11}, v{t+10}
    """)
    for i in range(32):
        p = t + 12 + 2 * (i & 1)
        A(f"""
        v_lshlrev_b32 v{p}, 16, v{src+i}
        v_and_b32 v{p+1}, 0xffff0000, v{src+i}
        v_sub_f32 v{p}, v{p}, v{m}
        v_sub_f32 v{p+1}, v{p+1}, v{m}
        v_cvt_pk_bf16_f32 v{p+1}, v{p}, v{p+1}
        v_lshlrev_b32 v{p}, 16, v{p+1}
        v_and_b32 v{p+1}, 0xffff0000, v{p+1}
        v_pk_mul_f32 v[{p}:{p+1}], v[{p}:{p+1}], v[{t+10}:{t+11}]
        v_cvt_pk_bf16_f32 v{dst+i}, v{p}, v{p+1}
        """)
```

```python
from common import *
import common

WS = WSR
sDa, sDb = 60, 64
sOa, sOb = 68, 69
sW10 = 70
sSt, sFl, sXo, sI = 71, 72, 73, 74
sT = 76
sR = [88, 89, 90, 91, 92, 93, 10, 11]


def wstamp(A, cfg, k, vtmp=126, wave=0, cyc=False):
    if cfg.get('wdiag'):
        lab = A.uid("Lst")
        A(f"""
        s_cmp_lg_u32 s{S_W}, {wave}
        s_cbranch_scc1 {lab}
        {'s_memtime' if cyc else 's_memrealtime'} s[96:97]
        s_lshl_b32 s98, s{S_ID}, 7
        s_add_u32 s98, s98, {0x110000 + 4*k:#x}
        s_waitcnt lgkmcnt(0)
        v_mov_b32 v{vtmp}, s96
        v_mov_b32 v{vtmp+1}, 0
        buffer_store_dword v{vtmp}, v{vtmp+1}, {WS}, s98 offen
        {lab}:
        """)


vSolo, vT0, vSt, vZero, vOne, vXr, vL16, vDm = 3, 4, 6, 8, 9, 10, 11, 12
FB = 16
SG = 32
ACC = 48


def wait_ln(A, uid, off=0):
    A(f"""
    v_and_b32 v113, 7, v0
    v_lshlrev_b32 v113, 2, v113
    s_mov_b32 s{sT}, {F_LN+off:#x}
    s_cmp_lg_u32 s{S_W}, 0
    s_cbranch_scc1 {uid}_x
    {uid}:
    {GUARD}
    buffer_load_dword v112, v113, {WS}, s{sT} offen sc1
    s_waitcnt vmcnt(0)
    v_cmp_ne_u32 vcc, 0x01010101, v112
    s_cbranch_vccz {uid}_x
    s_sleep 8
    s_branch {uid}
    {uid}_x:
    s_waitcnt vmcnt(0)
    s_barrier
    """)


def ln_rows(A, cfg):
    A(f"""
    v_lshrrev_b32 v12, 3, v1
    v_and_b32 v13, 7, v1                   ; j
    s_lshl_b32 s{sT+2}, s{sT}, 16
    s_lshl_b32 s{sT+3}, s{S_W}, 14
    s_add_u32 s{sT+2}, s{sT+2}, s{sT+3}
    v_lshlrev_b32 v14, 10, v12
    v_lshl_add_u32 v14, v13, 4, v14
    v_add_u32 v14, s{sT+2}, v14            ; row*1024 + j*16
    v_add_u32 v128, 0x2000, v14
    """)
    for g in range(2):
        for i in range(8):
            A(f"buffer_load_dwordx4 {vr(32+32*g+4*i,4)}, v{14 if g == 0 else 128}, s[{S_X}:{S_X+3}], 0 offen offset:{i*128}")
    A(f"""
    s_lshl_b32 s{sT+2}, s{sT}, 16
    s_lshr_b32 s{sT+3}, s{S_W}, 1
    s_lshl_b32 s{sT+3}, s{sT+3}, 15
    s_add_u32 s{sT+2}, s{sT+2}, s{sT+3}
    s_and_b32 s{sT+3}, s{S_W}, 1
    s_lshl_b32 s{sT+3}, s{sT+3}, 8
    s_add_u32 s{sT+2}, s{sT+2}, s{sT+3}
    s_add_u32 s{sT+2}, s{sT+2}, {WS_XN:#x}
    v_lshrrev_b32 v15, 1, v13
    v_lshlrev_b32 v15, 10, v15
    v_and_b32 v16, 1, v13
    v_lshl_add_u32 v15, v16, 9, v15
    v_lshl_add_u32 v15, v12, 4, v15
    """)
    for g in range(2):
        A(f"s_waitcnt vmcnt({8 if g == 0 else 8})")
        layernorm8(A, 32 + 32 * g, 132 + 32 * g, 16)
        for i in range(8):
            A(f"s_add_u32 s{sT+3}, s{sT+2}, {i*4096}")
            A(f"buffer_store_dwordx4 {vr(132+32*g+4*i,4)}, v15, {WS}, s{sT+3} offen offset:{g*128} sc1")
    A("v_mov_b32 v116, v1")
    common.validate(A, 116)
    A(f"""
    s_barrier
    s_add_u32 s{sT}, s{sT}, {F_LN:#x}
    buffer_store_byte v{vOne}, v{vSolo}, {WS}, s{sT} offen sc1
    """)
    wstamp(A, cfg, 5)
    A(f"s_mov_b32 s{sT+3}, {WS_H:#x}")
    for g in range(2):
        layernorm8(A, 132 + 32 * g, 32 + 32 * g, 16)
        for i in range(8):
            A(f"buffer_store_dwordx4 {vr(32+32*g+4*i,4)}, v{14 if g == 0 else 128}, {WS}, s{sT+3} offen offset:{i*128} sc1")
    A(f"""
    s_waitcnt vmcnt(0)
    s_barrier
    buffer_store_byte v{vOne}, v{vSolo}, {WS}, s{sT} offen offset:128 sc1
    """)


def xn_dma(A, slot):
    out = []
    for i in range(8):
        def f(i=i):
            A(f"s_add_u32 m0, s{sW10}, {slot*32768 + i*4096:#x}")
            A(f"s_add_u32 s{sT+8}, s{sXo}, s{sR[i]}")
            A.vmem(f"buffer_load_dwordx4 v{vL16}, {WS}, s{sT+8} offen lds", "xn")
        out.append(f)
    return out


def tile_loop(A, cfg, vtype):
    L = "L_p2v" if vtype else "L_p2k"
    A.label(L)

    def rd(par, u):
        A.ds(f"ds_read_b128 {vr(FB+4*(u&3),4)}, v{vXr} offset:{par*32768 + u*1024}", ("x", u & 3))

    def epilogue(acc):
        ins = []
        for ctl in range(2):
            for a in range(2):
                for i in range(4):
                    p, q = (8 * a + 2 * i, 8 * a + 2 * i + 1) if vtype else (8 * a + i, 8 * a + 4 + i)
                    ins.append(f"v_cvt_pk_bf16_f32 v{SG+8*ctl+4*a+i}, v{acc+16*ctl+p}, v{acc+16*ctl+q}")
                if not cfg.get('nost'): ins.append(lambda ctl=ctl, a=a: A.vmem(
                    f"buffer_store_dwordx4 {vr(SG+8*ctl+4*a,4)}, v{vSt+a}, {WS}, s{sSt} offen offset:{ctl*2048} sc1", "st"))
        return ins

    tight = []
    for par in range(2):
        acc = ACC + 32 * par
        epi = epilogue(ACC + 32 * (1 - par))
        dma = []
        for u in range(32):
            if u == 24:
                tl = A.uid("Ltight")
                if par == 1:
                    A(f"s_cmp_eq_u32 s{sI}, 0\ns_cbranch_scc1 {tl}")
                    tight.append(tl)
                if cfg.get('wdiag'):
                    A(f"""
                    s_memtime s[{sT}:{sT+1}]
                    s_waitcnt vmcnt(13) lgkmcnt(0)
                    s_memtime s[{sT+2}:{sT+3}]
                    s_barrier
                    s_waitcnt lgkmcnt(0)
                    s_memtime s[{sT+4}:{sT+5}]
                    s_sub_u32 s{sT}, s{sT+2}, s{sT}
                    s_add_u32 s94, s94, s{sT}
                    s_waitcnt lgkmcnt(0)
                    s_sub_u32 s{sT}, s{sT+4}, s{sT+2}
                    s_add_u32 s95, s95, s{sT}
                    """)
                else:
                    A("s_waitcnt vmcnt(13)\ns_barrier")
                A(f"""
                buffer_store_dword v117, v116, {WS}, s{sFl} offen sc1
                {tl}_ret:
                v_add_u32 v117, 1, v117
                s_add_u32 s{sSt}, s{sSt}, 0x100000
                v_mov_b32 v{vSt}, v112
                v_mov_b32 v{vSt+1}, v113
                """)
                A(f"s_xor_b32 s{sW10}, s{sW10}, 0x10000" if par == 1 else "")
                dma = xn_dma(A, 1 - par)
            A.wl(("x", u & 3))
            for ctl in range(2):
                w = ar((ctl * 32 + u) * 4, 4)
                x = vr(FB + 4 * (u & 3), 4)
                a_, b_ = (x, w) if vtype else (w, x)
                c = "0" if u == 0 else vr(acc + 16 * ctl, 16)
                A(f"v_mfma_f32_32x32x16_bf16 {vr(acc+16*ctl,16)}, {a_}, {b_}, {c}")
                if ctl == 0:
                    if u == 29 and par == 1:
                        A(f"v_xor_b32 v{vXr}, 0x10000, v{vXr}")
                    n = u + 3
                    rd(par if n < 32 else 1 - par, n & 31)
                    if dma:
                        dma.pop(0)()
                if u >= 1:
                    for _ in range(2):
                        if epi:
                            f = epi.pop(0)
                            f() if callable(f) else A(f)
            if u == 31:
                A(f"s_add_u32 s{sXo}, s{sXo}, 0x20000")
    A(f"""
    s_add_u32 s{sI}, s{sI}, 2
    s_cmp_lt_u32 s{sI}, 16
    s_cbranch_scc1 {L}
    """)
    A.nop(12)
    for f in epilogue(ACC + 32):
        f() if callable(f) else A(f)
    A(f"""
    s_waitcnt vmcnt(0) lgkmcnt(0)
    s_barrier
    v_mov_b32 v117, 16
    buffer_store_dword v117, v116, {WS}, s{sFl} offen sc1
    s_branch L_p2_done
    {tight[0]}:
    s_waitcnt vmcnt(0)
    s_barrier
    v_mov_b32 v116, v118
    buffer_store_dword v{vOne}, v116, {WS}, s{sFl} offen sc1
    s_branch {tight[0]}_ret
    """)


def p2(A, cfg):
    A.c("===== worker P2: K/V/Q projections (weights resident, tokens streamed) =====")
    A(f"""
    v_and_b32 v1, 63, v0
    v_lshlrev_b32 v{vL16}, 4, v1
    v_mov_b32 v{vZero}, 0
    v_mov_b32 v{vOne}, 1
    s_lshl_b32 s{sT}, s{S_W}, 6
    v_or_b32 v2, s{sT}, v1
    v_bfrev_b32 v{vSolo}, 1
    v_cmp_eq_u32 vcc, 0, v2
    s_nop 1
    v_cndmask_b32 v{vSolo}, v{vSolo}, v{vZero}, vcc
    s_mul_i32 s{sT}, s{S_ID}, 9363
    s_lshr_b32 s{sT}, s{sT}, 16                ; rank / 7
    s_mul_i32 s{sT+1}, s{sT}, 7
    s_sub_u32 s{sT+1}, s{S_ID}, s{sT+1}        ; rank % 7
    s_cmp_eq_u32 s{sT+1}, 6
    s_cbranch_scc1 L_p2_idle
    s_mul_i32 s{sT}, s{sT}, 6
    s_add_u32 s{sT}, s{sT}, s{sT+1}
    s_mov_b32 s{sT+11}, s{sT}
    s_lshr_b32 s{sT+2}, s{sT}, 2
    s_and_b32 s{sT+3}, s{sT}, 3                ; j
    s_mov_b32 s{sDa+2}, {512*4096*2:#x}
    s_mov_b32 s{sDa+3}, 0x20000
    s_mov_b32 s{sDb+2}, {512*4096*2:#x}
    s_mov_b32 s{sDb+3}, 0x20000
    s_sub_u32 s{sT+4}, s{sT+2}, 32
    s_lshl_b32 s{sT+4}, s{sT+4}, 1
    s_add_u32 s{sT+5}, s{sT+4}, 1
    s_cmp_lt_u32 s{sT+2}, 32
    s_cselect_b64 s[{sDa}:{sDa+1}], s[{S_WK}:{S_WK+1}], s[{S_WQ}:{S_WQ+1}]
    s_cselect_b64 s[{sDb}:{sDb+1}], s[{S_WV}:{S_WV+1}], s[{S_WQ}:{S_WQ+1}]
    s_cselect_b32 s{sT+4}, s{sT+2}, s{sT+4}
    s_cselect_b32 s{sT+5}, s{sT+2}, s{sT+5}
    s_cselect_b32 s{sT+7}, 1, 3
    s_cselect_b32 s{sT+9}, 2, 3
    s_lshl_b32 s{sOa}, s{sT+4}, 8
    s_lshl_b32 s{sOb}, s{sT+5}, 8
    s_cmp_lt_u32 s{S_W}, 2
    s_cselect_b32 s{sT+4}, s{sT+4}, s{sT+5}
    s_cselect_b32 s{sT+7}, s{sT+7}, s{sT+9}
    s_lshl_b32 s{sSt}, s{sT+7}, 24
    s_lshl_b32 s{sT+9}, s{sT+3}, 18
    s_add_u32 s{sSt}, s{sSt}, s{sT+9}
    s_lshl_b32 s{sT+9}, s{sT+4}, 13
    s_add_u32 s{sSt}, s{sSt}, s{sT+9}
    s_and_b32 s{sT+9}, s{S_W}, 1
    s_lshl_b32 s{sT+9}, s{sT+9}, 12
    s_add_u32 s{sSt}, s{sSt}, s{sT+9}
    s_sub_u32 s{sSt}, s{sSt}, 0x100000
    s_lshl_b32 s{sFl}, s{sT+11}, 7
    s_add_u32 s{sFl}, s{sFl}, {F_P2:#x}
    s_lshl_b32 s{sW10}, s{S_W}, 10
    s_lshl_b32 s{sXo}, s{sT+3}, 15
    s_add_u32 s{sXo}, s{sXo}, s{sW10}
    s_add_u32 s{sXo}, s{sXo}, {WS_XN:#x}
    s_mov_b32 s{sI}, 0
    s_mov_b32 s{sT+10}, s{sT+7}
    v_and_b32 v80, 15, v1              ; n
    v_lshrrev_b32 v81, 4, v1           ; g
    v_lshlrev_b32 v82, 2, v81
    v_xor_b32 v82, v80, v82
    v_lshlrev_b32 v82, 4, v82
    s_lshl_b32 s{sT}, s{S_W}, 2
    v_add_u32 v83, s{sT}, v81
    v_lshl_add_u32 v{vDm}, v83, 13, v82
    v_add_u32 v{vDm+1}, 0x20000, v{vDm}
    v_add_u32 v{vDm+2}, 0x40000, v{vDm}
    v_add_u32 v{vDm+3}, 0x60000, v{vDm}
    """)
    for p in range(8):
        A(f"s_lshl1_add_u32 s{sT}, s{sT+3}, {p}\ns_and_b32 s{sT}, s{sT}, 7\ns_lshl_b32 s{sR[p]}, s{sT}, 12" if not cfg.get('norot') else f"s_mov_b32 s{sR[p]}, {p*4096}")
    chunks = [(mh, t) for t in range(8) for mh in range(2)]

    def issue(ci):
        mh, t = chunks[ci]
        srd, so = (sDa, sOa) if mh == 0 else (sDb, sOb)
        A(f"s_lshl_b32 s{sT+8}, s{sR[t]}, 7\ns_add_u32 s{sT+8}, s{sT+8}, s{so}")
        for i in range(4):
            A(f"s_add_u32 m0, s{sW10}, {(2 + (ci & 7))*16384 + i*4096:#x}\ns_nop 0")
            A.vmem(f"buffer_load_dwordx4 v{vDm+i}, s[{srd}:{srd+3}], s{sT+8} offen lds", ("ch", ci))
    A.vm = []
    for ci in range(8):
        issue(ci)
    wstamp(A, cfg, 6)
    A(f"""
    v_lshrrev_b32 v87, 5, v1           ; hf
    v_lshrrev_b32 v82, 2, v80          ; r
    v_and_b32 v83, 3, v80              ; c
    v_lshl_add_u32 v84, v87, 3, v82
    v_lshlrev_b32 v84, 8, v84
    v_lshl_add_u32 v84, v82, 6, v84
    v_and_b32 v85, 1, v81
    v_lshl_add_u32 v84, v85, 5, v84
    v_lshl_add_u32 v84, v83, 3, v84
    s_and_b32 s{sT}, s{S_W}, 1
    s_lshl_b32 s{sT}, s{sT}, 7
    v_xor_b32 v{vT0}, s{sT}, v84
    v_xor_b32 v{vT0+1}, 64, v{vT0}
    v_and_b32 v88, 31, v1
    v_lshlrev_b32 v84, 10, v87
    v_lshl_add_u32 v84, v88, 4, v84
    s_cmp_eq_u32 s{sT+10}, 2
    s_cselect_b64 vcc, -1, 0
    s_movk_i32 s{sT+1}, 0x400
    s_cselect_b32 s{sT}, 512, s{sT+1}
    v_cndmask_b32 v112, v{vL16}, v84, vcc
    v_add_u32 v113, s{sT}, v112
    v_bfrev_b32 v{vSt}, 1
    v_bfrev_b32 v{vSt+1}, 1
    v_mov_b32 v{vXr}, v{vL16}
    """)
    A("v_mov_b32 v114, v112\nv_mov_b32 v115, v113")
    A("v_mov_b32 v116, v1")
    common.validate(A, 116)
    wstamp(A, cfg, 10)
    A(f"""
    s_lshr_b32 s{sT}, s{sXo}, 16
    s_and_b32 s{sT}, s{sT}, 1
    s_add_u32 s{sT}, s{sT}, {F_LN:#x}
    s_cmp_lg_u32 s{S_W}, 0
    s_cbranch_scc1 L_p2_t0x
    L_p2_t0:
    {GUARD}
    buffer_load_ubyte v112, v{vZero}, {WS}, s{sT} offen sc1
    s_waitcnt vmcnt(0)
    v_cmp_ne_u32 vcc, 1, v112
    s_cbranch_vccz L_p2_t0x
    s_sleep 4
    s_branch L_p2_t0
    L_p2_t0x:
    s_barrier
    """)
    wstamp(A, cfg, 7)
    A.vm = []
    for f in xn_dma(A, 0):
        f()
    A(f"s_add_u32 s{sXo}, s{sXo}, 0x20000")
    for ci in range(16):
        mh, t = chunks[ci]
        A.wv(("ch", ci))
        A("s_barrier")
        lab = A.uid("Lskw")
        A(f"s_cmp_{'ge' if mh == 0 else 'lt'}_u32 s{S_W}, 2\ns_cbranch_scc1 {lab}")
        sb = (2 + (ci & 7)) * 16384
        hi = sb & ~0xffff
        for ctl in range(2):
            A(f"v_add_u32 v86, {hi:#x}, v{vT0+ctl}")
            for kk in range(4):
                for hh in range(2):
                    A(f"ds_read_b64_tr_b16 {ar((ctl*32+4*t+kk)*4+2*hh,2)}, v86 offset:{sb-hi+kk*4096+hh*1024}")
        A("s_waitcnt lgkmcnt(0)")
        A.label(lab)
        if ci < 8:
            A("s_barrier")
            issue(ci + 8)
        if ci == 7:
            wstamp(A, cfg, 8)
    wstamp(A, cfg, 1)
    wait_ln(A, "L_p2_lnall")
    A.vm = []
    for f in xn_dma(A, 1):
        f()
    A(f"s_add_u32 s{sXo}, s{sXo}, 0x20000")
    A(f"buffer_load_dword v119, v{vZero}, {WS}, 0 offen")
    for f in xn_dma(A, 2):
        f()
    A(f"""
    s_add_u32 s{sXo}, s{sXo}, 0x20000
    v_mov_b32 v112, v114
    v_mov_b32 v113, v115
    v_bfrev_b32 v116, 1
    v_mov_b32 v117, -1
    v_mov_b32 v118, v{vSolo}
    s_xor_b32 s{sW10}, s{sW10}, 0x10000
    """)
    for u in range(3):
        A.ds(f"ds_read_b128 {vr(FB+4*u,4)}, v{vXr} offset:{u*1024}", ("x", u))
    wstamp(A, cfg, 2)
    wstamp(A, cfg, 12, cyc=True)
    A('s_mov_b32 s94, 0\ns_mov_b32 s95, 0')
    lg0 = list(A.lg)
    A(f"s_cmp_eq_u32 s{sT+10}, 2\ns_cbranch_scc1 L_p2v")
    tile_loop(A, cfg, False)
    A.lg = list(lg0)
    tile_loop(A, cfg, True)
    A.label("L_p2_idle")
    ln_rows(A, cfg)
    wstamp(A, cfg, 4)
    A.label("L_p2_done")
    wstamp(A, cfg, 3)
    wstamp(A, cfg, 13, cyc=True)
    if cfg.get('wdiag'):
        A(f"v_mov_b32 v124, s94\nv_mov_b32 v125, s95\nv_mov_b32 v126, 0\ns_lshl_b32 s98, s{S_ID}, 7\ns_lshl3_add_u32 s98, s{S_W}, s98\ns_add_u32 s98, s98, {0x110000+64:#x}\nbuffer_store_dwordx2 v[124:125], v126, {WS}, s98 offen")


def worker(A, cfg):
    if cfg.get('wdiag'):
        A(f"s_lshl_b32 s98, s{S_ID}, 7\ns_add_u32 s98, s98, 0x110000\nv_mov_b32 v124, s94\nv_mov_b32 v125, 0\nbuffer_store_dword v124, v125, {WS}, s98 offen")
    wstamp(A, cfg, 9)
    p2(A, cfg)
    if cfg.get('stop') == 2:
        A("s_waitcnt vmcnt(0)\ns_branch L_end")
        return
    import worker2
    worker2.p345(A, cfg)
```

```python
from common import *
import math
from worker import wstamp, wait_ln, vSolo, vZero, vOne, vL16, WS

sT = 76
vLane = 1


def emit(A, f):
    f() if callable(f) else A(f)


def poll_all(A, uid, vaddr, soff, want, nlanes_mask_lo=None):
    A(f"""
    s_cmp_lg_u32 s{S_W}, 0
    s_cbranch_scc1 {uid}_x
    {uid}:
    {GUARD}
    buffer_load_dword v112, v{vaddr}, {WS}, s{soff} offen sc1
    s_waitcnt vmcnt(0)
    v_cmp_ne_u32 vcc, {want}, v112
    s_cbranch_vccz {uid}_x
    s_sleep 8
    s_branch {uid}
    {uid}_x:
    s_barrier
    """)


def lane_parts(A, t):
    A(f"""
    v_and_b32 v{t}, 15, v{vLane}
    v_lshrrev_b32 v{t+1}, 4, v{vLane}
    v_lshrrev_b32 v{t+2}, 2, v{t}
    v_and_b32 v{t+3}, 3, v{t}
    v_lshrrev_b32 v{t+4}, 5, v{vLane}
    v_and_b32 v{t+5}, 31, v{vLane}
    """)


def rnd_bf16(A, regs, tmp):
    for i in range(0, len(regs), 2):
        a, b = regs[i], regs[i + 1]
        A(f"v_cvt_pk_bf16_f32 v{tmp}, v{a}, v{b}\nv_lshlrev_b32 v{a}, 16, v{tmp}\nv_and_b32 v{b}, 0xffff0000, v{tmp}")


def p3(A, cfg):
    A.c("===== worker P3: U = gelu(h^T w1 + b1), 64x64 tile, K split over the waves =====")
    vH, vW, vTr = 4, 5, 6
    FB, ACC = 16, 48
    sHo, sWo, sM = 60, 61, 62
    wait_ln(A, "L_p3_h", off=128)
    lane_parts(A, 120)
    A(f"""
    v_lshrrev_b32 v112, 3, v{vLane}
    v_and_b32 v113, 7, v{vLane}
    v_and_b32 v114, 2, v112
    v_lshlrev_b32 v114, 1, v114
    v_xor_b32 v113, v113, v114
    v_lshlrev_b32 v113, 4, v113
    v_lshl_add_u32 v{vH}, v112, 10, v113
    v_mul_u32_u24 v{vW}, 3584, v112
    v_add_u32 v{vW}, v{vW}, v113
    v_lshl_add_u32 v112, v124, 3, v122
    v_lshlrev_b32 v112, 7, v112
    v_and_b32 v113, 2, v122
    v_lshl_add_u32 v112, v113, 5, v112
    v_and_b32 v113, 1, v121
    v_lshl_add_u32 v112, v113, 5, v112
    v_lshl_add_u32 v112, v123, 3, v112
    s_lshl_b32 s{sM}, s{S_W}, 15
    v_add_u32 v{vTr}, s{sM}, v112
    v_xor_b32 v{vTr+1}, 64, v{vTr}
    s_and_b32 s{sT}, s{S_ID}, 7                ; dt
    s_lshr_b32 s{sT+1}, s{S_ID}, 3             ; ft
    s_lshl_b32 s{sHo}, s{S_W}, 19
    s_lshl_b32 s{sT+2}, s{sT}, 7
    s_add_u32 s{sHo}, s{sHo}, s{sT+2}
    s_add_u32 s{sHo}, s{sHo}, {WS_H:#x}
    s_mul_i32 s{sWo}, s{S_W}, {512*3584}
    s_lshl_b32 s{sT+2}, s{sT+1}, 7
    s_add_u32 s{sWo}, s{sWo}, s{sT+2}
    """)

    def dma(c):
        out = []
        for part in range(2):
            for i in range(4):
                def f(part=part, i=i):
                    A(f"s_add_u32 m0, s{sM}, {(c&3)*8192 + part*4096 + i*1024:#x}")
                    if part == 0:
                        A(f"s_add_u32 s{sT+8}, s{sHo}, {(32*c+8*i)*1024:#x}")
                        A.vmem(f"buffer_load_dwordx4 v{vH}, {WS}, s{sT+8} offen lds", ("c", c))
                    else:
                        A(f"s_add_u32 s{sT+8}, s{sWo}, {(32*c+8*i)*3584:#x}")
                        A.vmem(f"buffer_load_dwordx4 v{vW}, s[{S_W1}:{S_W1+3}], s{sT+8} offen lds", ("c", c))
                out.append(f)
        return out

    def reads(n):
        c, kk = n // 2, n & 1
        out = []
        for part in (1, 0):
            for tl in range(2):
                for hh in range(2):
                    d = FB + 16 * (n & 1) + 8 * part + 4 * tl + 2 * hh
                    off = (c & 3) * 8192 + part * 4096 + kk * 2048 + hh * 512
                    out.append(lambda d=d, tl=tl, off=off: A.ds(f"ds_read_b64_tr_b16 {vr(d,2)}, v{vTr+tl} offset:{off}", ("f", n)))
        return out
    A.vm, A.lg = [], []
    for c in range(4):
        for f in dma(c):
            f()
    A(f"""
    s_lshr_b32 s{sT+3}, s{S_W}, 1              ; tf
    s_lshl_b32 s{sT+4}, s{sT+1}, 7
    s_lshl_b32 s{sT+5}, s{sT+3}, 6
    s_add_u32 s{sT+4}, s{sT+4}, s{sT+5}
    v_lshlrev_b32 v112, 3, v124
    """)
    for rho in range(4):
        A.vmem(f"buffer_load_dwordx2 {vr(128+2*rho,2)}, v112, s[{S_B1}:{S_B1+3}], s{sT+4} offen offset:{rho*16}", "b1")
    A.wv(("c", 0))
    for f in reads(0):
        f()
    for n in range(32):
        c, kk = n // 2, n & 1
        rd, dm = [], []
        if n + 1 < 32:
            if kk == 1:
                A.wv(("c", c + 1))
            rd = reads(n + 1)
        A.wl(("f", n))
        if kk == 0 and c >= 1 and c + 3 < 16:
            dm = dma(c + 3)
        b = FB + 16 * (n & 1)
        for tf in range(2):
            for td in range(2):
                acc = ACC + 16 * (2 * tf + td)
                A(f"v_mfma_f32_32x32x16_bf16 {vr(acc,16)}, {vr(b+8+4*tf,4)}, {vr(b+4*td,4)}, {'0' if n == 0 else vr(acc,16)}")
                for _ in range(2):
                    if rd:
                        rd.pop(0)()
                for _ in range(2):
                    if dm:
                        dm.pop(0)()
    A.nop(12)
    A(f"v_add_u32 v112, s{sM}, v{vL16}")
    for tl in range(4):
        for q in range(4):
            A(f"ds_write_b128 v112, {vr(ACC+16*tl+4*q,4)} offset:{tl*4096+q*1024}")
    A(f"""
    s_lshl_b32 s{sT+5}, s{S_W}, 12
    v_add_u32 v112, s{sT+5}, v{vL16}
    v_add_u32 v113, 0x10000, v112
    s_waitcnt lgkmcnt(0)
    s_barrier
    """)
    for wv in range(4):
        for q in range(4):
            A(f"ds_read_b128 {vr(ACC+16*wv+4*q,4)}, v{112 + wv//2} offset:{(wv&1)*32768+q*1024}")
    A("s_waitcnt vmcnt(0) lgkmcnt(0)")
    X = ACC
    for r in range(16):
        A(f"v_add_f32 v{X+r}, v{X+r}, v{X+16+r}\nv_add_f32 v{X+32+r}, v{X+32+r}, v{X+48+r}")
    for r in range(16):
        A(f"v_add_f32 v{X+r}, v{X+r}, v{X+32+r}")
    rnd_bf16(A, [X + r for r in range(16)], 112)
    for r in range(16):
        src = 128 + r // 2
        A(f"v_lshlrev_b32 v112, 16, v{src}" if r % 2 == 0 else f"v_and_b32 v112, 0xffff0000, v{src}")
        A(f"v_add_f32 v{X+r}, v{X+r}, v112")
    rnd_bf16(A, [X + r for r in range(16)], 112)
    k2 = -2.0 * math.sqrt(2.0 / math.pi) * math.log2(math.e)
    A(f"s_mov_b32 s{sT+6}, {f32bits(k2):#x}\ns_mov_b32 s{sT+7}, {f32bits(k2*0.044715):#x}\nv_mov_b32 v113, s{sT+6}")
    for r in range(16):
        t = X + 16 + r
        A(f"v_mul_f32 v{t}, v{X+r}, v{X+r}\nv_fma_f32 v{t}, v{t}, s{sT+7}, v113\nv_mul_f32 v{t}, v{t}, v{X+r}")
    for r in range(16):
        A(f"v_exp_f32 v{X+16+r}, v{X+16+r}")
    for r in range(16):
        A(f"v_add_f32 v{X+16+r}, 1.0, v{X+16+r}")
    for r in range(16):
        A(f"v_rcp_f32 v{X+16+r}, v{X+16+r}")
    for r in range(16):
        A(f"v_mul_f32 v{X+r}, v{X+r}, v{X+16+r}")
    for i in range(8):
        A(f"v_cvt_pk_bf16_f32 v{X+32+i}, v{X+2*i}, v{X+2*i+1}")
    A(f"""
    s_lshl1_add_u32 s{sT+4}, s{sT+1}, s{sT+3}
    s_lshl_b32 s{sT+4}, s{sT+4}, 15
    s_and_b32 s{sT+5}, s{S_W}, 1
    s_lshl1_add_u32 s{sT+5}, s{sT}, s{sT+5}
    s_lshl_b32 s{sT+5}, s{sT+5}, 10
    s_add_u32 s{sT+4}, s{sT+4}, s{sT+5}
    s_add_u32 s{sT+4}, s{sT+4}, {WS_U:#x}
    s_add_u32 s{sT+5}, s{sT+4}, 0x4000
    buffer_store_dwordx4 {vr(X+32,4)}, v{vL16}, {WS}, s{sT+4} offen sc1
    buffer_store_dwordx4 {vr(X+36,4)}, v{vL16}, {WS}, s{sT+5} offen sc1
    s_lshl_b32 s{sT+4}, s{S_ID}, 2
    s_add_u32 s{sT+4}, s{sT+4}, {F_U:#x}
    s_waitcnt vmcnt(0)
    s_barrier
    buffer_store_dword v{vOne}, v{vSolo}, {WS}, s{sT+4} offen sc1
    """)
    A.vm, A.lg = [], []


def tr256_addr(A, dst, rowsh, base_s, t=120):
    A(f"""
    v_lshl_add_u32 v112, v{t+4}, {rowsh}, v{t+2}
    v_lshlrev_b32 v112, 8, v112
    v_lshl_add_u32 v112, v{t+2}, 6, v112
    v_and_b32 v113, 1, v{t+1}
    v_lshl_add_u32 v112, v113, 5, v112
    v_lshl_add_u32 v112, v{t+3}, 3, v112
    v_add_u32 v{dst}, s{base_s}, v112
    v_xor_b32 v{dst+1}, 64, v{dst}
    v_xor_b32 v{dst+2}, 128, v{dst}
    v_xor_b32 v{dst+3}, 192, v{dst}
    """)


def dma256_addr(A, dst, rowshift, t=120):
    A(f"""
    v_lshlrev_b32 v112, 2, v{t+1}
    v_xor_b32 v112, v{t}, v112
    v_lshlrev_b32 v112, 4, v112
    v_lshl_add_u32 v{dst}, v{t+1}, {rowshift}, v112
    """)


def p4(A, cfg):
    A.c("===== worker P4: base = x + (U w2 + b2)^T, 128x64 tile, K split over the waves =====")
    vW, vTr = 4, 12
    FB, UF, ACC = 16, 48, 128
    sG, sWo, sUo, sM = 60, 61, 62, 63
    A(f"""
    s_lshl_b32 s{sT}, s{S_ID}, 2
    s_mul_i32 s{sG}, s{sT}, 9363
    s_lshr_b32 s{sG}, s{sG}, 16                ; g = 4*rank/7
    s_mul_i32 s{sT+1}, s{sG}, 7
    s_sub_u32 s{sT}, s{sT}, s{sT+1}
    s_cmp_ge_u32 s{sT}, 4
    s_cbranch_scc1 L_p4_done
    s_lshr_b32 s{sT+10}, s{sG}, 3              ; sb
    s_and_b32 s{sT+11}, s{sG}, 7               ; db
    s_lshl_b32 s{sM}, s{S_W}, 15
    s_mul_i32 s{sWo}, s{S_W}, {448*4096}
    s_lshl_b32 s{sT}, s{sT+10}, 8
    s_add_u32 s{sWo}, s{sWo}, s{sT}
    s_mul_i32 s{sUo}, s{S_W}, {28*16384}
    s_lshl_b32 s{sT}, s{sT+11}, 11
    s_add_u32 s{sUo}, s{sUo}, s{sT}
    s_add_u32 s{sUo}, s{sUo}, {WS_U:#x}
    """)
    dma256_addr(A, vW, 12)
    tr256_addr(A, vTr, 2, sM)

    def dma(c):
        out = []
        for i in range(8):
            def f(i=i):
                A(f"s_add_u32 m0, s{sM}, {(c&3)*8192 + i*1024:#x}")
                A(f"s_add_u32 s{sT+8}, s{sWo}, {(32*c+4*i)*4096:#x}")
                A.vmem(f"buffer_load_dwordx4 v{vW}, s[{S_W2}:{S_W2+3}], s{sT+8} offen lds", ("c", c))
            out.append(f)
        return out

    def uload(c):
        out = []
        for kk in range(2):
            n = 2 * c + kk
            def f(n=n):
                A(f"s_add_u32 s{sT+8}, s{sUo}, {n*16384:#x}")
                for td in range(2):
                    A.vmem(f"buffer_load_dwordx4 {vr(UF+8*(n&7)+4*td,4)}, v{vL16}, {WS}, s{sT+8} offen offset:{td*1024}", ("c", c))
            out.append(f)
        return out

    def reads(n):
        c, kk = n // 2, n & 1
        out = []
        for ts in range(4):
            for hh in range(2):
                d = FB + 16 * (n & 1) + 4 * ts + 2 * hh
                off = (c & 3) * 8192 + kk * 4096 + hh * 2048
                out.append(lambda d=d, ts=ts, off=off: A.ds(f"ds_read_b64_tr_b16 {vr(d,2)}, v{vTr+ts} offset:{off}", ("f", n)))
        return out
    A.vm, A.lg = [], []
    for c in range(4):
        for f in dma(c):
            f()
    A(f"""
    v_min_u32 v113, 27, v{vLane}
    v_lshlrev_b32 v113, 5, v113
    s_lshl_b32 s{sT}, s{sT+11}, 2
    s_add_u32 s{sT}, s{sT}, {F_U:#x}
    """)
    poll_all(A, "L_p4_u", 113, sT, 1)
    A.vm = [("c", c) for c in range(4) for _ in range(8)]
    for c in range(4):
        for f in uload(c):
            f()
    A(f"""
    s_lshl_b32 s{sT}, s{sT+10}, 2
    s_add_u32 s{sT+9}, s{sT}, s{S_W}           ; stile
    s_lshl_b32 s{sT}, s{sT+9}, 15
    s_lshl_b32 s{sT+1}, s{sT+11}, 7
    s_add_u32 s{sT}, s{sT}, s{sT+1}
    v_lshlrev_b32 v112, 10, v125
    v_lshl_add_u32 v112, v124, 3, v112
    s_lshl_b32 s{sT+1}, s{sT+9}, 6
    v_lshlrev_b32 v113, 1, v125
    """)
    for td in range(2):
        for rho in range(4):
            A.vmem(f"buffer_load_dwordx2 {ar(8*td+2*rho,2)}, v112, s[{S_X}:{S_X+3}], s{sT} offen offset:{td*64+rho*16}", "x")
    A.vmem(f"buffer_load_ushort v5, v113, s[{S_B2}:{S_B2+3}], s{sT+1} offen", "x")
    A.wv(("c", 0))
    for f in reads(0):
        f()
    for n in range(28):
        c, kk = n // 2, n & 1
        rd, dm = [], []
        if n + 1 < 28:
            if kk == 1:
                A.wv(("c", c + 1))
            rd = reads(n + 1)
        A.wl(("f", n))
        if kk == 0 and c >= 1 and c + 3 < 14:
            dm = dma(c + 3) + uload(c + 3)
        b = FB + 16 * (n & 1)
        for ts in range(4):
            for td in range(2):
                acc = ACC + 16 * (2 * ts + td)
                A(f"v_mfma_f32_32x32x16_bf16 {vr(acc,16)}, {vr(UF+8*(n&7)+4*td,4)}, {vr(b+4*ts,4)}, {'0' if n == 0 else vr(acc,16)}")
                if rd:
                    rd.pop(0)()
                if dm and not (ts == 0 and td == 0):
                    dm.pop(0)()
                    if len(dm) > 6 - 2 * ts - td:
                        dm.pop(0)()
    A.nop(12)
    A(f"v_add_u32 v112, s{sM}, v{vL16}")
    for tl in range(8):
        for q in range(4):
            A(f"ds_write_b128 v112, {vr(ACC+16*tl+4*q,4)} offset:{tl*4096+q*1024}")
    A(f"""
    s_lshl_b32 s{sT+5}, s{S_W}, 13
    v_add_u32 v112, s{sT+5}, v{vL16}
    v_add_u32 v113, 0x10000, v112
    s_waitcnt lgkmcnt(0)
    s_barrier
    """)
    for wv in range(4):
        for q in range(8):
            A(f"ds_read_b128 {vr(ACC+32*wv+4*q,4)}, v{112 + wv//2} offset:{(wv&1)*32768+q*1024}")
    A("s_waitcnt vmcnt(0) lgkmcnt(0)")
    X = ACC
    for r in range(32):
        A(f"v_add_f32 v{X+r}, v{X+r}, v{X+32+r}\nv_add_f32 v{X+64+r}, v{X+64+r}, v{X+96+r}")
    for r in range(32):
        A(f"v_add_f32 v{X+r}, v{X+r}, v{X+64+r}")
    rnd_bf16(A, [X + r for r in range(32)], 112)
    A("v_lshlrev_b32 v5, 16, v5")
    for r in range(32):
        A(f"v_add_f32 v{X+r}, v{X+r}, v5")
    rnd_bf16(A, [X + r for r in range(32)], 112)
    for i in range(16):
        A(f"""
        v_accvgpr_read_b32 v112, a{i}
        v_lshlrev_b32 v113, 16, v112
        v_and_b32 v112, 0xffff0000, v112
        v_add_f32 v{X+2*i}, v{X+2*i}, v113
        v_add_f32 v{X+2*i+1}, v{X+2*i+1}, v112
        """)
    A(f"""
    s_lshl_b32 s{sT}, s{sT+9}, 16
    s_lshl_b32 s{sT+1}, s{sT+11}, 13
    s_add_u32 s{sT}, s{sT}, s{sT+1}
    s_add_u32 s{sT}, s{sT}, {WS_BASE:#x}
    s_add_u32 s{sT+1}, s{sT}, 0x1000
    """)
    for td in range(2):
        for rho in range(4):
            A(f"buffer_store_dwordx4 {vr(X+16*td+4*rho,4)}, v{vL16}, {WS}, s{sT+td} offen offset:{rho*1024} sc1")
    A(f"""
    s_lshl_b32 s{sT+4}, s{sG}, 2
    s_add_u32 s{sT+4}, s{sT+4}, {F_BASE:#x}
    s_waitcnt vmcnt(0)
    s_barrier
    buffer_store_dword v{vOne}, v{vSolo}, {WS}, s{sT+4} offen sc1
    L_p4_done:
    """)
    A.vm, A.lg = [], []


def p5(A, cfg):
    A.c("===== worker P5: attention of the segment tokens, output projection, head reduction =====")
    sH, sSeg, sM, sPrev, sQo, sMo, sPo, sBuf, sProg, sW10 = 60, 61, 62, 63, 64, 65, 66, 67, 68, 69
    sMask = 12
    vRd, vKm, vVx, vVm, vPs, vRl, vBs, vOut = 4, 5, 6, 7, 10, 12, 13, 14
    vSel = 16
    QF, KF, S, SM, P, PM, VF, O, OA, ACC = 20, 52, 84, 100, 116, 124, 128, 144, 208, 144
    NEG = f32bits(-1e9 / (128 ** -0.5))
    A(f"""
    s_mul_i32 s{sH}, s{S_ID}, 9363
    s_lshr_b32 s{sH}, s{sH}, 16                ; head
    s_mul_i32 s{sT}, s{sH}, 7
    s_sub_u32 s{sSeg}, s{S_ID}, s{sT}
    s_lshl_b32 s{sM}, s{S_W}, 15
    s_lshl_b32 s{sW10}, s{S_W}, 10
    s_lshl_b32 s{sProg}, s{sH}, 7
    s_add_u32 s{sProg}, s{sProg}, {F_PROG:#x}
    s_barrier
    """)
    dma256_addr(A, 4, 10)
    tr256_addr(A, 12, 2, sM)
    A(f"s_lshl_b32 s{sT}, s{sH}, 17\ns_lshl_b32 s{sT+1}, s{S_W}, 8\ns_add_u32 s{sT}, s{sT}, s{sT+1}")
    for i in range(32):
        A(f"s_add_u32 m0, s{sM}, {i*1024:#x}\ns_add_u32 s{sT+8}, s{sT}, {i*4096:#x}")
        A(f"buffer_load_dwordx4 v4, s[{S_WO}:{S_WO+3}], s{sT+8} offen lds")
    A(f"""
    v_and_b32 v113, 3, v{vLane}
    v_lshlrev_b32 v113, 7, v113
    s_lshr_b32 s{sT+1}, s{sH}, 1
    s_add_u32 s{sT+1}, s{sT+1}, 32
    s_sub_u32 s{sT+1}, s{sT+1}, s{sH}
    s_lshl_b32 s{sT+1}, s{sT+1}, 9
    v_and_b32 v114, 4, v{vLane}
    v_cmp_ne_u32 vcc, 0, v114
    v_mov_b32 v114, s{sT+1}
    s_nop 0
    v_cndmask_b32 v114, 0, v114, vcc
    v_add_u32 v113, v113, v114
    s_lshl_b32 s{sT+1}, s{sH}, 9
    s_add_u32 s{sT+1}, s{sT+1}, {F_P2:#x}
    """)
    poll_all(A, "L_p5_p2", 113, sT + 1, 16)
    A("s_waitcnt vmcnt(0)")
    for dt in range(4):
        for kap in range(8):
            for hh in range(2):
                A(f"ds_read_b64_tr_b16 {ar((dt*8+kap)*4+2*hh,2)}, v{12+dt} offset:{kap*4096+hh*2048}")
        A("s_waitcnt lgkmcnt(0)")
    n_, g_, r_, c_, hf_, el_ = 120, 121, 122, 123, 124, 125
    A(f"""
    s_barrier
    v_mov_b32 v{vRd}, v{vL16}
    v_and_b32 v112, 1, v{vLane}
    v_lshlrev_b32 v112, 8, v112
    v_bfe_u32 v113, v{vLane}, 1, 2
    v_lshl_add_u32 v112, v113, 6, v112
    v_lshl_add_u32 v112, v{hf_}, 4, v112
    v_add_u32 v{vKm}, 24576, v112
    v_lshlrev_b32 v112, 10, v{hf_}
    v_lshl_add_u32 v112, v{el_}, 4, v112
    v_add_u32 v{vVx}, 16384, v112
    v_and_b32 v112, 1, v{g_}
    v_lshlrev_b32 v112, 8, v112
    v_lshl_add_u32 v112, v{hf_}, 7, v112
    v_lshl_add_u32 v112, v{n_}, 2, v112
    v_add_u32 v{vVm}, {24576+2048}, v112
    v_lshlrev_b32 v112, 18, v{hf_}
    v_lshl_add_u32 v{vPs}, v{el_}, 4, v112
    v_lshlrev_b32 v112, 10, v{g_}
    v_lshl_add_u32 v112, v{n_}, 4, v112
    s_lshl_b32 s{sT}, s{S_W}, 8
    v_add_u32 v{vRl}, s{sT}, v112
    s_lshr_b32 s{sT}, s{sH}, 4
    s_lshl_b32 s{sT}, s{sT}, 4
    s_lshr_b32 s{sT+1}, s{sH}, 1
    s_and_b32 s{sT+1}, s{sT+1}, 4
    s_add_u32 s{sT}, s{sT}, s{sT+1}
    v_and_b32 v112, 1, v{r_}
    v_lshl_add_u32 v112, v112, 3, v{c_}
    v_add_u32 v112, s{sT}, v112                ; token
    s_and_b32 s{sT+2}, s{sH}, 7                ; q
    s_lshr_b32 s{sT}, s{S_W}, 1
    s_lshl1_add_u32 s{sT}, s{sT+2}, s{sT}
    s_lshl_b32 s{sT}, s{sT}, 12
    s_and_b32 s{sT+1}, s{S_W}, 1
    s_lshl_b32 s{sT+1}, s{sT+1}, 11
    s_add_u32 s{sT}, s{sT}, s{sT+1}
    v_lshlrev_b32 v113, 9, v{g_}
    v_lshl_add_u32 v113, v112, 4, v113
    v_add_u32 v{vBs}, s{sT}, v113
    s_lshl_b32 s{sT}, s{sT+2}, 7
    s_lshl_b32 s{sT+1}, s{S_W}, 5
    s_add_u32 s{sT}, s{sT}, s{sT+1}
    v_lshlrev_b32 v113, 10, v112
    v_lshl_add_u32 v113, v{g_}, 3, v113
    v_add_u32 v113, s{sT}, v113
    v_bfrev_b32 v114, 1
    v_cmp_lt_u32 vcc, 7, v{n_}
    s_nop 1
    v_cndmask_b32 v{vOut}, v113, v114, vcc
    v_and_b32 v112, 7, v{n_}
    v_lshrrev_b32 v113, 1, v112
    v_and_b32 v112, 1, v112
    v_mov_b32 v114, 0x3f80
    v_mov_b32 v115, 0x3f800000
    v_cmp_eq_u32 vcc, 1, v112
    s_nop 1
    v_cndmask_b32 v114, v114, v115, vcc
    """)
    for d in range(4):
        A(f"v_cmp_eq_u32 vcc, {d}, v113\ns_nop 1\nv_cndmask_b32 v{vSel+d}, 0, v114, vcc")
    A(f"v_lshlrev_b32 v112, 2, v{hf_}\nv_sub_u32 v112, v{el_}, v112")
    for r in range(16):
        A(f"v_cmp_le_i32 s[{sMask+2*r}:{sMask+2*r+1}], {8*(r>>2)+(r&3)}, v112")
    A(f"""
    v_mov_b32 v{PM+2}, 0
    v_mov_b32 v{PM+3}, 0
    s_mov_b32 s{sPrev}, -1
    s_mov_b32 s{sBuf}, 0
    s_lshl_b32 s{sT}, s{sSeg}, 18
    s_lshl_b32 s{sT+1}, s{sH}, 13
    s_add_u32 s{sQo}, s{sT}, s{sT+1}
    s_add_u32 s{sQo}, s{sQo}, s{sW10}
    """)

    def qkv_dma(buf_s, src_s):
        for k, img in enumerate((WS_QX, WS_KX, WS_VX)):
            for i in range(2):
                A(f"s_add_u32 m0, s{buf_s}, {k*8192 + i*4096:#x}\ns_add_u32 s{sT+8}, s{src_s}, {img + i*4096:#x}")
                A(f"buffer_load_dwordx4 v{vL16}, {WS}, s{sT+8} offen lds")
    qkv_dma(sW10, sQo)

    def reduce_prev(uid):
        A(f"""
        s_lshl_b32 s{sT}, s{sPrev}, 7
        s_add_u32 s{sT}, s{sT}, {F_PART:#x}
        s_lshr_b32 s{sT+1}, s{sPrev}, 2
        s_lshl_b32 s{sT+1}, s{sT+1}, 3
        s_and_b32 s{sT+2}, s{sH}, 7
        s_add_u32 s{sT+1}, s{sT+1}, s{sT+2}
        s_lshl_b32 s{sT+1}, s{sT+1}, 2
        s_add_u32 s{sT+1}, s{sT+1}, {F_BASE:#x}
        v_lshrrev_b32 v113, 2, v{vL16}
        v_add_u32 v113, s{sT}, v113
        v_mov_b32 v114, s{sT+1}
        v_cmp_lt_u32 vcc, 31*16, v{vL16}
        s_mov_b32 s{sT+2}, 0
        s_nop 0
        v_cndmask_b32 v113, v113, v114, vcc
        """)
        poll_all(A, uid, 113, sT + 2, 1)
        A(f"""
        s_lshl_b32 s{sT}, s{sPrev}, 20
        s_lshl_b32 s{sT+1}, s{sH}, 15
        s_add_u32 s{sT}, s{sT}, s{sT+1}
        s_add_u32 s{sT}, s{sT}, {WS_PART:#x}
        """)
        for u in range(8):
            A(f"buffer_load_dwordx4 {vr(QF+4*u,4)}, v{vRl}, {WS}, s{sT} offen sc1\ns_add_u32 s{sT}, s{sT}, 0x1000")
        A(f"""
        s_lshl_b32 s{sT}, s{sPrev}, 16
        s_add_u32 s{sT}, s{sT}, {WS_BASE:#x}
        buffer_load_dwordx4 {vr(KF,4)}, v{vBs}, {WS}, s{sT} offen sc1
        s_lshl_b32 s{sT}, s{sPrev}, 15
        """)
        for u in range(8):
            A(f"s_waitcnt vmcnt({8-u})")
            A(f"v_mfma_f32_16x16x32_bf16 {vr(KF+4,4)}, {vr(QF+4*u,4)}, {vr(vSel,4)}, {'0' if u == 0 else vr(KF+4,4)}")
        A("s_waitcnt vmcnt(0)\ns_nop 7")
        for r in range(4):
            A(f"v_add_f32 v{KF+r}, v{KF+r}, v{KF+4+r}")
        A(f"""
        v_cvt_pk_bf16_f32 v{KF}, v{KF}, v{KF+1}
        v_cvt_pk_bf16_f32 v{KF+1}, v{KF+2}, v{KF+3}
        buffer_store_dwordx2 {vr(KF,2)}, v{vOut}, s[{S_OUT}:{S_OUT+3}], s{sT} offen
        """)

    A(f"""
    L_p5_loop:
    s_waitcnt vmcnt(0)
    s_barrier
    """)
    for k in range(8):
        A(f"ds_read_b128 {vr(QF+4*k,4)}, v{vRd} offset:{k*1024}")
        A(f"ds_read_b128 {vr(KF+4*k,4)}, v{vRd} offset:{8192+k*1024}")
    for k in range(8):
        A(f"s_waitcnt lgkmcnt({min(15, 14-2*k)})")
        A(f"v_mfma_f32_32x32x16_bf16 {vr(S,16)}, {vr(KF+4*k,4)}, {vr(QF+4*k,4)}, {'0' if k == 0 else vr(S,16)}")
    A(f"""
    s_cmp_lg_u32 s{S_W}, 0
    s_cbranch_scc1 L_p5_pgx
    L_p5_pg:
    {GUARD}
    buffer_load_dword v112, v{vZero}, {WS}, s{sProg} offen sc1
    s_waitcnt vmcnt(0)
    v_cmp_ge_u32 vcc, s{sSeg}, v112
    s_cbranch_vccz L_p5_pgx
    s_sleep 2
    s_branch L_p5_pg
    L_p5_pgx:
    s_barrier
    s_add_u32 s{sT}, s{sBuf}, s{sW10}
    s_add_u32 m0, s{sT}, 24576
    s_add_u32 s{sT+8}, s{sQo}, {WS_KVM:#x}
    buffer_load_dwordx4 v{vL16}, {WS}, s{sT+8} offen sc1 lds
    v_mov_b32 v243, {NEG:#x}
    s_nop 3
    """)
    for r in range(16):
        A(f"v_cndmask_b32 v{S+r}, v243, v{S+r}, s[{sMask+2*r}:{sMask+2*r+1}]")
    m_, t_ = 240, 241
    A(f"v_max3_f32 v{m_}, v{S}, v{S+1}, v{S+2}")
    for r in range(3, 15, 2):
        A(f"v_max3_f32 v{m_}, v{m_}, v{S+r}, v{S+r+1}")
    A(f"v_max_f32 v{m_}, v{m_}, v{S+15}")
    A("s_waitcnt vmcnt(0)\ns_barrier")
    for k in range(8):
        A(f"ds_read_b128 {vr(KF+4*k,4)}, v{vKm} offset:{(k>>1)*512+(k&1)*32}")
    A(f"""
    s_xor_b32 s{sBuf}, s{sBuf}, 0x8000
    s_add_u32 s{sT}, s{sBuf}, s{sW10}
    s_add_u32 s{sT+1}, s{sQo}, {7 << 18:#x}
    """)
    qkv_dma(sT, sT + 1)
    for k in range(8):
        A(f"s_waitcnt lgkmcnt({7-k})")
        A(f"v_mfma_f32_32x32x16_bf16 {vr(SM,16)}, {vr(KF+4*k,4)}, {vr(QF+4*k,4)}, {'0' if k == 0 else vr(SM,16)}")
    VX, VM = QF, KF
    for et in range(4):
        for v in range(2):
            A(f"ds_read_b128 {vr(VX+8*et+4*v,4)}, v{vVx} offset:{et*2048+v*512}")
    for et in range(4):
        A(f"ds_read2_b32 {vr(VM+4*et,2)}, v{vVm} offset0:{et*128} offset1:{et*128+16}" if et < 2 else
          f"ds_read2_b32 {vr(VM+4*et,2)}, v242 offset0:{(et-2)*128} offset1:{(et-2)*128+16}")
        if et == 0:
            A(f"v_add_u32 v242, 1024, v{vVm}")
    A(f"""
    s_mov_b32 s{sT}, {f32bits(SM_C):#x}
    s_nop 3
    v_max3_f32 v{m_}, v{m_}, v{SM}, v{SM+1}
    v_max3_f32 v{m_}, v{m_}, v{SM+2}, v{SM+3}
    v_mov_b32 v{t_}, v{m_}
    s_nop 1
    v_permlane32_swap_b32 v{m_}, v{t_}
    v_max_f32 v{m_}, v{m_}, v{t_}
    v_mul_f32 v{m_}, s{sT}, v{m_}
    """)
    vals = [S + r for r in range(16)] + [SM + r for r in range(4)]
    for v in vals:
        A(f"v_fma_f32 v{v}, v{v}, s{sT}, -v{m_}")
    for v in vals:
        A(f"v_exp_f32 v{v}, v{v}")
    A(f"v_add_f32 v{m_}, v{vals[0]}, v{vals[1]}\nv_add_f32 v{t_}, v{vals[2]}, v{vals[3]}")
    for i in range(4, 20, 2):
        A(f"v_add_f32 v{m_}, v{m_}, v{vals[i]}\nv_add_f32 v{t_}, v{t_}, v{vals[i+1]}")
    A(f"""
    v_add_f32 v{m_}, v{m_}, v{t_}
    v_mov_b32 v{t_}, v{m_}
    s_nop 1
    v_permlane32_swap_b32 v{m_}, v{t_}
    v_add_f32 v{m_}, v{m_}, v{t_}
    v_rcp_f32 v{m_}, v{m_}
    s_nop 0
    """)
    for v in vals:
        A(f"v_mul_f32 v{v}, v{v}, v{m_}")
    for i in range(8):
        A(f"v_cvt_pk_bf16_f32 v{P+i}, v{S+2*i}, v{S+2*i+1}")
    A(f"v_cvt_pk_bf16_f32 v{PM}, v{SM}, v{SM+1}\nv_cvt_pk_bf16_f32 v{PM+1}, v{SM+2}, v{SM+3}")
    A("s_waitcnt lgkmcnt(0)")
    for et in range(4):
        A(f"v_mov_b32 v{VM+4*et+2}, 0\nv_mov_b32 v{VM+4*et+3}, 0")
    A("s_nop 1")
    for et in range(4):
        o = O + 16 * et
        A(f"v_mfma_f32_32x32x16_bf16 {vr(o,16)}, {vr(VX+8*et,4)}, {vr(P,4)}, 0")
        A(f"v_mfma_f32_32x32x16_bf16 {vr(o,16)}, {vr(VX+8*et+4,4)}, {vr(P+4,4)}, {vr(o,16)}")
        A(f"v_mfma_f32_32x32x16_bf16 {vr(o,16)}, {vr(VM+4*et,4)}, {vr(PM,4)}, {vr(o,16)}")
        if et >= 1:
            for i in range(8):
                A(f"v_cvt_pk_bf16_f32 v{OA+8*(et-1)+i}, v{o-16+2*i}, v{o-16+2*i+1}")
    A.nop(4)
    for i in range(8):
        A(f"v_cvt_pk_bf16_f32 v{OA+24+i}, v{O+48+2*i}, v{O+48+2*i+1}")
    A(f"""
    s_lshl_b32 s{sPo}, s{sSeg}, 20
    s_lshl_b32 s{sT}, s{sH}, 10
    s_add_u32 s{sPo}, s{sPo}, s{sT}
    s_lshl_b32 s{sT}, s{S_W}, 16
    s_add_u32 s{sPo}, s{sPo}, s{sT}
    s_add_u32 s{sPo}, s{sPo}, {WS_PART:#x}
    """)
    SGp = S
    def tail(dt):
        ins = []
        for a in range(2):
            for i in range(4):
                ins.append(f"v_cvt_pk_bf16_f32 v{SGp+8*(dt&1)+4*a+i}, v{ACC+16*dt+8*a+2*i}, v{ACC+16*dt+8*a+2*i+1}")
            ins.append(f"s_add_u32 s{sT+8}, s{sPo}, {(a*16 + (dt>>1))*32768:#x}\n"
                       f"buffer_store_dwordx4 {vr(SGp+8*(dt&1)+4*a,4)}, v{vPs}, {WS}, s{sT+8} offen offset:{(dt&1)*512} sc1")
        return ins
    pend = []
    for dt in range(4):
        for k in range(8):
            A(f"v_mfma_f32_32x32x16_bf16 {vr(ACC+16*dt,16)}, {vr(OA+4*k,4)}, {ar((dt*8+k)*4,4)}, {'0' if k == 0 else vr(ACC+16*dt,16)}")
            if k >= 2:
                for _ in range(2):
                    if pend:
                        A(pend.pop(0))
        pend = tail(dt)
    A.nop(12)
    for f in pend:
        A(f)
    A(f"""
    s_lshl_b32 s{sT}, s{sSeg}, 7
    s_lshl2_add_u32 s{sT}, s{sH}, s{sT}
    s_add_u32 s{sT}, s{sT}, {F_PART:#x}
    v_xor_b32 v{vRd}, 0x8000, v{vRd}
    v_xor_b32 v{vKm}, 0x8000, v{vKm}
    v_xor_b32 v{vVx}, 0x8000, v{vVx}
    v_xor_b32 v{vVm}, 0x8000, v{vVm}
    s_waitcnt vmcnt(0)
    s_barrier
    buffer_store_dword v{vOne}, v{vSolo}, {WS}, s{sT} offen sc1
    s_cmp_eq_u32 s{sPrev}, -1
    s_cbranch_scc1 L_p5_nored
    """)
    reduce_prev("L_p5_r1")
    A(f"""
    L_p5_nored:
    s_mov_b32 s{sPrev}, s{sSeg}
    s_add_u32 s{sSeg}, s{sSeg}, 7
    s_add_u32 s{sQo}, s{sQo}, {7 << 18:#x}
    s_cmp_lt_u32 s{sSeg}, 64
    s_cbranch_scc1 L_p5_loop
    """)
    reduce_prev("L_p5_r2")
    A("s_waitcnt vmcnt(0)")


def p345(A, cfg):
    p3(A, cfg)
    wstamp(A, cfg, 14)
    if cfg.get('stop') == 3:
        A("s_waitcnt vmcnt(0)\ns_branch L_end")
        return
    p4(A, cfg)
    wstamp(A, cfg, 15)
    if cfg.get('stop') == 4:
        A("s_waitcnt vmcnt(0)\ns_branch L_end")
        return
    p5(A, cfg)
    wstamp(A, cfg, 24)
```

```python
import sys, json
from common import *
import chain as chain_mod
import common

HEADER = open('parallel_sum__memory_aug_recurrent_mem_tr__mixer_token_mlp__prompt.s.ref').read().split("; Override launch")[0]


def prologue(A, cfg):
    A(f"""
    s_cmp_ge_u32 s2, 256
    s_cbranch_scc1 L_end
    """)
    if cfg.get('wdiag'):
        A("s_memrealtime s[94:95]")
    build_srds(A)
    DBG = f"s[{S_DBG}:{S_DBG+1}]"
    A(f"""
    s_mov_b32 s{S_SPIN}, 0
    s_getreg_b32 s{S_XCC}, hwreg(HW_REG_XCC_ID, 0, 4)
    {'s_xor_b32 s58, s58, ' + str(cfg['xccx']) if cfg.get('xccx') else ''}
    v_lshrrev_b32 v1, 6, v0
    v_and_b32 v2, 63, v0
    s_nop 0
    v_readfirstlane_b32 s{S_W}, v1
    s_add_u32 s{S_XCC}, s{S_XCC}, 1
    v_mov_b32 v3, s2
    v_mov_b32 v4, s{S_XCC}
    v_mov_b32 v16, 0
    s_cmp_lg_u32 s{S_W}, 0
    s_cbranch_scc1 L_role_wait
    s_mov_b64 exec, 1
    global_store_byte v3, v4, {DBG} sc1
    s_mov_b64 exec, -1
    s_cmp_ge_u32 s2, 8
    s_cbranch_scc1 L_role_wait
    """)
    if not cfg.get('chain_only'):
        A(f"""
        v_lshlrev_b32 v8, 4, v2
        v_mov_b32 v17, 0
        v_mov_b32 v18, 0
        v_mov_b32 v19, 0
        s_lshl_b32 s61, s2, 13
        s_add_u32 s62, s61, 0x1000
        """)
        for i in range(8):
            A(f"buffer_store_dwordx4 v[16:19], v8, {WSR}, s{61 + i//4} offen offset:{(i&3)*1024} sc1")
    A(f"""
    v_or_b32 v4, 0x40, v4
    s_waitcnt vmcnt(0)
    s_mov_b64 exec, 1
    global_store_byte v3, v4, {DBG} sc1
    s_mov_b64 exec, -1
    L_role_wait:
    s_lshr_b32 s60, s2, 3
    s_sub_u32 s61, s{S_XCC}, 1
    s_and_b32 s61, s61, 7
    s_lshl_b32 s61, s61, 5
    s_add_u32 s{S_ID}, s60, s61
    s_mov_b32 s{S_T}, 0
    L_dispatch:
    s_cmp_ge_u32 s{S_ID}, 32
    s_cbranch_scc1 L_worker
    """)


def validate(A, v):
    DBG = f"s[{S_DBG}:{S_DBG+1}]"
    u = A.uid("Lval")
    A(f"""
    v_and_b32 v{v}, 63, v{v}
    v_lshlrev_b32 v{v}, 2, v{v}
    {u}:
    {GUARD}
    global_load_dword v{v+1}, v{v}, {DBG} sc1
    s_waitcnt vmcnt(0)
    """)
    for b in range(4):
        A(f"v_bfe_u32 v{v+2+b}, v{v+1}, {8*b}, 5")
    A(f"""
    v_min_u32 v{v+6}, v{v+2}, v{v+3}
    v_min3_u32 v{v+6}, v{v+6}, v{v+4}, v{v+5}
    v_cmp_eq_u32 vcc, 0, v{v+6}
    s_cbranch_vccnz {u}
    v_and_b32 v{v+6}, 0x40404040, v{v+1}
    v_cmp_ne_u32 vcc, 0x40404040, v{v+6}
    s_and_b32 s3, vcc_lo, 3
    s_cbranch_scc1 {u}
    s_mov_b32 s3, s{S_T}
    s_cmp_lg_u32 s{S_T}, 0
    s_cbranch_scc1 {u}_ok
    v_lshlrev_b32 v{v+6}, v{v+2}, 1
    v_lshlrev_b32 v{v+7}, v{v+3}, 1
    v_or_b32 v{v+6}, v{v+6}, v{v+7}
    v_lshlrev_b32 v{v+7}, v{v+4}, 1
    v_or_b32 v{v+6}, v{v+6}, v{v+7}
    v_lshlrev_b32 v{v+7}, v{v+5}, 1
    v_or_b32 v{v+6}, v{v+6}, v{v+7}
    s_nop 1
    v_or_b32_dpp v{v+6}, v{v+6}, v{v+6} quad_perm:[1,0,3,2] row_mask:0xf bank_mask:0xf
    v_cmp_ne_u32 vcc, 0x1fe, v{v+6}
    s_mov_b32 s3, 32
    s_cbranch_vccz {u}_ok
    s_lshr_b32 s60, s2, 2
    s_lshl_b64 s[62:63], 1, s60
    s_sub_u32 s64, s62, 1
    s_subb_u32 s65, s63, 0
    s_or_b64 s[66:67], s[62:63], s[64:65]
    s_and_b32 s61, s2, 3
    s_mov_b32 s68, 0
    s_mov_b32 s69, 0
    s_mov_b32 s70, 0
    """)
    for b in range(4):
        A(f"""
        v_cmp_eq_u32 vcc, s{S_XCC}, v{v+2+b}
        s_cmp_gt_u32 s61, {b}
        s_cselect_b64 s[74:75], s[66:67], s[64:65]
        s_and_b64 s[74:75], s[74:75], vcc
        s_bcnt1_i32_b64 s71, s[74:75]
        s_add_u32 s68, s68, s71
        v_cmp_eq_u32 vcc, 1, v{v+2+b}
        s_bcnt1_i32_b64 s71, vcc
        s_add_u32 s69, s69, s71
        v_cmp_gt_u32 vcc, s{S_XCC}, v{v+2+b}
        s_bcnt1_i32_b64 s71, vcc
        s_add_u32 s70, s70, s71
        """)
    A(f"""
    s_min_u32 s71, s69, 32                 ; c0
    s_sub_u32 s70, s70, s69
    s_add_u32 s70, s70, s71
    s_add_u32 s70, s70, s68
    s_sub_u32 s71, 256, s69
    s_add_u32 s71, s71, s68
    s_cmp_lt_u32 s68, 32
    s_cselect_b32 s71, s68, s71
    s_cmp_eq_u32 s{S_XCC}, 1
    s_cselect_b32 s{S_ID}, s71, s70
    s_or_b32 s{S_T}, s69, 0x1000
    v_mbcnt_lo_u32_b32 v0, -1, 0
    v_mbcnt_hi_u32_b32 v0, -1, v0
    s_waitcnt vmcnt(0) lgkmcnt(0)
    s_barrier
    s_branch L_dispatch
    {u}_ok:
    s_and_b32 s3, s3, 0xfff
    """)


def generate(cfg):
    A = Asm()
    common.validate = validate
    prologue(A, cfg)
    if cfg.get('nochain'):
        A("s_branch L_end")
    chain_mod.chain(A, cfg)
    A.label("L_worker")
    if not cfg.get('chain_only'):
        import worker as worker_mod
        A(f"s_sub_u32 s{S_ID}, s{S_ID}, 32")
        worker_mod.worker(A, cfg)
    A.label("L_end")
    body = A.text()
    return f"""{HEADER}; @launch grid=(256,1,1) block=(256,1,1) lds=163840
.amdgcn_target "amdgcn-amd-amdhsa--gfx950"
.text
.globl {KNAME}
.p2align 8
.type {KNAME},@function
{KNAME}:
{body}    s_endpgm
.section .rodata,"a"
.p2align 6
.amdhsa_kernel {KNAME}
  .amdhsa_next_free_vgpr 512
  .amdhsa_next_free_sgpr 102
  .amdhsa_accum_offset 256
  .amdhsa_group_segment_fixed_size 0
  .amdhsa_kernarg_size 120
  .amdhsa_user_sgpr_count 2
  .amdhsa_user_sgpr_kernarg_segment_ptr 1
  .amdhsa_system_sgpr_workgroup_id_x 1
.end_amdhsa_kernel
"""


if __name__ == "__main__":
    cfg = json.loads(sys.argv[2]) if len(sys.argv) > 2 else {}
    open(sys.argv[1], "w").write(generate(cfg))
```

```python
from common import *

L_KX = 0x0000
L_MEM = 0x4000
L_Q = 0x6000
L_O = 0x7200
L_W = 0x8000

vL16, vIDX, vQW, vTQ, vTK, vTO, vKX, vWL, vPS, vOW, vRS, vFL = range(12)
vONE = 12
vSEL = 16
MF = 20
AQ, AK, AV = 52, 60, 68
KX = 76
VB = 108
TT = 124
vZ = VB + 6

sODL = 10
sStep = 60
sP = 61
sPF = 63
sVXb = 64
sPR = 65
sRL, sFLc, sMO, sMRs, sG, sKXo, sVXo, sKM, sFLo, sM0K = 69, 70, 71, 72, 73, 74, 75, 76, 77, 78
sProg = 79
sODD = 80
sEVL = 82
sC = 84
sF0 = 85
sW11 = 86
sNeed = 87
sPb = 68
sT = 88
SENT_P = 0x7F817F81

LDSF = {('Q', 1, 0): 0, ('Q', 1, 2): 1, ('Q', 1, 4): 2, ('Q', 1, 6): 3,
        ('K', 1, 0): 4, ('K', 1, 2): 5, ('K', 1, 4): 6, ('K', 1, 6): 7,
        ('O', 0, 0): 8, ('O', 0, 1): 9, ('O', 2, 0): 10, ('O', 2, 1): 11,
        ('O', 4, 0): 12, ('O', 4, 1): 13, ('O', 6, 0): 14, ('O', 6, 1): 15}
RFF = {}
_slots = [Reg('a', 8 * i) for i in range(32)] + [Reg('v', 128 + 8 * i) for i in range(16)]
for m in 'QKV':
    for tau in range(2):
        for t in range(8):
            if (m, tau, t) not in LDSF:
                RFF[(m, tau, t)] = _slots.pop(0)
for j in range(8):
    for t in range(2):
        if ('O', j, t) not in LDSF:
            RFF[('O', j, t)] = _slots.pop(0)
assert not _slots
WS = f"s[{S_WS}:{S_WS+3}]"
import common


def smf(A, acc, a, b):
    A(f"v_smfmac_f32_16x16x64_bf16 {vr(acc,4)}, {vr(a,4)}, {b.r(0,8)}, v{vIDX}")


def lds_frag_load(A, key, dst, tag):
    f = LDSF[key]
    A.ds(f"ds_read_b128 {vr(dst,4)}, v{vWL} offset:{f*2048}", tag)
    A.ds(f"ds_read_b128 {vr(dst+4,4)}, v{vWL} offset:{f*2048+1024}", tag)


def cstamp(A, cfg, k):
    if cfg.get('cdiag'):
        A(f"s_memrealtime s[96:97]\ns_waitcnt lgkmcnt(0)\n" + (f"s_mov_b32 s{71+k}, s96" if k <= 6 else f"v_writelane_b32 v{TT}, s96, {k}") + ("".join(f"\nv_writelane_b32 v{TT}, s{71+j}, {j}" for j in range(1, 7)) if k == 6 else ""))


def perwave(A, fn):
    end = A.uid("Lwe")
    for w in range(4):
        nx = A.uid("Lwn")
        if w < 3:
            A(f"s_cmp_lg_u32 s{S_W}, {w}\ns_cbranch_scc1 {nx}")
        fn(w)
        if w < 3:
            A(f"s_branch {end}\n{nx}:")
    A.label(end)


def chain_startup(A, cfg):
    A.c("===== chain startup =====")
    A(f"""
    v_and_b32 v1, 63, v0              ; lane
    v_and_b32 v2, 15, v1              ; n
    v_lshrrev_b32 v3, 4, v1           ; g
    v_lshrrev_b32 v4, 1, v3           ; g>>1
    v_and_b32 v5, 1, v3               ; g&1
    v_lshrrev_b32 v6, 2, v2           ; r = n>>2
    v_and_b32 v7, 3, v2               ; c = n&3
    ; vPS = (n>>2)*8192 + h*256 + ((n&3)*4+g)*16
    v_lshl_add_u32 v8, v7, 2, v3
    v_lshlrev_b32 v8, 4, v8
    v_lshl_add_u32 v8, v6, 13, v8
    s_lshl_b32 s{sT}, s{S_W}, 3
    s_xor_b32 s{sT}, s{sT}, s{S_ID}
    s_xor_b32 s{sT}, s{sT}, 31
    v_xor_b32 v9, s{sT}, v6
    v_lshl_add_u32 v8, v9, 8, v8
    s_lshl_b32 s{sT}, s{S_ID}, 8
    ; vRS = h*256 + (2*(n&3) + (g&1))*32 + (n>>2)*8
    v_lshl_add_u32 v10, v7, 1, v5
    v_lshlrev_b32 v10, 5, v10
    v_lshl_add_u32 v10, v6, 3, v10
    v_add_u32 v10, s{sT}, v10
    """)
    A(f"""
    v_lshlrev_b32 v9, 1, v3
    v_xor_b32 v9, v2, v9
    v_lshlrev_b32 v9, 4, v9
    s_lshl_b32 s{sT}, s{S_W}, 2
    v_add_u32 v13, s{sT}, v3          ; 4w+g
    v_lshl_add_u32 v11, v13, 13, v9   ; vDmaA
    v_lshl_add_u32 v12, v13, 10, v9   ; vDmaB
    v_and_b32 v9, 1, v6               ; r&1
    v_lshrrev_b32 v13, 1, v6          ; r>>1
    v_lshl_add_u32 v14, v13, 1, v5    ; 2(r>>1)+(g&1)
    v_lshl_add_u32 v15, v9, 2, v14    ; phi
    v_lshl_add_u32 v14, v4, 2, v14
    v_lshl_add_u32 v14, v9, 4, v14    ; row
    v_lshlrev_b32 v14, 8, v14
    v_lshl_add_u32 v14, v15, 5, v14
    s_lshl_b32 s{sT}, s{S_W}, 6
    v_xor_b32 v14, s{sT}, v14
    v_lshrrev_b32 v15, 1, v7
    v_lshlrev_b32 v15, 5, v15
    v_xor_b32 v1, v15, v14
    v_and_b32 v15, 1, v7
    v_lshl_add_u32 v2, v15, 3, v1
    v_lshl_add_u32 v14, v7, 3, v14
    v_lshlrev_b32 v15, 1, v5
    v_lshl_add_u32 v1, v13, 2, v15
    v_lshl_add_u32 v1, v4, 3, v1
    v_lshl_add_u32 v1, v9, 4, v1      ; row
    v_lshl_add_u32 v15, v9, 2, v15    ; phi
    v_lshlrev_b32 v1, 8, v1
    v_lshl_add_u32 v1, v7, 3, v1
    v_lshl_add_u32 v13, v15, 5, v1
    v_xor_b32 v5, 128, v11
    v_xor_b32 v6, 128, v12
    """)
    chunks = [('O', t, c) for t in range(2) for c in range(4)]
    chunks += [(m, t, None) for m in 'QK' for t in (2, 4, 6)]
    chunks += [('V', t, None) for t in range(8)]
    chunks += [(m, t, None) for m in 'QK' for t in (1, 3, 5, 7)]
    chunks += [('Q', 0, None), ('K', 0, None)]
    slot = lambda ci: 2 + (ci % 8) if ci < 30 else (ci - 30)
    A(f"""
    s_lshl_b32 s{sT+2}, s{S_ID}, 8        ; h*256
    s_lshl_b32 s{sT+3}, s{S_ID}, 17       ; h*128*1024
    s_lshl_b32 s{sT+4}, s{S_W}, 10        ; w*4*256
    """)

    def issue(ci):
        m, t, c = chunks[ci]
        srd = {'Q': S_WQ, 'K': S_WK, 'V': S_WV, 'O': S_WO}[m]
        for i in range(4):
            A(f"s_add_u32 m0, s{sT+4}, {slot(ci)*16384 + i*4096:#x}")
            if m == 'O':
                A(f"s_add_u32 s{sT+1}, s{sT+3}, {(64*t+16*i)*1024 + c*256:#x}")
                va = 6 if i & 1 else 12
            else:
                A(f"s_add_u32 s{sT+1}, s{sT+2}, {(64*t+16*i)*8192:#x}")
                va = 5 if i & 1 else 11
            A.vmem(f"buffer_load_dwordx4 v{va}, s[{srd}:{srd+3}], s{sT+1} offen lds", ("ch", ci))

    held = {}
    hfree = [16 + 8 * i for i in range(14)]
    for ci in [0, 1, 2, 3, 4, 5, 6, 7, 30, 31]:
        issue(ci)
    cstamp(A, cfg, 1)
    PK = lambda w: RFF[('K', 0, 2 * w)]
    PQ = lambda w: RFF[('Q', 0, 2 * w)]
    A(f"""
    v_and_b32 v9, 63, v0
    v_bfe_u32 v15, v9, 1, 3
    v_lshlrev_b32 v15, 10, v15
    v_lshrrev_b32 v1, 4, v9
    v_lshl_add_u32 v15, v1, 3, v15
    v_and_b32 v1, 1, v9
    v_lshl_add_u32 v15, v1, 2, v15
    s_lshl_b32 s{sT}, s{S_W}, 8
    """)
    perwave(A, lambda w: A("\n".join(f"buffer_load_dword {PK(w).r(4*u+tl)}, v15, s[{S_MEM0}:{S_MEM0+3}], s{sT} offen offset:{u*128+tl*32}"
                                     for u in range(2) for tl in range(4))))
    A.vm += ["m0"] * 8
    A(f"s_mov_b32 s{sT+5}, 0")
    for ci in range(32):
        m, t, c = chunks[ci]
        if ci == 3:
            common.zero_load(A, 3)
            A.vm.append("zl")
        if ci == 11:
            A.wv(("ch", ci))
            lab = A.uid("Lz")
            A(f"v_cmp_ne_u32 vcc, 1, v3\ns_cbranch_vccnz {lab}\ns_mov_b32 s{sT+5}, 1")
            common.announce(A, 3)
            A.label(lab)
        if ci == 20:
            A(f"""
            s_lshl_b32 s{sFLc}, s{S_ID}, 9
            s_add_u32 s{sFLc}, s{sFLc}, {F_P2:#x}
            v_and_b32 v1, 1, v0
            v_lshlrev_b32 v1, 7, v1
            """)
            A.vmem(f"buffer_load_dword v1, v1, {WS}, s{sFLc} offen sc1", "f0")
        if ci == 28:
            A.wv("f0")
            lab = A.uid("Lpf")
            A(f"""
            v_cmp_eq_u32 vcc, 0, v1
            s_cbranch_vccnz {lab}
            s_cmp_eq_u32 s{sT+5}, 0
            s_cbranch_scc1 {lab}
            s_mov_b32 s{sT+5}, 2
            v_and_b32 v1, 63, v0
            v_lshlrev_b32 v1, 7, v1
            s_lshl_b32 s{sT}, s{S_ID}, 13
            s_lshl_b32 s{sT+1}, s{S_W}, 18
            s_add_u32 s{sT+1}, s{sT+1}, s{sT}
            s_add_u32 s{sT+1}, s{sT+1}, {PRING:#x}
            buffer_load_dword v3, v1, {WS}, s{sT+1} offen
            s_lshl_b32 s{sT+1}, s{S_W}, 13
            s_add_u32 s{sT+1}, s{sT+1}, {MRING:#x}
            buffer_load_dword v3, v1, {WS}, s{sT+1} offen sc1
            s_and_b32 s{sT+1}, s{S_W}, 1
            s_lshl_b32 s{sT+1}, s{sT+1}, 18
            s_add_u32 s{sT}, s{sT}, s{sT+1}
            s_lshr_b32 s{sT+1}, s{S_W}, 1
            s_lshl_b32 s{sT+1}, s{sT+1}, 24
            s_add_u32 s{sT}, s{sT}, s{sT+1}
            s_add_u32 s{sT}, s{sT}, {WS_KX:#x}
            buffer_load_dword v3, v1, {WS}, s{sT} offen
            {lab}:
            """)
        if ci == 24:
            perwave(A, lambda w: common.table_load(A, PQ(w).r(0, 2), 9))
            A.vm.append("tl")
        if ci in (1, 10, 20, 30):
            cstamp(A, cfg, {1: 2, 10: 3, 20: 4, 30: 5}[ci])
        if ci == 22:
            A(f"""
            v_and_b32 v9, 63, v0
            v_lshlrev_b32 v9, 4, v9
            s_lshl_b32 s{sT+1}, s{S_W}, 15
            s_add_u32 s{sT+1}, s{sT+1}, {L_W:#x}
            v_add_u32 v7, s{sT+1}, v9          ; vWL
            """)
        if ci in (24, 26, 28, 30):
            lab = A.uid("Lhw")
            A(f"s_cmp_lg_u32 s{S_W}, { {24: 3, 26: 0, 28: 1, 30: 2}[ci] }\ns_cbranch_scc1 {lab}")
            wv_ = {24: 3, 26: 0, 28: 1, 30: 2}[ci]
            for key, r in held.items():
                f = LDSF[key] if key[0] == 'O' else LDSF[(key[0], 1, key[2] ^ (2 * wv_))]
                A(f"ds_write_b128 v7, {vr(r,4)} offset:{f*2048}")
                A(f"ds_write_b128 v7, {vr(r+4,4)} offset:{f*2048+1024}")
            A(f"s_waitcnt lgkmcnt(0)\n{lab}:")
        if ci == 30:
            A.wv("tl")
            perwave(A, lambda w: A("\n".join([f"v_accvgpr_read_b32 v{40+i}, {PK(w).r(i)}" for i in range(8)] +
                                              [f"v_accvgpr_read_b32 v{48+i}, {PQ(w).r(i)}" for i in range(2)])))
        A.wv(("ch", ci))
        A("s_barrier")
        sb = slot(ci) * 16384
        hi = sb & ~0x7fff
        lo = sb - hi
        if m == 'O':
            lab = A.uid("Lskipo")
            A(f"s_cmp_lg_u32 s{S_W}, {c}")
            A(f"s_cbranch_scc1 {lab}")
            for j in range(8):
                key = ('O', j, t)
                if key in LDSF:
                    if key not in held:
                        held[key] = hfree.pop(0)
                    dst = Reg('v', held[key])
                else:
                    dst = RFF[key]
                A(f"v_xor_b32 v9, {j*32}, v13")
                A(f"v_add_u32 v9, {hi:#x}, v9")
                A(f"v_xor_b32 v15, 32, v9")
                for k, (ad, off) in enumerate([(9, 0), (15, 256), (9, 8192), (15, 8192 + 256)]):
                    A.ds(f"ds_read_b64_tr_b16 {dst.r(2*k,2)}, v{ad} offset:{lo+off}", "tr")
                A.wl()
            A.label(lab)
        else:
            lds1 = m != 'V' and t % 2 == 0
            if lds1 and ci < 30:
                held[(m, 1, t)] = hfree.pop(0)
            for tau in range(2):
                ad = 9 if tau == 0 else 15
                if m == 'V':
                    A(f"v_xor_b32 v{ad}, {tau*32}, v14")
                    A(f"v_add_u32 v{ad}, {hi:#x}, v{ad}")
                else:
                    A(f"v_add_u32 v{ad}, {hi + tau*16:#x}, v2")
            end = A.uid("Lwe")
            for wv_ in range(4):
                nx = A.uid("Lwn")
                if wv_ < 3:
                    A(f"s_cmp_lg_u32 s{S_W}, {wv_}\ns_cbranch_scc1 {nx}")
                for tau in range(2):
                    if tau == 1 and lds1:
                        dst = Reg('v', held[(m, 1, t)] if ci < 30 else 16)
                    else:
                        dst = RFF[(m, tau, t ^ (2 * wv_))]
                    for k, off in enumerate([0, 8192, 2048, 8192 + 2048]):
                        A(f"ds_read_b64_tr_b16 {dst.r(2*k,2)}, v{9 if tau == 0 else 15} offset:{lo+off}")
                A("s_waitcnt lgkmcnt(0)")
                if lds1 and ci >= 30:
                    f = LDSF[(m, 1, t ^ (2 * wv_))]
                    A(f"ds_write_b128 v7, {vr(16,4)} offset:{f*2048}\nds_write_b128 v7, {vr(20,4)} offset:{f*2048+1024}\ns_waitcnt lgkmcnt(0)")
                if wv_ < 3:
                    A(f"s_branch {end}\n{nx}:")
            A.label(end)
        A("s_barrier")
        nxt = ci + 8
        if nxt < 30:
            issue(nxt)
    assert not hfree
    cstamp(A, cfg, 6)
    A.c("chain address registers")
    A(f"""
    v_and_b32 v20, 63, v0             ; lane
    v_and_b32 v21, 15, v20            ; n
    v_lshrrev_b32 v22, 4, v20         ; g
    v_lshrrev_b32 v23, 1, v22         ; g>>1
    v_and_b32 v24, 1, v22             ; g&1
    v_lshrrev_b32 v25, 2, v21         ; r
    v_and_b32 v26, 3, v21             ; c
    v_lshlrev_b32 v{vL16}, 4, v20
    v_mov_b32 v{vIDX}, 0x4444
    v_mov_b32 v27, 0xeeee
    s_mov_b32 s{sODD}, 0xaaaaaaaa
    s_mov_b32 s{sODD+1}, 0xaaaaaaaa
    s_mov_b32 s{sEVL}, 0x55555555
    s_mov_b32 s{sEVL+1}, 0
    s_mov_b32 s{sODL}, 0xaaaaaaaa
    s_mov_b32 s{sODL+1}, 0
    s_mov_b32 s{sC}, {f32bits(SM_C):#x}
    s_mov_b32 s{sT+11}, {L_Q:#x}
    s_mov_b32 s{sT+10}, {L_O:#x}
    v_cndmask_b32 v{vIDX}, v{vIDX}, v27, s[{sODD}:{sODD+1}]
    s_lshl_b32 s{sT}, s{S_W}, 6
    v_lshlrev_b32 v27, 2, v21
    v_add_u32 v27, s{sT}, v27
    v_mul_u32_u24 v28, 1088, v22
    v_add3_u32 v{vQW}, v27, v28, s{sT+11}
    v_mul_u32_u24 v28, 640, v22
    v_add3_u32 v{vOW}, v27, v28, s{sT+10}
    v_lshrrev_b32 v27, 1, v21
    v_mul_u32_u24 v28, 544, v27
    v_lshl_add_u32 v28, v22, 4, v28
    v_add_u32 v{vTQ}, {L_Q:#x}, v28
    v_mul_u32_u24 v28, 320, v27
    v_lshl_add_u32 v28, v22, 5, v28
    v_and_b32 v29, 1, v21
    v_lshl_add_u32 v28, v29, 4, v28
    v_add_u32 v{vTO}, {L_O:#x}, v28
    v_and_b32 v27, 7, v21
    v_mul_u32_u24 v28, 544, v27
    v_lshl_add_u32 v28, v22, 4, v28
    v_add_u32 v{vTK}, {L_Q + 256:#x}, v28
    v_lshlrev_b32 v27, 9, v22
    v_lshl_add_u32 v{vKX}, v21, 4, v27
    v_and_b32 v29, 1, v25
    v_mov_b32 v30, 0x3f80
    v_mov_b32 v31, 0x3f800000
    v_cmp_eq_u32 vcc, 1, v29
    s_nop 1
    v_cndmask_b32 v30, v30, v31, vcc
    """)
    for d in range(4):
        A(f"v_cmp_eq_u32 vcc, {d}, v26\ns_nop 1\nv_cndmask_b32 v{vSEL+d}, 0, v30, vcc")
    for z in (VB + 6, VB + 7, VB + 14, VB + 15):
        A(f"v_mov_b32 v{z}, 0")
    A(f"v_bfrev_b32 v30, 1\nv_cmp_ne_u32 vcc, 0, v20\ns_nop 1\nv_cndmask_b32 v{vZ}, v{vZ}, v30, vcc")
    for z in range(4):
        A(f"v_mov_b32 v{vONE+z}, 0x3f803f80")
    lab = A.uid("Lci")
    A(f"s_cmp_lg_u32 s{sT+5}, 0\ns_cbranch_scc1 {lab}_z")
    common.wait_zero(A, 48)
    A(f"v_mov_b32 v48, 0\n{lab}_z:")
    common.validate(A, 48, preloaded=True)
    cstamp(A, cfg, 7)
    A(f"""
    s_mov_b32 s{sT+7}, s3
    v_mov_b32 v32, 0
    s_cmp_eq_u32 s{S_T}, 0
    s_cbranch_scc1 {lab}_r
    v_lshrrev_b32 v33, 2, v{vL16}
    s_mov_b32 s{sT+5}, 0
    {lab}_p2:
    {GUARD}
    buffer_load_dword v34, v33, {WS}, 0 offen sc1
    s_waitcnt vmcnt(0)
    v_cmp_ne_u32 vcc, 0x01010101, v34
    s_cbranch_vccnz {lab}_p2
    v_and_b32 v33, 28, v33
    {lab}_p3:
    {GUARD}
    buffer_load_dword v34, v33, {WS}, 0 offen offset:{F_LN+32} sc1
    s_waitcnt vmcnt(0)
    v_cmp_ne_u32 vcc, 0x01010101, v34
    s_cbranch_vccnz {lab}_p3
    {lab}_r:
    """)
    cstamp(A, cfg, 8)
    lab = A.uid("Lf0")
    A(f"""
    s_mov_b32 s{sF0}, 1
    s_cmp_eq_u32 s{sT+5}, 2
    s_cbranch_scc1 {lab}_ok
    {lab}:
    {GUARD}
    buffer_load_dword v{vFL}, v32, {WS}, s{sFLc} offen sc1
    buffer_load_dword v34, v32, {WS}, s{sFLc} offen offset:128 sc1
    s_waitcnt vmcnt(0)
    v_min_u32 v{vFL}, v{vFL}, v34
    s_nop 0
    v_readfirstlane_b32 s{sF0}, v{vFL}
    s_cmp_eq_u32 s{sF0}, 0
    s_cbranch_scc1 {lab}
    {lab}_ok:
    s_lshl_b32 s{sT}, s{S_ID}, 13
    s_lshl_b32 s{sT+1}, s{S_W}, 11
    s_add_u32 s{sVXb}, s{sT}, s{sT+1}
    s_add_u32 s{sVXb}, s{sVXb}, {WS_VX:#x}
    s_mov_b32 s{sVXo}, s{sVXb}
    s_add_u32 s{sKXo}, s{sT}, s{sT+1}
    s_add_u32 s{sKXo}, s{sKXo}, {WS_KX:#x}
    s_mov_b32 s{sM0K}, s{sT+1}
    s_lshl_b32 s{sT+2}, s{S_W}, 9
    s_add_u32 s{sKM}, s{sT}, s{sT+2}
    s_add_u32 s{sKM}, s{sKM}, {WS_KVM - 0x40000:#x}
    s_add_u32 s{sPF}, s{sT}, s{sT+1}
    s_add_u32 s{sPF}, s{sPF}, {WS_VX:#x}
    s_mov_b32 m0, s{sM0K}
    s_nop 0
    buffer_load_dwordx4 v{vL16}, {WS}, s{sKXo} offen lds
    buffer_load_dwordx4 v{vL16}, {WS}, s{sKXo} offen offset:1024 lds
    """)
    A(f"""
    s_mov_b32 s{sT}, 0x05040100
    s_mov_b32 s{sT+1}, 0x07060302
    """)
    for u in range(2):
        b = 40 + 4 * u
        A(f"""
        v_perm_b32 v{MF+4*u}, v{b+1}, v{b}, s{sT}
        v_perm_b32 v{MF+4*u+1}, v{b+3}, v{b+2}, s{sT}
        v_perm_b32 v{MF+4*u+2}, v{b+1}, v{b}, s{sT+1}
        v_perm_b32 v{MF+4*u+3}, v{b+3}, v{b+2}, s{sT+1}
        """)
    A(f"""
    s_mov_b32 s{sStep}, 0
    s_lshl_b32 s{sProg}, s{S_ID}, 7
    s_add_u32 s{sProg}, s{sProg}, {F_PROG:#x}
    v_bfrev_b32 v{TT}, 1
    s_cmp_eq_u32 s{S_W}, 1
    s_cselect_b64 vcc, -1, 0
    s_nop 1
    v_cndmask_b32 v{vZ+1}, v{TT}, v{vZ}, vcc
    """)
    A.vm = []
    A.lg = []
    step_offsets(A)
    pre_step(A)
    hop_addr(A)
    A("s_waitcnt vmcnt(0) lgkmcnt(0)")
    A.lg = []
    cstamp(A, cfg, 9)
    if cfg.get('cdiag'):
        A(f"v_writelane_b32 v{TT}, s100, 0")
        A(f"s_lshl_b32 s96, s{S_ID}, 8\ns_add_u32 s96, s96, 0x118000\nv_lshrrev_b32 v{TT+1}, 2, v{vL16}\nbuffer_store_dword v{TT}, v{TT+1}, {WS}, s96 offen")


def step_offsets(A):
    A(f"""
    s_and_b32 s{sT}, s{sStep}, 3
    s_lshl_b32 s{sT+1}, s{sT}, 18
    s_add_u32 s{sT+1}, s{sT+1}, {PRING:#x}
    s_lshl_b32 s{sT+2}, s{S_W}, 16
    s_add_u32 s{sP}, s{sT+1}, s{sT+2}
    s_bitcmp1_b32 s{S_ID}, 2
    s_movk_i32 s{sPb}, 0x7c00
    s_cselect_b32 s{sPb}, 0x8400, s{sPb}
    s_add_u32 s{sP+1}, s{sP}, s{sPb}
    s_lshl_b32 s{sT+2}, s{S_ID}, 13
    s_add_u32 s{sRL}, s{sT+1}, s{sT+2}
    s_add_u32 s{sT+1}, s{sStep}, 3
    s_and_b32 s{sT+1}, s{sT+1}, 3
    s_lshl_b32 s{sT+1}, s{sT+1}, 18
    s_lshl_b32 s{sT+2}, s{S_W}, 16
    s_add_u32 s{sT+1}, s{sT+1}, s{sT+2}
    s_add_u32 s{sPR}, s{sT+1}, {PRING:#x}
    s_add_u32 s{sPR+1}, s{sPR}, s{sPb}
    s_lshl_b32 s{sMRs}, s{sT}, 13
    s_add_u32 s{sMRs}, s{sMRs}, {MRING:#x}
    s_add_u32 s{sT+1}, s{sStep}, 1
    s_and_b32 s{sT+1}, s{sT+1}, 3
    s_lshl_b32 s{sT+1}, s{sT+1}, 13
    s_add_u32 s{sMO}, s{sT+1}, {MRING:#x}
    s_lshl_b32 s{sT+1}, s{S_W}, 11
    s_add_u32 s{sG}, s{sMO}, s{sT+1}
    s_add_u32 s{sKXo}, s{sKXo}, 0x40000
    s_add_u32 s{sPF}, s{sPF}, 0x40000
    s_add_u32 s{sKM}, s{sKM}, 0x40000
    s_xor_b32 s{sM0K}, s{sM0K}, 0x2000
    s_add_u32 s{sFLo}, s{sFLc}, 256
    s_mov_b32 s{sNeed}, 0
    s_lshl_b32 s{sW11}, s{S_W}, 11
    """)


def pre_step(A):
    for t in range(4):
        lds_frag_load(A, ('Q', 1, 2 * t), KX + 8 * t, ("sb", t))
    for r in list(range(AQ, AQ + 16, 2)) + [AV + 4, AV + 6]:
        A(f"v_mov_b64 {vr(r,2)}, 0")
    for i in range(4):
        A(f"v_mov_b32 v{AV+i}, {SENT_P:#x}")


GW = VB + 3
vM = [None, VB, VB + 1, VB + 4]


def hop_addr(A):
    A(f"v_add_u32 v{GW}, s{sW11}, v{vL16}")
    for j in range(1, 4):
        A(f"v_xor_b32 v{vM[j]}, {j << 11:#x}, v{GW}")
    A(f"v_lshrrev_b32 v{TT+2}, 2, v{vL16}")


def emit(A, f):
    f() if callable(f) else A(f)


def weave(A, mf, fill, per=1, lead=0):
    fill = list(fill)
    for i, m in enumerate(mf):
        m()
        if i >= lead:
            for _ in range(per):
                if fill:
                    emit(A, fill.pop(0))
    for f in fill:
        emit(A, f)


def stamp(A, cfg, name):
    d = cfg.get('diag', ())
    if name in d:
        k = list(d).index(name)
        A(f"{'s_memrealtime' if cfg.get('abs') else 's_memtime'} s[{12+2*k}:{13+2*k}]")


def fold(x):
    return [f"v_add_f32 v{x}, v{x}, v{x+1}", f"v_add_f32 v{x+2}, v{x+2}, v{x+3}"]


def chain_loop(A, cfg, mode):
    st = " sc1" if mode == 'slow' else ""
    L = f"Lchain_{mode}"
    dA, dB, dB2 = cfg.get('dA', 0), cfg.get('dB', 24), cfg.get('dB2', 12)
    noside = cfg.get('noside', 0)
    A.c(f"===== chain loop ({mode}) =====")
    Lg = A.uid("Lhop")

    def isvalu(f):
        return isinstance(f, str) and f.startswith("v_")

    def gap(m, *items):
        m()
        its = [f for f in items if f is not None]
        for f in its:
            if not isvalu(f):
                emit(A, f)
        for f in its:
            if isvalu(f):
                A(f)

    def pop(lst):
        return lst.pop(0) if lst else None

    def ldsf(key, dst, tag):
        f = LDSF[key]
        return [lambda: A.ds(f"ds_read_b128 {vr(dst,4)}, v{vWL} offset:{f*2048}", tag),
                lambda: A.ds(f"ds_read_b128 {vr(dst+4,4)}, v{vWL} offset:{f*2048+1024}", tag)]

    def v_convert():
        ins = []
        for tau in range(2):
            x, b = AV + 4 * tau, VB + 8 * tau
            ins += fold(x) + [f"v_cvt_pk_bf16_f32 v{b+2}, v{x}, v{x+2}", f"v_cvt_pk_bf16_f32 v{b+3}, v{x}, v{x+2}"]
        return ins

    vL4 = TT + 2

    def v_publish(so):
        if cfg.get('nopub'):
            return []
        return [lambda: A.vmem(f"buffer_store_dword v{VB+2}, v{vL4}, {WS}, s{so} offen offset:2048 sc1", "vm"),
                lambda: A.vmem(f"buffer_store_dword v{VB+10}, v{vL4}, {WS}, s{so} offen offset:2304 sc1", "vm")]

    def pairfold(x):
        return fold(x) + fold(x + 4) + [f"v_cvt_pk_bf16_f32 v{x}, v{x}, v{x+4}", f"v_cvt_pk_bf16_f32 v{x+1}, v{x+2}, v{x+6}"]

    def qkv_phases(last):
        slowlab = A.uid("Lflagslow")

        def Q(i, tau):
            b = Reg('v', KX + 4 * i) if (tau and i % 2 == 0) else RFF[('Q', tau, i)]
            return lambda: smf(A, AQ + 4 * tau, MF + 4 * i, b)

        def K(i, tau):
            b = Reg('v', KX + 4 * i) if (tau and i % 2 == 0) else RFF[('K', tau, i)]
            return lambda: smf(A, AK + 4 * tau, MF + 4 * i, b)
        mfr = [lambda i=i: A.ds(f"ds_read_b128 {vr(MF+4*i,4)}, v{vM[i//2]} offset:{L_MEM+(i&1)*1024}", ("mf", i)) for i in range(2, 8)]
        kl = {i: ldsf(('K', 1, i), KX + 4 * i, ("sb", i)) for i in (0, 2, 4, 6)}
        rst = [lambda b=b: A.vmem(f"buffer_store_dwordx4 {vr(AV,4)}, v{vPS}, {WS}, s{sPR+b} offen{st}", "rst") for b in range(2)]
        if last:
            rst = [None, None]
        C0, C1 = TT + 3, TT + 1
        ops = {'r0': rst[0], 'r1': rst[1],
               'pg': lambda: A.vmem(f"buffer_store_dword v{TT}, v{vZ+1}, {WS}, s{sProg} offen sc1", "prog")}
        if not cfg.get('nopub'):
            ops['m0'] = lambda: A.vmem(f"buffer_store_dword v{C0}, v{vL4}, {WS}, s{sT+8} offen offset:2048 sc1", "vm")
            ops['m1'] = lambda: A.vmem(f"buffer_store_dword v{C1}, v{vL4}, {WS}, s{sT+8} offen offset:2304 sc1", "vm")
        if not last and not noside:
            ops.update({
                'v0': lambda: A.vmem(f"buffer_load_dwordx4 {vr(VB,4)}, v{vKX}, {WS}, s{sVXo} offen", "vx"),
                'v1': lambda: A.vmem(f"buffer_load_dwordx4 {vr(VB+8,4)}, v{vKX}, {WS}, s{sVXo} offen offset:256", "vx"),
                'k0': lambda: A.vmem(f"buffer_load_dwordx4 v{vL16}, {WS}, s{sKXo} offen lds", "kx"),
                'k1': lambda: A.vmem(f"buffer_load_dwordx4 v{vL16}, {WS}, s{sKXo} offen offset:1024 lds", "kx"),
                'pa': f"v_lshlrev_b32 v{TT}, 1, v{vL16}",
                'pf': lambda: A.vmem(f"buffer_load_dword v{vFL}, v{TT}, {WS}, s{sPF} offen", "pf"),
                'fl': lambda: A.vmem(f"buffer_load_dword v{vFL}, v{vZ}, {WS}, s{sFLo} offen sc1", "fl")})
        plan = cfg.get('plan', {'g0': 'm0', 'g1': 'm1', 'g4': 'n0', 'g5': 'n1', 'g7': 'pv', 'q0': 'pg', 'q3': 'v0', 'q6': 'v1', 'q8': 'pa', 'q9': 'r0',
                                'k0': 'pf', 'k4': 'r1', 'k8': 'k0', 'w0': 'k1', 'w3': 'fl'})
        used = set()

        def X(name):
            o = plan.get(name)
            used.add(name)
            return ops.get(o)
        kmlate = cfg.get('kmlate', 1) and not cfg.get('nopub')
        if kmlate:
            ops['n0'] = lambda: (A.wl("kr"), A.vmem(f"buffer_store_dword v{TT}, v{vL4}, {WS}, s{sT+8} offen sc1", "km"))
            ops['n1'] = lambda: A.vmem(f"buffer_store_dword v{TT+1}, v{vL4}, {WS}, s{sT+8} offen offset:256 sc1", "km")
            C0, C1 = VB + 2, VB + 10
            gap(Q(0, 1), lambda: A.ds(f"ds_read2_b32 {vr(TT,2)}, v{vQW} offset0:64 offset1:200", "kr"), X('g0'))
            gap(Q(0, 0), kl[0][0], X('g1'))
            gap(Q(1, 0), kl[0][1], X('g2'))
            gap(Q(1, 1), None if last else f"s_cmp_le_u32 s{sF0}, s{sNeed}\ns_cbranch_scc1 {slowlab}\n{slowlab}_ret:")
            gap(K(1, 0), f"s_mov_b32 m0, s{sM0K}", X('g4'))
            ops['pv'] = f"v_mov_b32 v{TT+3}, s{sT+11}"
            ops['pg'] = lambda: A.vmem(f"buffer_store_dword v{TT+3}, v{vZ+1}, {WS}, s{sProg} offen sc1", "prog")
        else:
          gap(Q(0, 1), X('g0'))
          gap(Q(0, 0), kl[0][0], f"v_mov_b32 v{TT}, s{sT+11}")
          gap(Q(1, 0), kl[0][1], f"v_mov_b32 v{C0}, v{VB+2}")
          gap(Q(1, 1), None if last else f"s_cmp_le_u32 s{sF0}, s{sNeed}\ns_cbranch_scc1 {slowlab}\n{slowlab}_ret:")
          gap(K(1, 0), f"s_mov_b32 m0, s{sM0K}", f"v_mov_b32 v{C1}, v{VB+10}")
        if not last:
            stamp(A, cfg, 'b0')
        A.wl("gw")
        A("s_barrier")
        if not last:
            stamp(A, cfg, 'b1')
        pop(mfr)()
        gap(K(1, 1), pop(mfr), X('g5'))
        gap(K(0, 0), pop(mfr), lambda: A.wl(("sb", 0)))
        gap(K(0, 1), pop(mfr), X('g7'))
        A.wl(("mf", 2))
        if not last:
            stamp(A, cfg, 'mf')
        kxr, fill = [], []
        if not last:
            fill = pairfold(AQ)
            kxr = [lambda t=t, a=a: A.ds(f"ds_read_b128 {vr(KX+8*t+4*a,4)}, v{vKX} offset:{t*2048+a*256}", "kxf")
                   for t in range(4) for a in range(2)]
        z = [f"v_mov_b64 {vr(r,2)}, 0" for r in (AV, AV + 2)]
        ds = {0: pop(mfr), 1: pop(mfr), 2: kl[2][0], 3: kl[2][1], 4: pop(kxr), 5: pop(kxr), 6: kl[4][0], 7: kl[4][1], 10: kl[6][0], 11: kl[6][1]}
        wt = {1: ("mf", 4), 5: ("mf", 7)}
        for n in range(12):
            i, tau = 2 + n // 2, (n + 1) & 1 if (2 + n // 2) % 2 == 0 else n & 1
            it = [ds.get(n), X(f'q{n}')]
            if n in wt:
                it.append(lambda n=n: A.wl(wt[n]))
            if n == 11:
                it.append(lambda: A.wl(("sb", 2)))
            gap(Q(i, tau), *it)
        if not last:
            stamp(A, cfg, 'q')
        for n in range(12):
            i, tau = 2 + n // 2, (n + 1) & 1 if (2 + n // 2) % 2 == 0 else n & 1
            it = []
            if n >= 1:
                it.append(pop(fill))
            if n == 7 and not last:
                it.append(lambda: A.ds(f"ds_write2_b32 v{vQW}, v{AQ}, v{AQ+1} offset0:0 offset1:136", "qw"))
            elif n in (1, 2, 5, 6, 9, 10):
                it.append(pop(kxr))
            if n == 3:
                it.append(lambda: A.wl(("sb", 6)))
            it.append(X(f'k{n}'))
            if n in (9, 10):
                it.append(pop(z))
            gap(K(i, tau), *it)
        assert not kxr and not fill and not mfr and not z
        if not last:
            stamp(A, cfg, 'k')
        mf = [lambda t=t, tau=tau: smf(A, AV + 4 * tau, MF + 4 * t, RFF[('V', tau, t)]) for t in range(8) for tau in range(2)]
        pub = [lambda: A.vmem(f"buffer_store_dword v{AK}, v{vL4}, {WS}, s{sKM} offen sc1", "km"),
               lambda: A.vmem(f"buffer_store_dword v{AK+1}, v{vL4}, {WS}, s{sKM} offen offset:256 sc1", "km")]
        if cfg.get('nopub') or (kmlate and not last):
            pub = []
        return mf, pub, X, slowlab


    def house():
        A(f"""
        s_mov_b32 s{sT+4}, s{sMO}
        s_mov_b32 s{sT+5}, s{sMRs}
        s_mov_b32 s{sT+3}, s{sG}
        s_mov_b32 s{sT+6}, s{sRL}
        s_add_u32 s{sT+7}, s{sRL}, 0x1000
        s_mov_b32 s{sT+9}, 0
        s_mov_b32 s{sT+10}, 0
        s_mov_b32 s{sT+8}, s{sKM}
        s_mov_b32 s{sT+11}, s{sStep}
        s_add_u32 s{sStep}, s{sStep}, 1
        s_mov_b32 s{sPR}, s{sP}
        s_mov_b32 s{sPR+1}, s{sP+1}
        s_mov_b32 s{sMRs}, s{sMO}
        s_add_u32 s{sP}, s{sP}, 0x40000
        s_bitset0_b32 s{sP}, 20
        s_add_u32 s{sP+1}, s{sP}, s{sPb}
        s_add_u32 s{sRL}, s{sRL}, 0x40000
        s_bitset0_b32 s{sRL}, 20
        s_add_u32 s{sMO}, s{sMO}, 0x2000
        s_bitset0_b32 s{sMO}, 15
        s_add_u32 s{sG}, s{sG}, 0x2000
        s_bitset0_b32 s{sG}, 15
        s_add_u32 s{sKXo}, s{sKXo}, 0x40000
        s_add_u32 s{sVXb}, s{sVXb}, 0x40000
        s_and_b32 s{sT}, s{sM0K}, 0x2000
        s_sub_u32 s{sVXo}, s{sVXb}, s{sT}
        s_add_u32 s{sPF}, s{sPF}, 0x40000
        s_add_u32 s{sKM}, s{sKM}, 0x40000
        s_xor_b32 s{sM0K}, s{sM0K}, 0x2000
        s_add_u32 s{sT}, s{sStep}, 1
        s_lshr_b32 s{sNeed}, s{sT}, 2
        s_add_u32 s{sT}, s{sStep}, 2
        s_and_b32 s{sT}, s{sT}, 3
        s_lshl_b32 s{sT}, s{sT}, 7
        s_add_u32 s{sFLo}, s{sFLc}, s{sT}
        """)

    def rload(u, s0):
        A(f"buffer_load_dwordx4 {vr(MF+4*u,4)}, v{vL16}, {WS}, s{s0+u//4} offen offset:{(u%4)*1024} sc1")

    def rround():
        for u in range(8):
            rload(u, sT + 6)
    A(f"{L}:\ns_branch {Lg}_compute")
    A(".p2align 6")
    A.label(Lg)
    house()
    pre_step(A)
    A.nop(dA)
    stamp(A, cfg, 'r0')
    rround()
    stamp(A, cfg, 'ri')
    A.label(Lg + "_red")
    nr = cfg.get('nr', 4)
    for u in range(nr):
        rload(u, sT + 6)
    for u in range(8):
        A(f"s_waitcnt vmcnt({7 - u + min(8, nr + u)})")
        A(f"v_mfma_f32_16x16x32_bf16 {vr(TT,4)}, {vr(vSEL,4)}, {vr(MF+4*u,4)}, {'0' if u==0 else vr(TT,4)}")
        if nr + u < 8:
            rload(nr + u, sT + 6)
    stamp(A, cfg, 'rm')
    A(f"""
    s_add_u32 s{sT+9}, s{sT+9}, 1
    s_cmp_gt_u32 s{sT+9}, 64
    s_cbranch_scc1 {Lg}_nan
    s_nop 4
    v_cmp_u_f32 vcc, v{TT}, v{TT}
    v_cvt_pk_bf16_f32 v{TT}, v{TT}, v{TT+1}
    v_cvt_pk_bf16_f32 v{TT+1}, v{TT+2}, v{TT+3}
    s_cbranch_vccnz {Lg}_red
    {Lg}_ok:
    buffer_store_dwordx2 {vr(TT,2)}, v{vRS}, {WS}, s{sT+4} offen{st}
    """)
    stamp(A, cfg, 'r1')
    A(f"""
    v_mov_b32 v{TT+2}, -1
    v_mov_b32 v{TT+3}, -1
    buffer_store_dwordx2 {vr(TT+2,2)}, v{vRS}, {WS}, s{sT+5} offen{st}
    {Lg}_bar:
    s_waitcnt lgkmcnt(0)
    s_barrier
    """)
    stamp(A, cfg, 6)
    A.nop(dB)
    G = MF

    def ground():
        A(f"buffer_load_dwordx4 {vr(G,4)}, v{vL16}, {WS}, s{sT+3} offen sc1")
        A(f"buffer_load_dwordx4 {vr(G+4,4)}, v{vL16}, {WS}, s{sT+3} offen offset:1024 sc1")
    if cfg.get('gmask', 1):
        mA, mB = sT, 12 + 40
        ground()
        hop_addr(A)
        A(f"s_mov_b64 s[{mA}:{mA+1}], -1\ns_mov_b64 s[{mB}:{mB+1}], -1")
        A.nop(dB2)
        depth = cfg.get('gdepth', 3)
        for _ in range(depth - 2):
            ground()
            A.nop(dB2)
        A(f"""
        {Lg}_poll:
        s_mov_b64 exec, s[{mA}:{mA+1}]
        buffer_load_dwordx4 {vr(G,4)}, v{vL16}, {WS}, s{sT+3} offen sc1
        s_mov_b64 exec, s[{mB}:{mB+1}]
        buffer_load_dwordx4 {vr(G+4,4)}, v{vL16}, {WS}, s{sT+3} offen offset:1024 sc1
        s_mov_b64 exec, -1
        s_add_u32 s{sT+10}, s{sT+10}, 1
        s_cmp_gt_u32 s{sT+10}, 0x400000
        s_cbranch_scc1 L_end
        s_waitcnt vmcnt({2*depth-1})
        v_max3_u32 v{TT}, v{G}, v{G+1}, v{G+2}
        v_max_u32 v{TT}, v{TT}, v{G+3}
        s_waitcnt vmcnt({2*depth-2})
        v_max3_u32 v{TT+1}, v{G+4}, v{G+5}, v{G+6}
        v_cmp_eq_u32 s[{mA}:{mA+1}], -1, v{TT}
        v_max_u32 v{TT+1}, v{TT+1}, v{G+7}
        v_cmp_eq_u32 s[{mB}:{mB+1}], -1, v{TT+1}
        s_or_b64 vcc, s[{mA}:{mA+1}], s[{mB}:{mB+1}]
        s_cbranch_scc1 {Lg}_poll
        """)
    else:
        ground()
        hop_addr(A)
        A.nop(dB2)
        A.label(Lg + "_poll")
        ground()
        A(f"""
        s_add_u32 s{sT+10}, s{sT+10}, 1
        s_cmp_gt_u32 s{sT+10}, 0x400000
        s_cbranch_scc1 L_end
        s_waitcnt vmcnt(3)
        v_max3_u32 v{TT}, v{G}, v{G+1}, v{G+2}
        s_waitcnt vmcnt(2)
        v_max3_u32 v{TT+1}, v{G+3}, v{G+4}, v{G+5}
        v_max3_u32 v{TT}, v{TT}, v{G+6}, v{G+7}
        v_max_u32 v{TT}, v{TT}, v{TT+1}
        v_cmp_eq_u32 vcc, -1, v{TT}
        s_cbranch_vccnz {Lg}_poll
        """)
    A(f"""
    v_readfirstlane_b32 s{sF0}, v{vFL}
    """)
    stamp(A, cfg, 7)
    if cfg.get('diag'):
        A("s_waitcnt lgkmcnt(0)")
        for k in range(len(cfg['diag'])):
            A(f"v_writelane_b32 v{TT+3}, s{12+2*k}, {k}")
        A(f"v_writelane_b32 v{TT+3}, s{sT+9}, 30")
        A(f"v_writelane_b32 v{TT+3}, s{sT+10}, 31")
        A(f"""
        s_lshl_b32 s{sT}, s{sStep}, 7
        s_lshl_b32 s{sT+1}, s{S_ID}, 2
        s_add_u32 s{sT+1}, s{sT+1}, s{S_W}
        s_lshl_b32 s{sT+1}, s{sT+1}, 13
        s_add_u32 s{sT}, s{sT}, s{sT+1}
        s_add_u32 s{sT}, s{sT}, {DIAG - 128:#x}
        v_lshrrev_b32 v{TT}, 2, v{vL16}
        s_mov_b32 exec_hi, 0
        buffer_store_dword v{TT+3}, v{TT}, {WS}, s{sT} offen
        s_mov_b64 exec, -1
        """)
    A(f"""
    {Lg}_compute:
    ds_write_b128 v{GW}, {vr(G,4)} offset:{L_MEM}
    s_cmp_eq_u32 s{sStep}, 63
    ds_write_b128 v{GW}, {vr(G+4,4)} offset:{L_MEM+1024}
    s_cbranch_scc1 {Lg}_last
    """)
    A.lg = ["gw", "gw"]
    A.vm = ["poll"] * 4
    stamp(A, cfg, 0)
    mf, pub, X, slowlab = qkv_phases(False)
    pop(mf)()
    pop(mf)()
    A("\n".join(pairfold(AK)))
    A.ds(f"ds_write2_b32 v{vQW}, v{AK}, v{AK+1} offset0:64 offset1:200", "kw")
    stamp(A, cfg, 'kw')
    nv1, nv2 = cfg.get('nv1', 4), cfg.get('nv2', 4)
    for i in range(nv1):
        gap(pop(mf), pop(pub), X(f'w{i}'))
    stamp(A, cfg, 'v1')
    A.wl()
    A("s_barrier")
    stamp(A, cfg, 1)
    qr = [lambda u=u: A.ds(f"ds_read_b128 {vr(AQ+4*u,4)}, v{vTQ} offset:{u*64}", ("qf", u)) for u in range(4)]
    kr = [lambda u=u: A.ds(f"ds_read_b128 {vr(KX+4*u,4)}, v{vTK} offset:{u*64}", ("kf", u)) for u in range(4)]
    pop(qr)()
    pop(qr)()
    S0, S1, SM = MF, MF + 4, MF + 8
    O0, O1, SU = MF + 12, MF + 16, MF + 20
    for i in range(nv2):
        gap(pop(mf), pop(qr), X(f'x{i}'))
    assert 2 + nv1 + nv2 >= 10 and not qr
    stamp(A, cfg, 'v2')
    zero = [f"v_mov_b64 {vr(r,2)}, 0" for r in range(O0, O0 + 8, 2)]
    A.wl(("qf", 1))
    A.wv("poll")

    def xs(u, a):
        c = "0" if u == 0 else vr(S0 + 4 * a, 4)
        return lambda: A(f"v_mfma_f32_16x16x32_bf16 {vr(S0+4*a,4)}, {vr(KX+8*u+4*a,4)}, {vr(AQ+4*u,4)}, {c}")

    def ms(u):
        c = "0" if u == 0 else vr(SM, 4)
        return lambda: A(f"v_mfma_f32_16x16x32_bf16 {vr(SM,4)}, {vr(KX+4*u,4)}, {vr(AQ+4*u,4)}, {c}")
    gap(xs(0, 0), pop(kr), pop(zero))
    gap(xs(0, 1), pop(kr), pop(zero))
    gap(xs(1, 0), pop(kr), pop(zero))
    gap(xs(1, 1), pop(kr), lambda: A.wl(("qf", 3)))
    gap(xs(2, 0), pop(zero))
    vfix = [lambda: A.wv("vx"), f"v_mov_b64 {vr(VB+4,2)}, {vr(VB+2,2)}", f"v_mov_b64 {vr(VB+12,2)}, {vr(VB+10,2)}"]
    if cfg.get('vlate', 1):
        gap(xs(2, 1))
        gap(xs(3, 0))
    else:
        gap(xs(2, 1), pop(vfix), pop(vfix))
        gap(xs(3, 0), pop(vfix))
    gap(xs(3, 1), lambda: A.wl(("kf", 3)), f"v_xor_b32 v{vKX}, 0x2000, v{vKX}")
    stamp(A, cfg, 'sx')
    wl_ = ldsf(('O', 0, 0), KX + 16, "wo0") + ldsf(('O', 0, 1), KX + 24, "wo0") + ldsf(('O', 2, 0), KX, "wo2") + ldsf(('O', 2, 1), KX + 8, "wo2")
    m_, t_ = TT, TT + 1
    OD = f"s[{sODD}:{sODD+1}]"
    gap(ms(0), pop(wl_))
    gap(ms(1), pop(wl_))
    gap(ms(2), pop(wl_), f"v_max3_f32 v{m_}, v{S0}, v{S0+1}, v{S0+2}")
    gap(ms(3), pop(wl_), f"v_max3_f32 v{t_}, v{S0+3}, v{S1}, v{S1+1}")
    gap(pop(mf), pop(wl_), f"v_max3_f32 v{m_}, v{m_}, v{S1+2}, v{S1+3}")
    gap(pop(mf), pop(wl_), f"v_cndmask_b32 v{S0}, v{S0}, v{S0+2}, {OD}")
    stamp(A, cfg, 2)
    sm = f"""
    v_max3_f32 v{t_}, v{t_}, v{SM}, v{SM+1}
    v_max3_f32 v{m_}, v{m_}, v{SM+2}, v{SM+3}
    v_max_f32 v{m_}, v{m_}, v{t_}
    v_mov_b32 v{t_}, v{m_}
    X
    v_cndmask_b32 v{S0+1}, v{S0+1}, v{S0+3}, {OD}
    v_permlane32_swap_b32 v{m_}, v{t_}
    v_max_f32 v{m_}, v{m_}, v{t_}
    v_mov_b32 v{t_}, v{m_}
    X
    v_cndmask_b32 v{S1}, v{S1}, v{S1+2}, {OD}
    v_permlane16_swap_b32 v{m_}, v{t_}
    v_max_f32 v{m_}, v{m_}, v{t_}
    v_mul_f32 v{m_}, s{sC}, v{m_}
    X
    v_cndmask_b32 v{S1+1}, v{S1+1}, v{S1+3}, {OD}
    v_fma_f32 v{S0}, v{S0}, s{sC}, -v{m_}
    v_fma_f32 v{S0+1}, v{S0+1}, s{sC}, -v{m_}
    X
    v_cndmask_b32 v{SM}, v{SM}, v{SM+2}, {OD}
    v_cndmask_b32 v{SM+1}, v{SM+1}, v{SM+3}, {OD}
    v_exp_f32 v{S0}, v{S0}
    v_exp_f32 v{S0+1}, v{S0+1}
    v_fma_f32 v{S1}, v{S1}, s{sC}, -v{m_}
    v_fma_f32 v{S1+1}, v{S1+1}, s{sC}, -v{m_}
    v_fma_f32 v{SM}, v{SM}, s{sC}, -v{m_}
    v_fma_f32 v{SM+1}, v{SM+1}, s{sC}, -v{m_}
    v_exp_f32 v{S1}, v{S1}
    v_exp_f32 v{S1+1}, v{S1+1}
    v_exp_f32 v{SM}, v{SM}
    v_exp_f32 v{SM+1}, v{SM+1}
    """
    for ln in sm.strip().split("\n"):
        m_after_mov = A.lines[-1].startswith("v_mov_b32")
        ln = ln.strip()
        if ln == "X":
            if mf:
                gap(pop(mf), pop(wl_))
            elif wl_:
                pop(wl_)()
            elif m_after_mov:
                A("s_nop 0")
        else:
            A(ln)
    assert not mf and not wl_
    for f in vfix:
        emit(A, f)
    vc = v_convert()
    P = TT
    A(f"""
    v_cvt_pk_bf16_f32 v{P}, v{S0}, v{S0+1}
    v_cvt_pk_bf16_f32 v{P+2}, v{S1}, v{S1+1}
    v_cvt_pk_bf16_f32 v{S0+2}, v{SM}, v{SM+1}
    {vc[0]}
    v_cndmask_b32 v{P+1}, 0, v{S0+2}, s[{sEVL}:{sEVL+1}]
    v_cndmask_b32 v{P+3}, 0, v{S0+2}, s[{sODL}:{sODL+1}]
    {vc[1]}
    {vc[2]}
    """)
    stamp(A, cfg, 3)
    WA = MF
    A(f"v_mfma_f32_16x16x32_bf16 {vr(SU,4)}, {vr(P,4)}, {vr(vONE,4)}, 0")
    A("\n".join(vc[3:6]))
    smf(A, O0, P, Reg('v', VB))
    A("\n".join(vc[6:8]))
    A("\n".join(fold(SU)))
    smf(A, O1, P, Reg('v', VB + 8))
    A(f"v_rcp_f32 v{SU}, v{SU}\nv_rcp_f32 v{SU+2}, v{SU+2}")
    A("\n".join(fold(O0)))
    A(f"v_mul_f32 v{O0}, v{O0}, v{SU}\nv_mul_f32 v{O0+2}, v{O0+2}, v{SU+2}")
    A(f"v_mov_b64 {vr(WA,2)}, 0\nv_mov_b64 {vr(WA+2,2)}, 0")
    A("\n".join(fold(O1)))
    A(f"v_mul_f32 v{O1}, v{O1}, v{SU}\nv_mul_f32 v{O1+2}, v{O1+2}, v{SU+2}")
    A(f"v_cvt_pk_bf16_f32 v{TT}, v{O0}, v{O1}\nv_cvt_pk_bf16_f32 v{TT+1}, v{O0+2}, v{O1+2}")
    A.ds(f"ds_write2_b32 v{vOW}, v{TT}, v{TT+1} offset0:0 offset1:80", "ow")
    stamp(A, cfg, 'ow')
    A("\n".join(f"v_mov_b64 {vr(r,2)}, 0" for r in range(WA + 4, WA + 32, 2)))
    A.wl("ow")
    A("s_barrier")
    stamp(A, cfg, 4)
    OA = AQ
    for t in range(2):
        A.ds(f"ds_read_b128 {vr(OA+4*t,4)}, v{vTO} offset:{t*128}", ("of", t))
    wol = ldsf(('O', 4, 0), AK, "wo4") + ldsf(('O', 4, 1), AV, "wo4") + ldsf(('O', 6, 0), KX + 16, "wo6") + ldsf(('O', 6, 1), KX + 24, "wo6")
    npre = cfg.get('npre', 2)
    for _ in range(npre):
        pop(wol)()
    loc = {('O', 0, 0): Reg('v', KX + 16), ('O', 0, 1): Reg('v', KX + 24), ('O', 2, 0): Reg('v', KX), ('O', 2, 1): Reg('v', KX + 8),
           ('O', 4, 0): Reg('v', AK), ('O', 4, 1): Reg('v', AV), ('O', 6, 0): Reg('v', KX + 16), ('O', 6, 1): Reg('v', KX + 24)}
    seq = [(j, t) for j in range(8) for t in range(2)]
    tails = []
    for j in range(8):
        x = WA + 4 * j
        d = WA + 16 * (j // 4) + (j % 4)
        it = fold(x) + [f"v_cvt_pk_bf16_f32 v{d}, v{x}, v{x+2}"]
        if j % 4 == 3:
            b = j // 4
            it.append(lambda b=b: A.vmem(f"buffer_store_dwordx4 {vr(WA+16*b,4)}, v{vPS}, {WS}, s{sP+b} offen{st}", "ps"))
        tails.append((2 * j + 3, it))
    pend = []
    A.wl(("of", 1))
    for i, (j, t) in enumerate(seq):
        key = ('O', j, t)
        while tails and tails[0][0] <= i:
            pend += tails.pop(0)[1]
        it = []
        if wol and (len(wol) > 4 or i >= 1):
            it.append(pop(wol))
        if i == 7:
            it.append(lambda: A.wl("wo4"))
        if i == 11:
            it.append(lambda: A.wl("wo6"))
        smf(A, WA + 4 * j, OA + 4 * t, loc.get(key) or RFF[key])
        for f in it:
            emit(A, f)
        n = 2 if (i & 1) else 1
        while pend and (n > 0 or not isvalu(pend[0])):
            f = pend.pop(0)
            emit(A, f)
            n -= 1
        stamp(A, cfg, f'w{i}')
    n = 2
    for f in pend:
        emit(A, f); n += 1
    A.nop(max(0, 8 - n))
    for f in tails.pop(0)[1]:
        emit(A, f)
    assert not tails
    stamp(A, cfg, 5)
    A(f"s_cmp_lg_u32 s{S_W}, 0\ns_cbranch_scc1 {Lg}_other\ns_branch {Lg}")
    A.label(Lg + "_last")
    if cfg.get('tot'):
        A(f"""
        s_memtime s[16:17]
        s_memrealtime s[18:19]
        s_waitcnt lgkmcnt(0)
        s_sub_u32 s16, s16, s12
        s_sub_u32 s18, s18, s14
        v_mov_b32 v{TT}, s16
        v_mov_b32 v{TT+1}, s18
        s_lshl_b32 s16, s{S_ID}, 3
        s_add_u32 s16, s16, 0x11c000
        buffer_store_dwordx2 {vr(TT,2)}, v{vZ}, {WS}, s16 offen
        """)
    A.lg = ["gw", "gw"]
    A.vm = ["poll"] * 4
    mf, pub, side, _ = qkv_phases(True)
    weave(A, mf, pairfold(AK) + pub, per=1, lead=2)
    A.nop(8)
    A("\n".join(v_convert()))
    for f in v_publish(sKM):
        emit(A, f)
    A(f"""
    v_mov_b32 v{TT}, 64
    s_waitcnt vmcnt(0)
    s_barrier
    buffer_store_dword v{TT}, v{vZ+1}, {WS}, s{sProg} offen sc1
    s_waitcnt vmcnt(0)
    s_branch L_end
    """)
    A.label(Lg + "_other")
    pre_step(A)
    house()
    A(f"s_branch {Lg}_bar")
    A(f"""
    {slowlab}:
    s_add_u32 s{sT}, s{sStep}, 1
    s_and_b32 s{sT}, s{sT}, 3
    s_lshl_b32 s{sT}, s{sT}, 7
    s_add_u32 s{sT}, s{sT}, s{sFLc}
    {slowlab}_l:
    {GUARD}
    buffer_load_dword v{vFL}, v{vZ}, {WS}, s{sT} offen sc1
    s_waitcnt vmcnt(0)
    v_readfirstlane_b32 s{sF0}, v{vFL}
    s_cmp_le_u32 s{sF0}, s{sNeed}
    s_cbranch_scc1 {slowlab}_l
    s_branch {slowlab}_ret
    {Lg}_nan:
    {GUARD}
    s_mov_b32 s{sT+2}, {SENT_P:#x}
    s_mov_b64 s[{sT}:{sT+1}], 0
    s_waitcnt vmcnt(0)
    """)
    for i in range(32):
        A(f"v_cmp_eq_u32 vcc, s{sT+2}, v{MF+i}\ns_or_b64 s[{sT}:{sT+1}], s[{sT}:{sT+1}], vcc")
    A(f"""
    s_cmp_eq_u64 s[{sT}:{sT+1}], 0
    s_cbranch_scc1 {Lg}_acc
    """)
    rround()
    A(f"s_branch {Lg}_red\n{Lg}_acc:")
    for u in range(8):
        A(f"v_mfma_f32_16x16x32_bf16 {vr(TT,4)}, {vr(vSEL,4)}, {vr(MF+4*u,4)}, {'0' if u==0 else vr(TT,4)}")
    A(f"""
    s_nop 7
    v_cvt_pk_bf16_f32 v{TT}, v{TT}, v{TT+1}
    v_cvt_pk_bf16_f32 v{TT+1}, v{TT+2}, v{TT+3}
    v_min_u32 v{TT}, -2, v{TT}
    v_min_u32 v{TT+1}, -2, v{TT+1}
    s_branch {Lg}_ok
    """)


def chain(A, cfg):
    chain_startup(A, cfg)
    A(f"s_mov_b32 s{sT+8}, s{sKM}\ns_mov_b32 s{sT+11}, 0")
    A(f"s_cmp_lt_u32 s{sT+7}, 32\ns_cbranch_scc1 Lchain_slow")
    if cfg.get('tot'):
        A("s_memtime s[12:13]\ns_memrealtime s[14:15]\ns_waitcnt lgkmcnt(0)")
    if cfg.get('forceslow'):
        A("s_branch Lchain_slow")
    chain_loop(A, cfg, 'fast')
    chain_loop(A, cfg, 'slow')
```

```python
from common import *
import common

WS = WSR
sDa, sDb = 60, 64
sOa, sOb = 68, 69
sW10 = 70
sSt, sFl, sXo, sI = 71, 72, 73, 74
sT = 76
sR = [88, 89, 90, 91, 92, 93, 10, 11]


def wstamp(A, cfg, k, vtmp=126, wave=0, cyc=False):
    if cfg.get('wdiag'):
        lab = A.uid("Lst")
        A(f"""
        s_cmp_lg_u32 s{S_W}, {wave}
        s_cbranch_scc1 {lab}
        {'s_memtime' if cyc else 's_memrealtime'} s[96:97]
        s_lshl_b32 s98, s{S_ID}, 7
        s_add_u32 s98, s98, {0x110000 + 4*k:#x}
        s_waitcnt lgkmcnt(0)
        v_mov_b32 v{vtmp}, s96
        v_mov_b32 v{vtmp+1}, 0
        buffer_store_dword v{vtmp}, v{vtmp+1}, {WS}, s98 offen
        {lab}:
        """)


vSolo, vT0, vSt, vZero, vOne, vXr, vL16, vDm = 3, 4, 6, 8, 9, 10, 11, 12
FB = 16
SG = 32
ACC = 48


def wait_checked(A, uid, load, want, lds):
    A(f"""
    {uid}_o:
    s_cmp_lg_u32 s{S_W}, 0
    s_cbranch_scc1 {uid}_x
    s_mov_b32 s{sT+1}, 0
    {uid}:
    {GUARD}
    {load}
    s_waitcnt vmcnt(0)
    v_cmp_ne_u32 vcc, {want}, v112
    s_cbranch_vccz {uid}_y
    s_sleep 4
    s_add_u32 s{sT+1}, s{sT+1}, 1
    s_cmp_lt_u32 s{sT+1}, 32
    s_cbranch_scc1 {uid}
    {uid}_y:
    v_mov_b32 v112, s{sT+1}
    v_mov_b32 v114, {lds:#x}
    ds_write_b32 v114, v112
    {uid}_x:
    v_mov_b32 v114, {lds:#x}
    s_waitcnt vmcnt(0) lgkmcnt(0)
    s_barrier
    ds_read_b32 v112, v114
    s_waitcnt lgkmcnt(0)
    v_readfirstlane_b32 s{sT+1}, v112
    s_cmp_lt_u32 s{sT+1}, 32
    s_cbranch_scc1 {uid}_d
    """)
    common.validate(A, 116)
    A(f"s_barrier\ns_branch {uid}_o\n{uid}_d:")


def ln_flag_base(A, dst, off=0):
    A(f"s_lshr_b32 s{dst}, s{S_T}, 7\ns_and_b32 s{dst}, s{dst}, 32\ns_add_u32 s{dst}, s{dst}, {F_LN+off:#x}")


def wait_ln(A, uid, off=0, checked=False):
    A("v_and_b32 v113, 7, v0\nv_lshlrev_b32 v113, 2, v113")
    ln_flag_base(A, sT, off)
    load = f"buffer_load_dword v112, v113, {WS}, s{sT} offen sc1"
    if checked:
        wait_checked(A, uid, load, "0x01010101", 0x20000)
        return
    A(f"""
    s_cmp_lg_u32 s{S_W}, 0
    s_cbranch_scc1 {uid}_x
    {uid}:
    {GUARD}
    {load}
    s_waitcnt vmcnt(0)
    v_cmp_ne_u32 vcc, 0x01010101, v112
    s_cbranch_vccz {uid}_x
    s_sleep 8
    s_branch {uid}
    {uid}_x:
    s_waitcnt vmcnt(0)
    s_barrier
    """)


def ln_rows(A, cfg):
    A(f"""
    v_lshrrev_b32 v12, 3, v1
    v_and_b32 v13, 7, v1                   ; j
    s_lshl_b32 s{sT+2}, s{sT}, 16
    s_lshl_b32 s{sT+3}, s{S_W}, 14
    s_add_u32 s{sT+2}, s{sT+2}, s{sT+3}
    v_lshlrev_b32 v14, 10, v12
    v_lshl_add_u32 v14, v13, 4, v14
    v_add_u32 v14, s{sT+2}, v14            ; row*1024 + j*16
    v_add_u32 v128, 0x2000, v14
    """)
    for g in range(2):
        for i in range(8):
            A(f"buffer_load_dwordx4 {vr(32+32*g+4*i,4)}, v{14 if g == 0 else 128}, s[{S_X}:{S_X+3}], 0 offen offset:{i*128}")
    A(f"""
    s_lshl_b32 s{sT+2}, s{sT}, 16
    s_lshr_b32 s{sT+3}, s{S_W}, 1
    s_lshl_b32 s{sT+3}, s{sT+3}, 15
    s_add_u32 s{sT+2}, s{sT+2}, s{sT+3}
    s_and_b32 s{sT+3}, s{S_W}, 1
    s_lshl_b32 s{sT+3}, s{sT+3}, 8
    s_add_u32 s{sT+2}, s{sT+2}, s{sT+3}
    s_add_u32 s{sT+2}, s{sT+2}, {WS_XN:#x}
    v_lshrrev_b32 v15, 1, v13
    v_lshlrev_b32 v15, 10, v15
    v_and_b32 v16, 1, v13
    v_lshl_add_u32 v15, v16, 9, v15
    v_lshl_add_u32 v15, v12, 4, v15
    """)
    A(f"""
    v_mov_b32 v196, 0x7f817f81
    v_mov_b32 v197, 0x7f817f81
    v_mov_b32 v198, 0x7f817f81
    v_mov_b32 v199, 0x7f817f81
    v_mov_b32 v200, -1
    s_lshl_b32 s{sT+4}, s{sT}, 15
    s_lshl_b32 s{sT+5}, s{S_W}, 13
    s_add_u32 s{sT+4}, s{sT+4}, s{sT+5}
    s_add_u32 s{sT+4}, s{sT+4}, {PRING:#x}
    s_add_u32 s{sT+5}, s{sT+4}, 0x1000
    s_lshl_b32 s{sT+6}, s{sT}, 10
    s_lshl_b32 s{sT+7}, s{S_W}, 8
    s_add_u32 s{sT+6}, s{sT+6}, s{sT+7}
    s_add_u32 s{sT+6}, s{sT+6}, {MRING:#x}
    v_lshrrev_b32 v201, 2, v{vL16}
    """)
    ring = [f"buffer_store_dwordx4 v[196:199], v{vL16}, {WS}, s{sT+4+i//4} offen offset:{(i&3)*1024} sc1" for i in range(8)]
    ring.append(f"buffer_store_dword v200, v201, {WS}, s{sT+6} offen sc1")
    for g in range(2):
        A(f"s_waitcnt vmcnt({8 if g == 0 else 8})")
        layernorm8(A, 32 + 32 * g, 132 + 32 * g, 16)
        for i in range(8):
            A(f"s_add_u32 s{sT+3}, s{sT+2}, {i*4096}")
            A(f"buffer_store_dwordx4 {vr(132+32*g+4*i,4)}, v15, {WS}, s{sT+3} offen offset:{g*128} sc1")
    A("\n".join(ring))
    common.wait_zero(A, 116)
    ln_flag_base(A, sT + 4)
    A(f"""
    s_barrier
    s_add_u32 s{sT}, s{sT}, s{sT+4}
    buffer_store_byte v{vOne}, v{vSolo}, {WS}, s{sT} offen sc1
    """)
    wstamp(A, cfg, 5)
    A(f"s_mov_b32 s{sT+3}, {WS_H:#x}")
    for g in range(2):
        layernorm8(A, 132 + 32 * g, 32 + 32 * g, 16)
        for i in range(8):
            A(f"buffer_store_dwordx4 {vr(32+32*g+4*i,4)}, v{14 if g == 0 else 128}, {WS}, s{sT+3} offen offset:{i*128} sc1")
    A(f"""
    s_waitcnt vmcnt(0)
    s_barrier
    buffer_store_byte v{vOne}, v{vSolo}, {WS}, s{sT} offen offset:128 sc1
    """)


def xn_dma(A, slot):
    out = []
    for i in range(8):
        def f(i=i):
            A(f"s_add_u32 m0, s{sW10}, {slot*32768 + i*4096:#x}")
            A(f"s_add_u32 s{sT+8}, s{sXo}, s{sR[i]}")
            A.vmem(f"buffer_load_dwordx4 v{vL16}, {WS}, s{sT+8} offen lds", "xn")
        out.append(f)
    return out


def tile_loop(A, cfg, vtype):
    L = "L_p2v" if vtype else "L_p2k"
    A.label(L)

    def rd(par, u):
        A.ds(f"ds_read_b128 {vr(FB+4*(u&3),4)}, v{vXr} offset:{par*32768 + u*1024}", ("x", u & 3))

    def epilogue(acc):
        ins = []
        for ctl in range(2):
            for a in range(2):
                for i in range(4):
                    p, q = (8 * a + 2 * i, 8 * a + 2 * i + 1) if vtype else (8 * a + i, 8 * a + 4 + i)
                    ins.append(f"v_cvt_pk_bf16_f32 v{SG+8*ctl+4*a+i}, v{acc+16*ctl+p}, v{acc+16*ctl+q}")
                if not cfg.get('nost'): ins.append(lambda ctl=ctl, a=a: A.vmem(
                    f"buffer_store_dwordx4 {vr(SG+8*ctl+4*a,4)}, v{vSt+a}, {WS}, s{sSt} offen offset:{ctl*2048} sc1", "st"))
        return ins

    tight = []
    for par in range(2):
        acc = ACC + 32 * par
        epi = epilogue(ACC + 32 * (1 - par))
        dma = []
        for u in range(32):
            if u == 24:
                tl = A.uid("Ltight")
                if par == 1:
                    A(f"s_cmp_eq_u32 s{sI}, 0\ns_cbranch_scc1 {tl}")
                    tight.append(tl)
                if cfg.get('wdiag'):
                    A(f"""
                    s_memtime s[{sT}:{sT+1}]
                    s_waitcnt vmcnt(13) lgkmcnt(0)
                    s_memtime s[{sT+2}:{sT+3}]
                    s_barrier
                    s_waitcnt lgkmcnt(0)
                    s_memtime s[{sT+4}:{sT+5}]
                    s_sub_u32 s{sT}, s{sT+2}, s{sT}
                    s_add_u32 s94, s94, s{sT}
                    s_waitcnt lgkmcnt(0)
                    s_sub_u32 s{sT}, s{sT+4}, s{sT+2}
                    s_add_u32 s95, s95, s{sT}
                    """)
                else:
                    A("s_waitcnt vmcnt(13)\ns_barrier")
                A(f"""
                buffer_store_dword v117, v116, {WS}, s{sFl} offen sc1
                {tl}_ret:
                v_add_u32 v117, 1, v117
                s_add_u32 s{sSt}, s{sSt}, 0x100000
                v_mov_b32 v{vSt}, v112
                v_mov_b32 v{vSt+1}, v113
                """)
                A(f"s_xor_b32 s{sW10}, s{sW10}, 0x10000" if par == 1 else "")
                dma = xn_dma(A, 1 - par)
            A.wl(("x", u & 3))
            for ctl in range(2):
                w = ar((ctl * 32 + u) * 4, 4)
                x = vr(FB + 4 * (u & 3), 4)
                a_, b_ = (x, w) if vtype else (w, x)
                c = "0" if u == 0 else vr(acc + 16 * ctl, 16)
                A(f"v_mfma_f32_32x32x16_bf16 {vr(acc+16*ctl,16)}, {a_}, {b_}, {c}")
                if ctl == 0:
                    if u == 29 and par == 1:
                        A(f"v_xor_b32 v{vXr}, 0x10000, v{vXr}")
                    n = u + 3
                    rd(par if n < 32 else 1 - par, n & 31)
                    if dma:
                        dma.pop(0)()
                if u >= 1:
                    for _ in range(2):
                        if epi:
                            f = epi.pop(0)
                            f() if callable(f) else A(f)
            if u == 31:
                A(f"s_add_u32 s{sXo}, s{sXo}, 0x20000")
    A(f"""
    s_add_u32 s{sI}, s{sI}, 2
    s_cmp_lt_u32 s{sI}, 16
    s_cbranch_scc1 {L}
    """)
    A.nop(12)
    for f in epilogue(ACC + 32):
        f() if callable(f) else A(f)
    A(f"""
    s_waitcnt vmcnt(0) lgkmcnt(0)
    s_barrier
    v_mov_b32 v117, 16
    buffer_store_dword v117, v116, {WS}, s{sFl} offen sc1
    s_branch L_p2_done
    {tight[0]}:
    s_waitcnt vmcnt(0)
    s_barrier
    v_mov_b32 v116, v118
    buffer_store_dword v{vOne}, v116, {WS}, s{sFl} offen sc1
    s_branch {tight[0]}_ret
    """)


def p2(A, cfg):
    A.c("===== worker P2: K/V/Q projections (weights resident, tokens streamed) =====")
    A(f"""
    v_and_b32 v1, 63, v0
    v_lshlrev_b32 v{vL16}, 4, v1
    v_mov_b32 v{vZero}, 0
    v_mov_b32 v{vOne}, 1
    s_lshl_b32 s{sT}, s{S_W}, 6
    v_or_b32 v2, s{sT}, v1
    v_bfrev_b32 v{vSolo}, 1
    v_cmp_eq_u32 vcc, 0, v2
    s_nop 1
    v_cndmask_b32 v{vSolo}, v{vSolo}, v{vZero}, vcc
    s_mul_i32 s{sT}, s{S_ID}, 9363
    s_lshr_b32 s{sT}, s{sT}, 16                ; rank / 7
    s_mul_i32 s{sT+1}, s{sT}, 7
    s_sub_u32 s{sT+1}, s{S_ID}, s{sT+1}        ; rank % 7
    s_cmp_eq_u32 s{sT+1}, 6
    s_cbranch_scc1 L_p2_idle
    s_mul_i32 s{sT}, s{sT}, 6
    s_add_u32 s{sT}, s{sT}, s{sT+1}
    s_mov_b32 s{sT+11}, s{sT}
    s_lshr_b32 s{sT+2}, s{sT}, 2
    s_and_b32 s{sT+3}, s{sT}, 3                ; j
    s_mov_b32 s{sDa+2}, {512*4096*2:#x}
    s_mov_b32 s{sDa+3}, 0x20000
    s_mov_b32 s{sDb+2}, {512*4096*2:#x}
    s_mov_b32 s{sDb+3}, 0x20000
    s_sub_u32 s{sT+4}, s{sT+2}, 32
    s_lshl_b32 s{sT+4}, s{sT+4}, 1
    s_add_u32 s{sT+5}, s{sT+4}, 1
    s_cmp_lt_u32 s{sT+2}, 32
    s_cselect_b64 s[{sDa}:{sDa+1}], s[{S_WK}:{S_WK+1}], s[{S_WQ}:{S_WQ+1}]
    s_cselect_b64 s[{sDb}:{sDb+1}], s[{S_WV}:{S_WV+1}], s[{S_WQ}:{S_WQ+1}]
    s_cselect_b32 s{sT+4}, s{sT+2}, s{sT+4}
    s_cselect_b32 s{sT+5}, s{sT+2}, s{sT+5}
    s_cselect_b32 s{sT+7}, 1, 3
    s_cselect_b32 s{sT+9}, 2, 3
    s_lshl_b32 s{sOa}, s{sT+4}, 8
    s_lshl_b32 s{sOb}, s{sT+5}, 8
    s_cmp_lt_u32 s{S_W}, 2
    s_cselect_b32 s{sT+4}, s{sT+4}, s{sT+5}
    s_cselect_b32 s{sT+7}, s{sT+7}, s{sT+9}
    s_lshl_b32 s{sSt}, s{sT+7}, 24
    s_lshl_b32 s{sT+9}, s{sT+3}, 18
    s_add_u32 s{sSt}, s{sSt}, s{sT+9}
    s_lshl_b32 s{sT+9}, s{sT+4}, 13
    s_add_u32 s{sSt}, s{sSt}, s{sT+9}
    s_and_b32 s{sT+9}, s{S_W}, 1
    s_lshl_b32 s{sT+9}, s{sT+9}, 12
    s_add_u32 s{sSt}, s{sSt}, s{sT+9}
    s_sub_u32 s{sSt}, s{sSt}, 0x100000
    s_lshl_b32 s{sFl}, s{sT+11}, 7
    s_add_u32 s{sFl}, s{sFl}, {F_P2:#x}
    s_lshl_b32 s{sW10}, s{S_W}, 10
    s_lshl_b32 s{sXo}, s{sT+3}, 15
    s_add_u32 s{sXo}, s{sXo}, s{sW10}
    s_add_u32 s{sXo}, s{sXo}, {WS_XN:#x}
    s_mov_b32 s{sI}, 0
    s_mov_b32 s{sT+10}, s{sT+7}
    v_and_b32 v80, 15, v1              ; n
    v_lshrrev_b32 v81, 4, v1           ; g
    v_lshlrev_b32 v82, 2, v81
    v_xor_b32 v82, v80, v82
    v_lshlrev_b32 v82, 4, v82
    s_lshl_b32 s{sT}, s{S_W}, 2
    v_add_u32 v83, s{sT}, v81
    v_lshl_add_u32 v{vDm}, v83, 13, v82
    v_add_u32 v{vDm+1}, 0x20000, v{vDm}
    v_add_u32 v{vDm+2}, 0x40000, v{vDm}
    v_add_u32 v{vDm+3}, 0x60000, v{vDm}
    """)
    for p in range(8):
        A(f"s_lshl1_add_u32 s{sT}, s{sT+3}, {p}\ns_and_b32 s{sT}, s{sT}, 7\ns_lshl_b32 s{sR[p]}, s{sT}, 12" if not cfg.get('norot') else f"s_mov_b32 s{sR[p]}, {p*4096}")
    chunks = [(mh, t) for t in range(8) for mh in range(2)]

    def issue(ci):
        mh, t = chunks[ci]
        srd, so = (sDa, sOa) if mh == 0 else (sDb, sOb)
        A(f"s_lshl_b32 s{sT+8}, s{sR[t]}, 7\ns_add_u32 s{sT+8}, s{sT+8}, s{so}")
        for i in range(4):
            A(f"s_add_u32 m0, s{sW10}, {(2 + (ci & 7))*16384 + i*4096:#x}\ns_nop 0")
            A.vmem(f"buffer_load_dwordx4 v{vDm+i}, s[{srd}:{srd+3}], s{sT+8} offen lds", ("ch", ci))
    if cfg.get('zfirst', 1):
        common.wait_zero(A, 116)
        wstamp(A, cfg, 10)
    A.vm = []
    for ci in range(8):
        issue(ci)
    wstamp(A, cfg, 6)
    A(f"""
    v_lshrrev_b32 v87, 5, v1           ; hf
    v_lshrrev_b32 v82, 2, v80          ; r
    v_and_b32 v83, 3, v80              ; c
    v_lshl_add_u32 v84, v87, 3, v82
    v_lshlrev_b32 v84, 8, v84
    v_lshl_add_u32 v84, v82, 6, v84
    v_and_b32 v85, 1, v81
    v_lshl_add_u32 v84, v85, 5, v84
    v_lshl_add_u32 v84, v83, 3, v84
    s_and_b32 s{sT}, s{S_W}, 1
    s_lshl_b32 s{sT}, s{sT}, 7
    v_xor_b32 v{vT0}, s{sT}, v84
    v_xor_b32 v{vT0+1}, 64, v{vT0}
    v_and_b32 v88, 31, v1
    v_lshlrev_b32 v84, 10, v87
    v_lshl_add_u32 v84, v88, 4, v84
    s_cmp_eq_u32 s{sT+10}, 2
    s_cselect_b64 vcc, -1, 0
    s_movk_i32 s{sT+1}, 0x400
    s_cselect_b32 s{sT}, 512, s{sT+1}
    v_cndmask_b32 v112, v{vL16}, v84, vcc
    v_add_u32 v113, s{sT}, v112
    v_bfrev_b32 v{vSt}, 1
    v_bfrev_b32 v{vSt+1}, 1
    v_mov_b32 v{vXr}, v{vL16}
    """)
    A("v_mov_b32 v110, v112\nv_mov_b32 v111, v113")
    if not cfg.get('zfirst', 1):
        common.wait_zero(A, 116)
        wstamp(A, cfg, 10)
    ln_flag_base(A, sT)
    A(f"s_lshr_b32 s{sT+1}, s{sXo}, 16\ns_and_b32 s{sT+1}, s{sT+1}, 1\ns_add_u32 s{sT}, s{sT}, s{sT+1}")
    wait_checked(A, "L_p2_t0", f"buffer_load_ubyte v112, v{vZero}, {WS}, s{sT} offen sc1", "1", 0)
    A("s_barrier")
    wstamp(A, cfg, 7)
    A.vm = []
    for f in xn_dma(A, 0):
        f()
    A(f"s_add_u32 s{sXo}, s{sXo}, 0x20000")
    for ci in range(16):
        mh, t = chunks[ci]
        A.wv(("ch", ci))
        A("s_barrier")
        lab = A.uid("Lskw")
        A(f"s_cmp_{'ge' if mh == 0 else 'lt'}_u32 s{S_W}, 2\ns_cbranch_scc1 {lab}")
        sb = (2 + (ci & 7)) * 16384
        hi = sb & ~0xffff
        for ctl in range(2):
            A(f"v_add_u32 v86, {hi:#x}, v{vT0+ctl}")
            for kk in range(4):
                for hh in range(2):
                    A(f"ds_read_b64_tr_b16 {ar((ctl*32+4*t+kk)*4+2*hh,2)}, v86 offset:{sb-hi+kk*4096+hh*1024}")
        A("s_waitcnt lgkmcnt(0)")
        A.label(lab)
        if ci < 8:
            A("s_barrier")
            issue(ci + 8)
        if ci == 7:
            wstamp(A, cfg, 8)
    wstamp(A, cfg, 1)
    wait_ln(A, "L_p2_lnall", checked=True)
    A.vm = []
    for f in xn_dma(A, 1):
        f()
    A(f"s_add_u32 s{sXo}, s{sXo}, 0x20000")
    A(f"buffer_load_dword v119, v{vZero}, {WS}, 0 offen")
    for f in xn_dma(A, 2):
        f()
    A(f"""
    s_add_u32 s{sXo}, s{sXo}, 0x20000
    v_mov_b32 v112, v110
    v_mov_b32 v113, v111
    v_bfrev_b32 v116, 1
    v_mov_b32 v117, -1
    v_mov_b32 v118, v{vSolo}
    s_xor_b32 s{sW10}, s{sW10}, 0x10000
    """)
    for u in range(3):
        A.ds(f"ds_read_b128 {vr(FB+4*u,4)}, v{vXr} offset:{u*1024}", ("x", u))
    wstamp(A, cfg, 2)
    wstamp(A, cfg, 12, cyc=True)
    A('s_mov_b32 s94, 0\ns_mov_b32 s95, 0')
    lg0 = list(A.lg)
    A(f"s_cmp_eq_u32 s{sT+10}, 2\ns_cbranch_scc1 L_p2v")
    tile_loop(A, cfg, False)
    A.lg = list(lg0)
    tile_loop(A, cfg, True)
    A.label("L_p2_idle")
    ln_rows(A, cfg)
    wstamp(A, cfg, 4)
    A.label("L_p2_done")
    common.validate(A, 116)
    wstamp(A, cfg, 3)
    wstamp(A, cfg, 13, cyc=True)
    if cfg.get('wdiag'):
        A(f"v_mov_b32 v124, s94\nv_mov_b32 v125, s95\nv_mov_b32 v126, 0\ns_lshl_b32 s98, s{S_ID}, 7\ns_lshl3_add_u32 s98, s{S_W}, s98\ns_add_u32 s98, s98, {0x110000+64:#x}\nbuffer_store_dwordx2 v[124:125], v126, {WS}, s98 offen")


def worker(A, cfg):
    if cfg.get('wdiag'):
        A(f"s_lshl_b32 s98, s{S_ID}, 7\ns_add_u32 s98, s98, 0x110000\nv_mov_b32 v124, s94\nv_mov_b32 v125, 0\nbuffer_store_dword v124, v125, {WS}, s98 offen")
    wstamp(A, cfg, 9)
    p2(A, cfg)
    if cfg.get('stop') == 2:
        A("s_waitcnt vmcnt(0)\ns_branch L_end")
        return
    import worker2
    worker2.p345(A, cfg)
```

```python
import sys, json
from common import *
import chain as chain_mod
import common

HEADER = open('parallel_sum__memory_aug_recurrent_mem_tr__mixer_token_mlp__prompt.s.ref').read().split("; Override launch")[0]


def prologue(A, cfg):
    A(f"""
    s_cmp_ge_u32 s2, 256
    s_cbranch_scc1 L_end
    """)
    if cfg.get('wdiag'):
        A("s_memrealtime s[94:95]")
    build_srds(A)
    if cfg.get('wdiag'):
        A("s_mov_b32 s100, s94")
    DBG = f"s[{S_DBG}:{S_DBG+1}]"
    A(f"""
    s_mov_b32 s{S_SPIN}, 0
    s_getreg_b32 s{S_XCC}, hwreg(HW_REG_XCC_ID, 0, 4)
    {'s_xor_b32 s58, s58, ' + str(cfg['xccx']) if cfg.get('xccx') else ''}
    v_lshrrev_b32 v1, 6, v0
    v_and_b32 v2, 63, v0
    s_nop 0
    v_readfirstlane_b32 s{S_W}, v1
    s_add_u32 s{S_XCC}, s{S_XCC}, 1
    v_mov_b32 v16, 0
    s_cmp_lg_u32 s{S_W}, 0
    s_cbranch_scc1 L_role_wait
    s_cmp_ge_u32 s2, 8
    s_cbranch_scc1 L_role_wait
    """)
    if not cfg.get('chain_only'):
        A(f"""
        v_lshlrev_b32 v8, 4, v2
        v_mov_b32 v17, 0
        v_mov_b32 v18, 0
        v_mov_b32 v19, 0
        s_lshl_b32 s61, s2, 13
        s_add_u32 s62, s61, 0x1000
        """)
        for i in range(8):
            A(f"buffer_store_dwordx4 v[16:19], v8, {WSR}, s{61 + i//4} offen offset:{(i&3)*1024} sc1")
    A(f"""
    s_lshl_b32 s61, s2, 2
    v_mov_b32 v3, s61
    v_mov_b32 v4, 1
    s_waitcnt vmcnt(0)
    s_mov_b64 exec, 1
    global_store_dword v3, v4, {DBG} sc1
    s_mov_b64 exec, -1
    L_role_wait:
    s_lshr_b32 s60, s2, 3
    s_sub_u32 s61, s{S_XCC}, 1
    s_and_b32 s61, s61, 7
    s_lshl_b32 s61, s61, 5
    s_add_u32 s{S_ID}, s60, s61
    s_mov_b32 s{S_T}, 0
    L_dispatch:
    s_cmp_ge_u32 s{S_ID}, 32
    s_cbranch_scc1 L_worker
    """)


def zero_load(A, v):
    A(f"""
    v_mbcnt_lo_u32_b32 v{v+1}, -1, 0
    v_and_b32 v{v+1}, 7, v{v+1}
    v_lshlrev_b32 v{v+1}, 2, v{v+1}
    global_load_dword v{v}, v{v+1}, s[{S_DBG}:{S_DBG+1}] sc1
    """)


def announce(A, v):
    u = A.uid("Lann")
    A(f"""
    s_cmp_lg_u32 s{S_W}, 0
    s_cbranch_scc1 {u}
    s_lshr_b32 s3, s2, 3
    s_lshl_b32 s3, s3, 7
    s_and_b32 vcc_lo, s2, 7
    s_add_u32 s3, s3, vcc_lo
    s_add_u32 s3, s3, {F_TAB:#x}
    v_mov_b32 v{v}, s3
    v_mov_b32 v{v+1}, s{S_XCC}
    s_mov_b64 exec, 1
    buffer_store_byte v{v+1}, v{v}, {WSR}, 0 offen sc1
    s_mov_b64 exec, -1
    {u}:
    """)


def wait_zero(A, v):
    u = A.uid("Lwz")
    A(f"{u}:\n{GUARD}")
    zero_load(A, v)
    A(f"s_waitcnt vmcnt(0)\nv_cmp_ne_u32 vcc, 1, v{v}\ns_cbranch_vccnz {u}")
    announce(A, v)


def table_load(A, dst, t):
    A(f"""
    v_mbcnt_lo_u32_b32 v{t}, -1, 0
    v_lshlrev_b32 v{t}, 7, v{t}
    v_and_b32 v{t}, 0xf80, v{t}
    v_add_u32 v{t}, {F_TAB:#x}, v{t}
    buffer_load_dwordx2 {dst}, v{t}, {WSR}, 0 offen sc1
    """)


def validate(A, v, preloaded=False):
    u = A.uid("Lval")
    if preloaded:
        A(f"s_branch {u}_chk")
    A(f"{u}:\n{GUARD}")
    table_load(A, vr(v, 2), v + 2)
    A(f"s_waitcnt vmcnt(0)\n{u}_chk:")
    for b in range(8):
        A(f"v_bfe_u32 v{v+2+b}, v{v + b//4}, {8*(b&3)}, 5")
    A(f"""
    v_min3_u32 v{v+10}, v{v+2}, v{v+3}, v{v+4}
    v_min3_u32 v{v+10}, v{v+10}, v{v+5}, v{v+6}
    v_min3_u32 v{v+10}, v{v+10}, v{v+7}, v{v+8}
    v_min_u32 v{v+10}, v{v+10}, v{v+9}
    v_cmp_eq_u32 vcc, 0, v{v+10}
    s_cbranch_vccnz {u}
    s_mov_b32 s3, s{S_T}
    s_cmp_lg_u32 s{S_T}, 0
    s_cbranch_scc1 {u}_ok
    v_lshlrev_b32 v{v+10}, v{v+2}, 1
    """)
    for b in range(1, 8):
        A(f"v_lshlrev_b32 v{v+11}, v{v+2+b}, 1\nv_or_b32 v{v+10}, v{v+10}, v{v+11}")
    A(f"""
    v_cmp_ne_u32 vcc, 0x1fe, v{v+10}
    s_mov_b32 s3, 32
    s_cbranch_vccz {u}_ok
    s_lshr_b32 s60, s2, 3
    s_lshl_b32 s62, 1, s60
    s_sub_u32 s64, s62, 1
    s_or_b32 s66, s62, s64
    s_and_b32 s61, s2, 7
    s_mov_b32 s68, 0
    s_mov_b32 s69, 0
    s_mov_b32 s70, 0
    """)
    for b in range(8):
        A(f"""
        v_cmp_eq_u32 vcc, s{S_XCC}, v{v+2+b}
        s_cmp_gt_u32 s61, {b}
        s_cselect_b32 s74, s66, s64
        s_and_b32 s74, s74, vcc_lo
        s_bcnt1_i32_b32 s71, s74
        s_add_u32 s68, s68, s71
        v_cmp_eq_u32 vcc, 1, v{v+2+b}
        s_bcnt1_i32_b32 s71, vcc_lo
        s_add_u32 s69, s69, s71
        v_cmp_gt_u32 vcc, s{S_XCC}, v{v+2+b}
        s_bcnt1_i32_b32 s71, vcc_lo
        s_add_u32 s70, s70, s71
        """)
    A(f"""
    s_min_u32 s71, s69, 32                 ; c0
    s_sub_u32 s70, s70, s69
    s_add_u32 s70, s70, s71
    s_add_u32 s70, s70, s68
    s_sub_u32 s71, 256, s69
    s_add_u32 s71, s71, s68
    s_cmp_lt_u32 s68, 32
    s_cselect_b32 s71, s68, s71
    s_cmp_eq_u32 s{S_XCC}, 1
    s_cselect_b32 s{S_ID}, s71, s70
    s_or_b32 s{S_T}, s69, 0x1000
    v_mbcnt_lo_u32_b32 v0, -1, 0
    v_mbcnt_hi_u32_b32 v0, -1, v0
    v_mov_b32 v{v}, s2
    v_mov_b32 v{v+1}, 1
    s_waitcnt vmcnt(0) lgkmcnt(0)
    s_barrier
    buffer_store_byte v{v+1}, v{v}, {WSR}, 0 offen sc1
    s_branch L_dispatch
    {u}_ok:
    s_and_b32 s3, s3, 0xfff
    """)
    assert F_RS == 0


def generate(cfg):
    A = Asm()
    for f in (validate, wait_zero, zero_load, announce, table_load):
        setattr(common, f.__name__, f)
    prologue(A, cfg)
    if cfg.get('nochain'):
        wait_zero(A, 20)
        A("s_waitcnt vmcnt(0)\ns_branch L_end")
    import importlib
    importlib.import_module(cfg.get('chainmod', 'chain')).chain(A, cfg)
    A.label("L_worker")
    if cfg.get('chain_only'):
        wait_zero(A, 20)
        A("s_waitcnt vmcnt(0)")
    if not cfg.get('chain_only'):
        import worker as worker_mod
        A(f"s_sub_u32 s{S_ID}, s{S_ID}, 32")
        worker_mod.worker(A, cfg)
    A.label("L_end")
    body = A.text()
    return f"""{HEADER}; @launch grid=(256,1,1) block=(256,1,1) lds=163840
.amdgcn_target "amdgcn-amd-amdhsa--gfx950"
.text
.globl {KNAME}
.p2align 8
.type {KNAME},@function
{KNAME}:
{body}    s_endpgm
.section .rodata,"a"
.p2align 6
.amdhsa_kernel {KNAME}
  .amdhsa_next_free_vgpr 512
  .amdhsa_next_free_sgpr 102
  .amdhsa_accum_offset 256
  .amdhsa_group_segment_fixed_size 0
  .amdhsa_kernarg_size 120
  .amdhsa_user_sgpr_count 2
  .amdhsa_user_sgpr_kernarg_segment_ptr 1
  .amdhsa_system_sgpr_workgroup_id_x 1
.end_amdhsa_kernel
"""


if __name__ == "__main__":
    cfg = json.loads(sys.argv[2]) if len(sys.argv) > 2 else {}
    open(sys.argv[1], "w").write(generate(cfg))
```

```python
from common import *

L_KX = 0x0000
L_MEM = 0x4000
L_Q = 0x6000
L_O = 0x7200
L_W = 0x8000

vL16, vIDX, vQW, vTQ, vTK, vTO, vKX, vWL, vPS, vOW, vRS, vFL = range(12)
vONE = 12
vSEL = 16
MF = 20
AQ, AK, AV = 52, 60, 68
KX = 76
VB = 108
TT = 124
vZ = VB + 6

sODL = 10
sStep = 60
sP = 61
sPF = 63
sVXb = 64
sPR = 65
sRL, sFLc, sMO, sMRs, sG, sKXo, sVXo, sKM, sFLo, sM0K = 69, 70, 71, 72, 73, 74, 75, 76, 77, 78
sProg = 79
sODD = 80
sEVL = 82
sC = 84
sF0 = 85
sW11 = 86
sNeed = 87
sPb = 68
sT = 88
SENT_P = 0x7F817F81
LJ = [2]

LDSF = {('Q', 1, 0): 0, ('Q', 1, 2): 1, ('Q', 1, 4): 2, ('Q', 1, 6): 3,
        ('K', 1, 0): 4, ('K', 1, 2): 5, ('K', 1, 4): 6, ('K', 1, 6): 7,
        ('O', 0, 0): 8, ('O', 0, 1): 9, ('O', 2, 0): 10, ('O', 2, 1): 11,
        ('O', 4, 0): 12, ('O', 4, 1): 13, ('O', 6, 0): 14, ('O', 6, 1): 15}
RFF = {}
_slots = [Reg('a', 8 * i) for i in range(32)] + [Reg('v', 128 + 8 * i) for i in range(16)]
for m in 'QKV':
    for tau in range(2):
        for t in range(8):
            if (m, tau, t) not in LDSF:
                RFF[(m, tau, t)] = _slots.pop(0)
for j in range(8):
    for t in range(2):
        if ('O', j, t) not in LDSF:
            RFF[('O', j, t)] = _slots.pop(0)
assert not _slots
WS = f"s[{S_WS}:{S_WS+3}]"
import common


def smf(A, acc, a, b):
    A(f"v_smfmac_f32_16x16x64_bf16 {vr(acc,4)}, {vr(a,4)}, {b.r(0,8)}, v{vIDX}")


def lds_frag_load(A, key, dst, tag):
    f = LDSF[key]
    A.ds(f"ds_read_b128 {vr(dst,4)}, v{vWL} offset:{f*2048}", tag)
    A.ds(f"ds_read_b128 {vr(dst+4,4)}, v{vWL} offset:{f*2048+1024}", tag)


def cstamp(A, cfg, k):
    if cfg.get('cdiag'):
        A(f"s_memrealtime s[96:97]\ns_waitcnt lgkmcnt(0)\n" + (f"s_mov_b32 s{71+k}, s96" if k <= 6 else f"v_writelane_b32 v{TT}, s96, {k}") + ("".join(f"\nv_writelane_b32 v{TT}, s{71+j}, {j}" for j in range(1, 7)) if k == 6 else ""))


def perwave(A, fn):
    end = A.uid("Lwe")
    for w in range(4):
        nx = A.uid("Lwn")
        if w < 3:
            A(f"s_cmp_lg_u32 s{S_W}, {w}\ns_cbranch_scc1 {nx}")
        fn(w)
        if w < 3:
            A(f"s_branch {end}\n{nx}:")
    A.label(end)


def chain_startup(A, cfg):
    A.c("===== chain startup =====")
    A(f"""
    v_and_b32 v1, 63, v0              ; lane
    v_and_b32 v2, 15, v1              ; n
    v_lshrrev_b32 v3, 4, v1           ; g
    v_lshrrev_b32 v4, 1, v3           ; g>>1
    v_and_b32 v5, 1, v3               ; g&1
    v_lshrrev_b32 v6, 2, v2           ; r = n>>2
    v_and_b32 v7, 3, v2               ; c = n&3
    v_lshrrev_b32 v9, 3, v2
    v_lshl_add_u32 v9, v9, 1, v4       ; jl
    v_and_b32 v10, 7, v2
    v_lshl_add_u32 v8, v5, 3, v10
    v_lshlrev_b32 v8, 4, v8
    v_lshl_add_u32 v8, v9, 13, v8
    s_lshl_b32 s{sT}, s{S_W}, 3
    s_xor_b32 s{sT}, s{sT}, s{S_ID}
    s_xor_b32 s{sT}, s{sT}, 31
    v_xor_b32 v9, s{sT}, v9
    v_lshl_add_u32 v8, v9, 8, v8
    ; vRS = (h>>1)*512 + (h&1)*128 + ((n>>2)&1)*256 + (2(n>>3) + (g&1))*32 + (n&3)*8
    s_lshr_b32 s{sT}, s{S_ID}, 1
    s_lshl_b32 s{sT}, s{sT}, 9
    s_and_b32 s{sT+1}, s{S_ID}, 1
    s_lshl_b32 s{sT+1}, s{sT+1}, 7
    s_add_u32 s{sT}, s{sT}, s{sT+1}
    v_lshrrev_b32 v9, 3, v2
    v_lshl_add_u32 v10, v9, 1, v5
    v_lshlrev_b32 v10, 5, v10
    v_lshl_add_u32 v10, v7, 3, v10
    v_and_b32 v9, 1, v6
    v_lshl_add_u32 v10, v9, 8, v10
    v_add_u32 v10, s{sT}, v10
    """)
    A(f"""
    v_lshlrev_b32 v9, 1, v3
    v_xor_b32 v9, v2, v9
    v_lshlrev_b32 v9, 4, v9
    s_lshl_b32 s{sT}, s{S_W}, 2
    v_add_u32 v13, s{sT}, v3          ; 4w+g
    v_lshl_add_u32 v11, v13, 13, v9   ; vDmaA
    v_lshl_add_u32 v12, v13, 10, v9   ; vDmaB
    v_and_b32 v9, 1, v6               ; r&1
    v_lshrrev_b32 v13, 1, v6          ; r>>1
    v_lshl_add_u32 v14, v13, 1, v5    ; 2(r>>1)+(g&1)
    v_lshl_add_u32 v15, v9, 2, v14    ; phi
    v_lshl_add_u32 v14, v4, 2, v14
    v_lshl_add_u32 v14, v9, 4, v14    ; row
    v_lshlrev_b32 v14, 8, v14
    v_lshl_add_u32 v14, v15, 5, v14
    s_lshl_b32 s{sT}, s{S_W}, 6
    v_xor_b32 v14, s{sT}, v14
    v_lshrrev_b32 v15, 1, v7
    v_lshlrev_b32 v15, 5, v15
    v_xor_b32 v1, v15, v14
    v_and_b32 v15, 1, v7
    v_lshl_add_u32 v2, v15, 3, v1
    v_lshl_add_u32 v14, v7, 3, v14
    v_lshlrev_b32 v15, 1, v5
    v_lshl_add_u32 v1, v13, 2, v15
    v_lshl_add_u32 v1, v4, 3, v1
    v_lshl_add_u32 v1, v9, 4, v1      ; row
    v_lshl_add_u32 v15, v9, 2, v15    ; phi
    v_lshlrev_b32 v1, 8, v1
    v_lshl_add_u32 v1, v7, 3, v1
    v_lshl_add_u32 v13, v15, 5, v1
    v_xor_b32 v5, 128, v11
    v_xor_b32 v6, 128, v12
    """)
    chunks = [('O', t, c) for t in range(2) for c in range(4)]
    chunks += [(m, t, None) for m in 'QK' for t in (2, 4, 6)]
    chunks += [('V', t, None) for t in range(8)]
    chunks += [(m, t, None) for m in 'QK' for t in (1, 3, 5, 7)]
    chunks += [('Q', 0, None), ('K', 0, None)]
    slot = lambda ci: 2 + (ci % 8) if ci < 30 else (ci - 30)
    A(f"""
    s_lshl_b32 s{sT+2}, s{S_ID}, 8        ; h*256
    s_lshl_b32 s{sT+3}, s{S_ID}, 17       ; h*128*1024
    s_lshl_b32 s{sT+4}, s{S_W}, 10        ; w*4*256
    """)

    def issue(ci):
        m, t, c = chunks[ci]
        srd = {'Q': S_WQ, 'K': S_WK, 'V': S_WV, 'O': S_WO}[m]
        for i in range(4):
            A(f"s_add_u32 m0, s{sT+4}, {slot(ci)*16384 + i*4096:#x}")
            if m == 'O':
                A(f"s_add_u32 s{sT+1}, s{sT+3}, {(64*t+16*i)*1024 + c*256:#x}")
                va = 6 if i & 1 else 12
            else:
                A(f"s_add_u32 s{sT+1}, s{sT+2}, {(64*t+16*i)*8192:#x}")
                va = 5 if i & 1 else 11
            A.vmem(f"buffer_load_dwordx4 v{va}, s[{srd}:{srd+3}], s{sT+1} offen{' nt' if cfg.get('wnt') else ''} lds", ("ch", ci))

    held = {}
    hfree = [16 + 8 * i for i in range(14)]
    PD = cfg.get('pd', 0)

    def rowpf(ci, now):
        if not PD or ci >= 32 or chunks[ci][0] == 'O':
            return
        m, t, c = chunks[ci]
        srd = {'Q': S_WQ, 'K': S_WK, 'V': S_WV}[m]
        A(f"""
        v_and_b32 v9, 63, v0
        v_lshlrev_b32 v9, 6, v9
        s_lshl_b32 s{sT}, s{S_ID}, 14
        s_lshl_b32 s{sT+1}, s{S_W}, 12
        s_add_u32 s{sT}, s{sT}, s{sT+1}
        s_add_u32 s{sT}, s{sT}, {t << 19:#x}
        """)
        A.vmem(f"buffer_load_dword v{7 if now < 12 else 4}, v9, s[{srd}:{srd+3}], s{sT} offen", "rpf")
    WD = cfg.get('wd', 8)
    for ci in list(range(WD)) + ([30, 31] if WD == 8 else []):
        issue(ci)
    cstamp(A, cfg, 1)
    PK = lambda w: RFF[('K', 0, 2 * w)]
    PQ = lambda w: RFF[('Q', 0, 2 * w)]
    A(f"""
    v_and_b32 v9, 63, v0
    v_bfe_u32 v15, v9, 1, 3
    v_lshlrev_b32 v15, 10, v15
    v_lshrrev_b32 v1, 4, v9
    v_lshl_add_u32 v15, v1, 3, v15
    v_and_b32 v1, 1, v9
    v_lshl_add_u32 v15, v1, 2, v15
    s_lshl_b32 s{sT}, s{S_W}, 8
    """)
    perwave(A, lambda w: A("\n".join(f"buffer_load_dword {PK(w).r(4*u+tl)}, v15, s[{S_MEM0}:{S_MEM0+3}], s{sT} offen offset:{u*128+tl*32}"
                                     for u in range(2) for tl in range(4))))
    A.vm += ["m0"] * 8
    A(f"s_mov_b32 s{sT+5}, 0")
    for ci in range(32):
        m, t, c = chunks[ci]
        if ci == 3:
            common.zero_load(A, 3)
            A.vm.append("zl")
        if ci == 11:
            A.wv("zl")
            lab = A.uid("Lz")
            A(f"v_cmp_ne_u32 vcc, 1, v3\ns_cbranch_vccnz {lab}\ns_mov_b32 s{sT+5}, 1")
            common.announce(A, 3)
            A.label(lab)
        if ci == 20:
            A(f"""
            s_lshl_b32 s{sFLc}, s{S_ID}, 9
            s_add_u32 s{sFLc}, s{sFLc}, {F_P2:#x}
            v_and_b32 v1, 1, v0
            v_lshlrev_b32 v1, 7, v1
            """)
            A.vmem(f"buffer_load_dword v1, v1, {WS}, s{sFLc} offen sc1", "f0")
        if ci == 28:
            A.wv("f0")
            lab = A.uid("Lpf")
            A(f"""
            v_cmp_eq_u32 vcc, 0, v1
            s_cbranch_vccnz {lab}
            s_cmp_eq_u32 s{sT+5}, 0
            s_cbranch_scc1 {lab}
            s_mov_b32 s{sT+5}, 2
            v_and_b32 v1, 63, v0
            v_lshlrev_b32 v1, 7, v1
            s_lshl_b32 s{sT}, s{S_ID}, 13
            s_lshl_b32 s{sT+1}, s{S_W}, 18
            s_add_u32 s{sT+1}, s{sT+1}, s{sT}
            s_add_u32 s{sT+1}, s{sT+1}, {PRING:#x}
            buffer_load_dword v3, v1, {WS}, s{sT+1} offen
            s_lshl_b32 s{sT+1}, s{S_W}, 13
            s_add_u32 s{sT+1}, s{sT+1}, {MRING:#x}
            buffer_load_dword v3, v1, {WS}, s{sT+1} offen sc1
            s_and_b32 s{sT+1}, s{S_W}, 1
            s_lshl_b32 s{sT+1}, s{sT+1}, 18
            s_add_u32 s{sT}, s{sT}, s{sT+1}
            s_lshr_b32 s{sT+1}, s{S_W}, 1
            s_lshl_b32 s{sT+1}, s{sT+1}, 24
            s_add_u32 s{sT}, s{sT}, s{sT+1}
            s_add_u32 s{sT}, s{sT}, {WS_KX:#x}
            buffer_load_dword v3, v1, {WS}, s{sT} offen
            {lab}:
            """)
        if ci == 24:
            perwave(A, lambda w: common.table_load(A, PQ(w).r(0, 2), 9))
            A.vm.append("tl")
        if ci in (1, 10, 20, 30):
            cstamp(A, cfg, {1: 2, 10: 3, 20: 4, 30: 5}[ci])
        if ci == 22:
            A(f"""
            v_and_b32 v9, 63, v0
            v_lshlrev_b32 v9, 4, v9
            s_lshl_b32 s{sT+1}, s{S_W}, 15
            s_add_u32 s{sT+1}, s{sT+1}, {L_W:#x}
            v_add_u32 v7, s{sT+1}, v9          ; vWL
            """)
        if ci in (24, 26, 28, 30):
            lab = A.uid("Lhw")
            A(f"s_cmp_lg_u32 s{S_W}, { {24: 3, 26: 0, 28: 1, 30: 2}[ci] }\ns_cbranch_scc1 {lab}")
            wv_ = {24: 3, 26: 0, 28: 1, 30: 2}[ci]
            for key, r in held.items():
                f = LDSF[key] if key[0] == 'O' else LDSF[(key[0], 1, key[2] ^ (2 * wv_))]
                A(f"ds_write_b128 v7, {vr(r,4)} offset:{f*2048}")
                A(f"ds_write_b128 v7, {vr(r+4,4)} offset:{f*2048+1024}")
            A(f"s_waitcnt lgkmcnt(0)\n{lab}:")
        if ci == 30:
            A.wv("tl")
            perwave(A, lambda w: A("\n".join([f"v_accvgpr_read_b32 v{40+i}, {PK(w).r(i)}" for i in range(8)] +
                                              [f"v_accvgpr_read_b32 v{48+i}, {PQ(w).r(i)}" for i in range(2)])))
        A.wv(("ch", ci))
        A("s_barrier")
        sb = slot(ci) * 16384
        hi = sb & ~0x7fff
        lo = sb - hi
        if m == 'O':
            lab = A.uid("Lskipo")
            A(f"s_cmp_lg_u32 s{S_W}, {c}")
            A(f"s_cbranch_scc1 {lab}")
            for j in range(8):
                key = ('O', j, t)
                if key in LDSF:
                    if key not in held:
                        held[key] = hfree.pop(0)
                    dst = Reg('v', held[key])
                else:
                    dst = RFF[key]
                A(f"v_xor_b32 v9, {j*32}, v13")
                A(f"v_add_u32 v9, {hi:#x}, v9")
                A(f"v_xor_b32 v15, 32, v9")
                for k, (ad, off) in enumerate([(9, 0), (15, 256), (9, 8192), (15, 8192 + 256)]):
                    A.ds(f"ds_read_b64_tr_b16 {dst.r(2*k,2)}, v{ad} offset:{lo+off}", "tr")
                A.wl()
            A.label(lab)
        else:
            lds1 = m != 'V' and t % 2 == 0
            if lds1 and ci < 30:
                held[(m, 1, t)] = hfree.pop(0)
            for tau in range(2):
                ad = 9 if tau == 0 else 15
                if m == 'V':
                    A(f"v_xor_b32 v{ad}, {tau*32}, v14")
                    A(f"v_add_u32 v{ad}, {hi:#x}, v{ad}")
                else:
                    A(f"v_add_u32 v{ad}, {hi + tau*16:#x}, v2")
            end = A.uid("Lwe")
            for wv_ in range(4):
                nx = A.uid("Lwn")
                if wv_ < 3:
                    A(f"s_cmp_lg_u32 s{S_W}, {wv_}\ns_cbranch_scc1 {nx}")
                for tau in range(2):
                    if tau == 1 and lds1:
                        dst = Reg('v', held[(m, 1, t)] if ci < 30 else 16)
                    else:
                        dst = RFF[(m, tau, t ^ (2 * wv_))]
                    for k, off in enumerate([0, 8192, 2048, 8192 + 2048]):
                        A(f"ds_read_b64_tr_b16 {dst.r(2*k,2)}, v{9 if tau == 0 else 15} offset:{lo+off}")
                A("s_waitcnt lgkmcnt(0)")
                if lds1 and ci >= 30:
                    f = LDSF[(m, 1, t ^ (2 * wv_))]
                    A(f"ds_write_b128 v7, {vr(16,4)} offset:{f*2048}\nds_write_b128 v7, {vr(20,4)} offset:{f*2048+1024}\ns_waitcnt lgkmcnt(0)")
                if wv_ < 3:
                    A(f"s_branch {end}\n{nx}:")
            A.label(end)
        A("s_barrier")
        rowpf(ci + PD, ci)
        nxt = ci + WD
        if nxt < (30 if WD == 8 else 32):
            issue(nxt)
    assert not hfree
    cstamp(A, cfg, 6)
    A.c("chain address registers")
    A(f"""
    v_and_b32 v20, 63, v0             ; lane
    v_and_b32 v21, 15, v20            ; n
    v_lshrrev_b32 v22, 4, v20         ; g
    v_lshrrev_b32 v23, 1, v22         ; g>>1
    v_and_b32 v24, 1, v22             ; g&1
    v_lshrrev_b32 v25, 2, v21         ; r
    v_and_b32 v26, 3, v21             ; c
    v_lshlrev_b32 v{vL16}, 4, v20
    v_mov_b32 v{vIDX}, 0x4444
    v_mov_b32 v27, 0xeeee
    s_mov_b32 s{sODD}, 0xaaaaaaaa
    s_mov_b32 s{sODD+1}, 0xaaaaaaaa
    s_mov_b32 s{sEVL}, 0x55555555
    s_mov_b32 s{sEVL+1}, 0
    s_mov_b32 s{sODL}, 0xaaaaaaaa
    s_mov_b32 s{sODL+1}, 0
    s_mov_b32 s{sC}, {f32bits(SM_C):#x}
    s_mov_b32 s{sT+11}, {L_Q:#x}
    s_mov_b32 s{sT+10}, {L_O:#x}
    v_cndmask_b32 v{vIDX}, v{vIDX}, v27, s[{sODD}:{sODD+1}]
    s_lshl_b32 s{sT}, s{S_W}, 6
    v_lshlrev_b32 v27, 2, v21
    v_add_u32 v27, s{sT}, v27
    v_mul_u32_u24 v28, 1088, v22
    v_add3_u32 v{vQW}, v27, v28, s{sT+11}
    v_mul_u32_u24 v28, 640, v22
    v_add3_u32 v{vOW}, v27, v28, s{sT+10}
    v_lshrrev_b32 v27, 1, v21
    v_mul_u32_u24 v28, 544, v27
    v_lshl_add_u32 v28, v22, 4, v28
    v_add_u32 v{vTQ}, {L_Q:#x}, v28
    v_mul_u32_u24 v28, 320, v27
    v_lshl_add_u32 v28, v22, 5, v28
    v_and_b32 v29, 1, v21
    v_lshl_add_u32 v28, v29, 4, v28
    v_add_u32 v{vTO}, {L_O:#x}, v28
    v_and_b32 v27, 7, v21
    v_mul_u32_u24 v28, 544, v27
    v_lshl_add_u32 v28, v22, 4, v28
    v_add_u32 v{vTK}, {L_Q + 256:#x}, v28
    v_lshlrev_b32 v27, 9, v22
    v_lshl_add_u32 v{vKX}, v21, 4, v27
    v_and_b32 v29, 1, v25
    v_mov_b32 v30, 0x3f80
    v_mov_b32 v31, 0x3f800000
    v_cmp_eq_u32 vcc, 1, v29
    s_nop 1
    v_cndmask_b32 v30, v30, v31, vcc
    """)
    for d in range(4):
        A(f"v_cmp_eq_u32 vcc, {d}, v26\ns_nop 1\nv_cndmask_b32 v{vSEL+d}, 0, v30, vcc")
    for z in (VB + 6, VB + 7, VB + 14, VB + 15):
        A(f"v_mov_b32 v{z}, 0")
    if cfg.get('rsmask', 1):
        A(f"v_bfrev_b32 v30, 1\nv_cmp_lt_u32 vcc, 31, v20\ns_nop 1\nv_cndmask_b32 v{vRS}, v{vRS}, v30, vcc")
    A(f"v_bfrev_b32 v30, 1\nv_cmp_ne_u32 vcc, 0, v20\ns_nop 1\nv_cndmask_b32 v{vZ}, v{vZ}, v30, vcc")
    for z in range(4):
        A(f"v_mov_b32 v{vONE+z}, 0x3f803f80")
    lab = A.uid("Lci")
    A(f"s_cmp_lg_u32 s{sT+5}, 0\ns_cbranch_scc1 {lab}_z")
    common.wait_zero(A, 48)
    A(f"v_mov_b32 v48, 0\n{lab}_z:")
    common.validate(A, 48, preloaded=True)
    cstamp(A, cfg, 7)
    A(f"""
    s_mov_b32 s{sT+7}, s3
    v_mov_b32 v32, 0
    s_cmp_eq_u32 s{S_T}, 0
    s_cbranch_scc1 {lab}_r
    v_lshrrev_b32 v33, 2, v{vL16}
    s_mov_b32 s{sT+5}, 0
    {lab}_p2:
    {GUARD}
    buffer_load_dword v34, v33, {WS}, 0 offen sc1
    s_waitcnt vmcnt(0)
    v_cmp_ne_u32 vcc, 0x01010101, v34
    s_cbranch_vccnz {lab}_p2
    v_and_b32 v33, 28, v33
    {lab}_p3:
    {GUARD}
    buffer_load_dword v34, v33, {WS}, 0 offen offset:{F_LN+32} sc1
    s_waitcnt vmcnt(0)
    v_cmp_ne_u32 vcc, 0x01010101, v34
    s_cbranch_vccnz {lab}_p3
    {lab}_r:
    """)
    cstamp(A, cfg, 8)
    lab = A.uid("Lf0")
    A(f"""
    s_mov_b32 s{sF0}, 1
    s_cmp_eq_u32 s{sT+5}, 2
    s_cbranch_scc1 {lab}_ok
    {lab}:
    {GUARD}
    buffer_load_dword v{vFL}, v32, {WS}, s{sFLc} offen sc1
    buffer_load_dword v34, v32, {WS}, s{sFLc} offen offset:128 sc1
    s_waitcnt vmcnt(0)
    v_min_u32 v{vFL}, v{vFL}, v34
    s_nop 0
    v_readfirstlane_b32 s{sF0}, v{vFL}
    s_cmp_eq_u32 s{sF0}, 0
    s_cbranch_scc1 {lab}
    {lab}_ok:
    s_lshl_b32 s{sT}, s{S_ID}, 13
    s_lshl_b32 s{sT+1}, s{S_W}, 11
    s_add_u32 s{sVXb}, s{sT}, s{sT+1}
    s_add_u32 s{sVXb}, s{sVXb}, {WS_VX:#x}
    s_mov_b32 s{sVXo}, s{sVXb}
    s_add_u32 s{sKXo}, s{sT}, s{sT+1}
    s_add_u32 s{sKXo}, s{sKXo}, {WS_KX:#x}
    s_mov_b32 s{sM0K}, s{sT+1}
    s_lshl_b32 s{sT+2}, s{S_W}, 9
    s_add_u32 s{sKM}, s{sT}, s{sT+2}
    s_add_u32 s{sKM}, s{sKM}, {WS_KVM - 0x40000:#x}
    s_add_u32 s{sPF}, s{sT}, s{sT+1}
    s_add_u32 s{sPF}, s{sPF}, {WS_VX:#x}
    s_mov_b32 m0, s{sM0K}
    s_nop 0
    buffer_load_dwordx4 v{vL16}, {WS}, s{sKXo} offen lds
    buffer_load_dwordx4 v{vL16}, {WS}, s{sKXo} offen offset:1024 lds
    """)
    A(f"""
    s_mov_b32 s{sT}, 0x05040100
    s_mov_b32 s{sT+1}, 0x07060302
    """)
    for u in range(2):
        b = 40 + 4 * u
        A(f"""
        v_perm_b32 v{MF+4*u}, v{b+1}, v{b}, s{sT}
        v_perm_b32 v{MF+4*u+1}, v{b+3}, v{b+2}, s{sT}
        v_perm_b32 v{MF+4*u+2}, v{b+1}, v{b}, s{sT+1}
        v_perm_b32 v{MF+4*u+3}, v{b+3}, v{b+2}, s{sT+1}
        """)
    A(f"""
    s_mov_b32 s{sStep}, 0
    s_lshl_b32 s{sProg}, s{S_ID}, 7
    s_add_u32 s{sProg}, s{sProg}, {F_PROG:#x}
    v_bfrev_b32 v{TT}, 1
    s_cmp_eq_u32 s{S_W}, 1
    s_cselect_b64 vcc, -1, 0
    s_nop 1
    v_cndmask_b32 v{vZ+1}, v{TT}, v{vZ}, vcc
    """)
    A.vm = []
    A.lg = []
    step_offsets(A)
    pre_step(A)
    hop_addr(A)
    A(f"v_lshrrev_b32 v{TT+2}, 2, v{vL16}")
    A(f"ds_write_b128 v{GW}, {vr(MF,4)} offset:{L_MEM}\nds_write_b128 v{GW}, {vr(MF+4,4)} offset:{L_MEM+1024}")
    A("s_waitcnt vmcnt(0) lgkmcnt(0)")
    A.lg = []
    cstamp(A, cfg, 9)
    if cfg.get('cdiag'):
        A(f"v_writelane_b32 v{TT}, s100, 0")
        A(f"s_lshl_b32 s96, s{S_ID}, 8\ns_add_u32 s96, s96, 0x118000\nv_lshrrev_b32 v{TT+1}, 2, v{vL16}\nbuffer_store_dword v{TT}, v{TT+1}, {WS}, s96 offen")


def step_offsets(A):
    A(f"""
    s_and_b32 s{sT}, s{sStep}, 3
    s_lshl_b32 s{sT+1}, s{sT}, 18
    s_add_u32 s{sT+1}, s{sT+1}, {PRING:#x}
    s_lshl_b32 s{sT+2}, s{S_W}, 16
    s_add_u32 s{sP}, s{sT+1}, s{sT+2}
    s_bitcmp1_b32 s{S_ID}, 2
    s_movk_i32 s{sPb}, 0x7c00
    s_cselect_b32 s{sPb}, 0x8400, s{sPb}
    s_add_u32 s{sP+1}, s{sP}, s{sPb}
    s_lshl_b32 s{sT+2}, s{S_ID}, 13
    s_add_u32 s{sRL}, s{sT+1}, s{sT+2}
    s_add_u32 s{sT+1}, s{sStep}, 3
    s_and_b32 s{sT+1}, s{sT+1}, 3
    s_lshl_b32 s{sT+1}, s{sT+1}, 18
    s_lshl_b32 s{sT+2}, s{S_W}, 16
    s_add_u32 s{sT+1}, s{sT+1}, s{sT+2}
    s_add_u32 s{sPR}, s{sT+1}, {PRING:#x}
    s_add_u32 s{sPR+1}, s{sPR}, s{sPb}
    s_lshl_b32 s{sMRs}, s{sT}, 13
    s_add_u32 s{sMRs}, s{sMRs}, {MRING:#x}
    s_add_u32 s{sT+1}, s{sStep}, 1
    s_and_b32 s{sT+1}, s{sT+1}, 3
    s_lshl_b32 s{sT+1}, s{sT+1}, 13
    s_add_u32 s{sMO}, s{sT+1}, {MRING:#x}
    s_lshl_b32 s{sT+1}, s{S_W}, 11
    s_add_u32 s{sG}, s{sMO}, s{sT+1}
    s_add_u32 s{sKXo}, s{sKXo}, 0x40000
    s_add_u32 s{sPF}, s{sPF}, 0x40000
    s_add_u32 s{sKM}, s{sKM}, 0x40000
    s_xor_b32 s{sM0K}, s{sM0K}, 0x2000
    s_add_u32 s{sFLo}, s{sFLc}, {128 * (2 & ((1 << LJ[0]) - 1))}
    s_mov_b32 s{sNeed}, 0
    s_lshl_b32 s{sW11}, s{S_W}, 11
    """)


def pre_step(A):
    for t in range(4):
        lds_frag_load(A, ('Q', 1, 2 * t), KX + 8 * t, ("sb", t))
    for r in range(AQ, AQ + 24, 2):
        A(f"v_mov_b64 {vr(r,2)}, 0")


GW = VB + 3
vM = [None, VB, VB + 1, VB + 4]


def hop_addr(A):
    A(f"v_add_u32 v{GW}, s{sW11}, v{vL16}")
    for j in range(1, 4):
        A(f"v_xor_b32 v{vM[j]}, {j << 11:#x}, v{GW}")


def emit(A, f):
    f() if callable(f) else A(f)


def weave(A, mf, fill, per=1, lead=0):
    fill = list(fill)
    for i, m in enumerate(mf):
        m()
        if i >= lead:
            for _ in range(per):
                if fill:
                    emit(A, fill.pop(0))
    for f in fill:
        emit(A, f)


def stamp(A, cfg, name):
    d = cfg.get('diag', ())
    if name in d:
        k = list(d).index(name)
        A(f"{'s_memrealtime' if cfg.get('abs') else 's_memtime'} s[{12+2*k}:{13+2*k}]")


def fold(x):
    return [f"v_add_f32 v{x}, v{x}, v{x+1}", f"v_add_f32 v{x+2}, v{x+2}, v{x+3}"]


def chain_loop(A, cfg, mode):
    st = " sc1" if mode == 'slow' else ""
    L = f"Lchain_{mode}"
    dA, dB, dB2 = cfg.get('dA', 0), cfg.get('dB', 24), cfg.get('dB2', 12)
    noside = cfg.get('noside', 0)
    A.c(f"===== chain loop ({mode}) =====")
    Lg = A.uid("Lhop")

    def isvalu(f):
        return isinstance(f, str) and f.startswith("v_")

    def gap(m, *items):
        m()
        its = [f for f in items if f is not None]
        for f in its:
            if not isvalu(f):
                emit(A, f)
        for f in its:
            if isvalu(f):
                A(f)

    def pop(lst):
        return lst.pop(0) if lst else None

    def ldsf(key, dst, tag):
        f = LDSF[key]
        return [lambda: A.ds(f"ds_read_b128 {vr(dst,4)}, v{vWL} offset:{f*2048}", tag),
                lambda: A.ds(f"ds_read_b128 {vr(dst+4,4)}, v{vWL} offset:{f*2048+1024}", tag)]

    def v_convert():
        ins = []
        for tau in range(2):
            x, b = AV + 4 * tau, VB + 8 * tau
            ins += fold(x) + [f"v_cvt_pk_bf16_f32 v{b+2}, v{x}, v{x+2}", f"v_cvt_pk_bf16_f32 v{b+3}, v{x}, v{x+2}"]
        return ins

    vL4 = TT + 2

    def v_publish(so):
        if cfg.get('nopub'):
            return []
        return [lambda: A.vmem(f"buffer_store_dword v{VB+2}, v{vL4}, {WS}, s{so} offen offset:2048 sc1", "vm"),
                lambda: A.vmem(f"buffer_store_dword v{VB+10}, v{vL4}, {WS}, s{so} offen offset:2304 sc1", "vm")]

    def pairfold(x):
        return fold(x) + fold(x + 4) + [f"v_cvt_pk_bf16_f32 v{x}, v{x}, v{x+4}", f"v_cvt_pk_bf16_f32 v{x+1}, v{x+2}, v{x+6}"]

    def qkv_phases(last):
        slowlab = A.uid("Lflagslow")

        def Q(i, tau):
            b = Reg('v', KX + 4 * i) if (tau and i % 2 == 0) else RFF[('Q', tau, i)]
            return (lambda: A("s_nop 0")) if last else (lambda: smf(A, AQ + 4 * tau, MF + 4 * i, b))

        def K(i, tau):
            b = Reg('v', KX + 4 * i) if (tau and i % 2 == 0) else RFF[('K', tau, i)]
            return lambda: smf(A, AK + 4 * tau, MF + 4 * i, b)
        mfr = [lambda i=i: A.ds(f"ds_read_b128 {vr(MF+4*i,4)}, v{vM[i//2]} offset:{L_MEM+(i&1)*1024}", ("mf", i)) for i in range(2, 8)]
        kl = {i: ldsf(('K', 1, i), KX + 4 * i, ("sb", i)) for i in (0, 2, 4, 6)}
        rst = [lambda b=b: A.vmem(f"buffer_store_dwordx4 {vr(TT,4)}, v{vPS}, {WS}, s{sPR+b} offen{st}", "rst") for b in range(2)]
        if last or cfg.get('rhop'):
            rst = [None, None]
        C0, C1 = TT + 3, TT + 1
        ops = {'r0': rst[0], 'r1': rst[1],
               'pg': lambda: A.vmem(f"buffer_store_dword v{TT}, v{vZ+1}, {WS}, s{sProg} offen sc1", "prog")}
        if not cfg.get('nopub'):
            ops['m0'] = lambda: A.vmem(f"buffer_store_dword v{C0}, v{vL4}, {WS}, s{sT+8} offen offset:2048 sc1", "vm")
            ops['m1'] = lambda: A.vmem(f"buffer_store_dword v{C1}, v{vL4}, {WS}, s{sT+8} offen offset:2304 sc1", "vm")
        if not last and not noside:
            ops.update({
                'v0': lambda: A.vmem(f"buffer_load_dwordx4 {vr(VB,4)}, v{vKX}, {WS}, s{sVXo} offen", "vx"),
                'v1': lambda: A.vmem(f"buffer_load_dwordx4 {vr(VB+8,4)}, v{vKX}, {WS}, s{sVXo} offen offset:256", "vx"),
                'k0': lambda: A.vmem(f"buffer_load_dwordx4 v{vL16}, {WS}, s{sKXo} offen lds", "kx"),
                'k1': lambda: A.vmem(f"buffer_load_dwordx4 v{vL16}, {WS}, s{sKXo} offen offset:1024 lds", "kx"),
                'pa': f"v_lshlrev_b32 v{VB+5}, 1, v{vL16}",
                'pf': lambda: A.vmem(f"buffer_load_dword v{vFL}, v{VB+5}, {WS}, s{sPF} offen", "pf"),
                'fl': lambda: A.vmem(f"buffer_load_dword v{vFL}, v{vZ}, {WS}, s{sFLo} offen sc1", "fl")})
        plan = cfg.get('plan', {'g0': 'm0', 'g1': 'm1', 'g4': 'n0', 'g5': 'n1', 'g6': 'pv', 'g8': 'pg', 'q0': 's0', 'q1': 's1', 'q2': 's2', 'q3': 'v0',
                                'q4': 's3', 'q6': 'v1', 'q8': 'pa', 'q9': 'r0', 'k0': 'pf', 'k4': 'r1', 'k8': 'k0', 'k11': 'fl', 'w1': 'k1'})
        used = set()

        def X(name):
            o = plan.get(name)
            used.add(name)
            return ops.get(o)
        kmlate = not cfg.get('nopub')
        V = lambda i, tau: (lambda: smf(A, AV + 4 * tau, MF + 4 * i, RFF[('V', tau, i)]))
        if kmlate:
            ops['n0'] = lambda: (A.wl("kr"), A.vmem(f"buffer_store_dword v{TT}, v{vL4}, {WS}, s{sT+8} offen sc1", "km"))
            ops['n1'] = lambda: A.vmem(f"buffer_store_dword v{TT+1}, v{vL4}, {WS}, s{sT+8} offen offset:256 sc1", "km")
        C0, C1 = VB + 2, VB + 10
        ops['pv'] = f"v_mov_b32 v{TT+3}, s{sT+11}"
        ops['pg'] = lambda: A.vmem(f"buffer_store_dword v{TT+3}, v{vZ+1}, {WS}, s{sProg} offen sc1", "prog")
        if not last and not cfg.get('rhop'):
            for i in range(4):
                ops[f's{i}'] = f"v_mov_b32 v{TT+i}, {SENT_P:#x}"
        own = [Q(0, 1), Q(0, 0), Q(1, 0), Q(1, 1), K(1, 0), K(1, 1), V(0, 0), V(0, 1), V(1, 0), V(1, 1), K(0, 0), K(0, 1)]
        npre = cfg.get('npre0', 7)
        for g, m in enumerate(own):
            it = [X(f'g{g}')]
            if g == 0:
                it.insert(0, lambda: A.ds(f"ds_read2_b32 {vr(TT,2)}, v{vQW} offset0:64 offset1:200", "kr"))
            if g in (1, 2):
                it.insert(0, kl[0][g - 1])
            if g == 3 and not last:
                it.append(f"s_cmp_le_u32 s{sF0}, s{sNeed}\ns_cbranch_scc1 {slowlab}\n{slowlab}_ret:")
            if g == 4:
                it.append(f"s_mov_b32 m0, s{sM0K}")
            if g >= npre:
                it.insert(0, pop(mfr))
            if g == 10:
                it.append(lambda: A.wl(("sb", 0)))
            gap(m, *it)
            if g == npre - 1:
                if not last:
                    stamp(A, cfg, 'b0')
                A.wl("gw")
                A("s_barrier")
                if not last:
                    stamp(A, cfg, 'b1')
                pop(mfr)()
        A.wl(("mf", 2))
        if not last:
            stamp(A, cfg, 'mf')
        kxr, fill = [], []
        if not last:
            fill = pairfold(AQ)
            kxr = [lambda t=t, a=a: A.ds(f"ds_read_b128 {vr(KX+8*t+4*a,4)}, v{vKX} offset:{t*2048+a*256}", "kxf")
                   for t in range(4) for a in range(2)]
        ds = {0: pop(mfr), 1: pop(mfr), 2: kl[2][0], 3: kl[2][1], 4: pop(kxr), 5: pop(kxr), 6: kl[4][0], 7: kl[4][1], 10: kl[6][0], 11: kl[6][1]}
        wt = {1: ("mf", 4), 5: ("mf", 7)}
        for n in range(12):
            i, tau = 2 + n // 2, (n + 1) & 1 if (2 + n // 2) % 2 == 0 else n & 1
            it = [ds.get(n), X(f'q{n}')]
            if n in wt:
                it.append(lambda n=n: A.wl(wt[n]))
            if n == 11:
                it.append(lambda: A.wl(("sb", 2)))
            gap(Q(i, tau), *it)
        if not last:
            stamp(A, cfg, 'q')
        for n in range(12):
            i, tau = 2 + n // 2, (n + 1) & 1 if (2 + n // 2) % 2 == 0 else n & 1
            it = []
            if n >= 1:
                it.append(pop(fill))
            if n == 7 and not last:
                it.append(lambda: A.ds(f"ds_write2_b32 v{vQW}, v{AQ}, v{AQ+1} offset0:0 offset1:136", "qw"))
            elif n in (1, 2, 5, 6, 9, 10):
                it.append(pop(kxr))
            if n == 3:
                it.append(lambda: A.wl(("sb", 6)))
            it.append(X(f'k{n}'))
            gap(K(i, tau), *it)
        assert not kxr and not fill and not mfr
        if not last:
            stamp(A, cfg, 'k')
        mf = [lambda t=t, tau=tau: smf(A, AV + 4 * tau, MF + 4 * t, RFF[('V', tau, t)]) for t in range(2, 8) for tau in range(2)]
        pub = [lambda: A.vmem(f"buffer_store_dword v{AK}, v{vL4}, {WS}, s{sKM} offen sc1", "km"),
               lambda: A.vmem(f"buffer_store_dword v{AK+1}, v{vL4}, {WS}, s{sKM} offen offset:256 sc1", "km")]
        if cfg.get('nopub') or (kmlate and not last):
            pub = []
        return mf, pub, X, slowlab


    def house():
        A(f"""
        s_mov_b32 s{sT+6}, s{sRL}
        s_add_u32 s{sT+7}, s{sRL}, 0x1000
        s_mov_b32 s{sT+4}, s{sMO}
        s_mov_b32 s{sT+5}, s{sMRs}
        s_mov_b32 s{sT+3}, s{sG}
        s_mov_b32 s{sT+9}, 0
        s_mov_b32 s{sT+10}, 0
        s_mov_b32 s{sT+8}, s{sKM}
        s_mov_b32 s{sT+11}, s{sStep}
        """)

    def house2():
        return f"""
        s_add_u32 s{sStep}, s{sStep}, 1
        s_mov_b32 s{sPR}, s{sP}
        s_mov_b32 s{sPR+1}, s{sP+1}
        s_mov_b32 s{sMRs}, s{sMO}
        s_add_u32 s{sP}, s{sP}, 0x40000
        s_bitset0_b32 s{sP}, 20
        s_add_u32 s{sP+1}, s{sP}, s{sPb}
        s_add_u32 s{sRL}, s{sRL}, 0x40000
        s_bitset0_b32 s{sRL}, 20
        s_add_u32 s{sMO}, s{sMO}, 0x2000
        s_bitset0_b32 s{sMO}, 15
        s_add_u32 s{sG}, s{sG}, 0x2000
        s_bitset0_b32 s{sG}, 15
        s_add_u32 s{sKXo}, s{sKXo}, 0x40000
        s_add_u32 s{sVXb}, s{sVXb}, 0x40000
        s_and_b32 s{sT}, s{sM0K}, 0x2000
        s_sub_u32 s{sVXo}, s{sVXb}, s{sT}
        s_add_u32 s{sPF}, s{sPF}, 0x40000
        s_add_u32 s{sKM}, s{sKM}, 0x40000
        s_xor_b32 s{sM0K}, s{sM0K}, 0x2000
        s_add_u32 s{sT}, s{sStep}, 1
        s_lshr_b32 s{sNeed}, s{sT}, {LJ[0]}
        s_add_u32 s{sT}, s{sStep}, 2
        s_and_b32 s{sT}, s{sT}, {(1 << LJ[0]) - 1}
        s_lshl_b32 s{sT}, s{sT}, 7
        s_add_u32 s{sFLo}, s{sFLc}, s{sT}
        """.strip().split("\n")

    def rload(u, s0):
        A(f"buffer_load_dwordx4 {vr(MF+4*u,4)}, v{vL16}, {WS}, s{s0+u//4} offen offset:{(u%4)*1024} sc1")

    def rround():
        for u in range(8):
            rload(u, sT + 6)
    A(f"{L}:\ns_branch {Lg}_compute")
    A(f".p2align {cfg.get('al', 6)}")
    for _ in range(cfg.get('alo', 0)):
        A("s_nop 0")
    A.label(Lg)
    n0 = len(A.lines)
    MRS = f"v_mov_b32 v{TT+2}, -1\nv_mov_b32 v{TT+3}, -1\nbuffer_store_dwordx2 {vr(TT+2,2)}, v{vRS}, {WS}, s{sT+5} offen{st}"
    if cfg.get('mrlate', 1):
        A(MRS)
    house()
    pre_step(A)
    hop_addr(A)
    hk = A.lines[n0:]
    del A.lines[n0:]
    hs = max(2, min(len(hk), cfg.get('hsplit', len(hk))))
    A.lines += hk[:hs]
    A.nop(dA)
    stamp(A, cfg, 'r0')
    rround()
    stamp(A, cfg, 'ri')
    A.lines += hk[hs:]
    nr = cfg.get('nr', 4)
    if nr < 0:
        A(f"s_branch {Lg}_red1\n{Lg}_red:") if hk[hs:] or True else None
        rround()
        A.label(Lg + "_red1")
        for u in range(8):
            A(f"s_waitcnt vmcnt({7 - u})")
            A(f"v_mfma_f32_16x16x32_bf16 {vr(TT,4)}, {vr(vSEL,4)}, {vr(MF+4*u,4)}, {'0' if u==0 else vr(TT,4)}")
    else:
        A.label(Lg + "_red")
        for u in range(nr):
            rload(u, sT + 6)
        for u in range(8):
            A(f"s_waitcnt vmcnt({7 - u + min(8, nr + u)})")
            A(f"v_mfma_f32_16x16x32_bf16 {vr(TT,4)}, {vr(vSEL,4)}, {vr(MF+4*u,4)}, {'0' if u==0 else vr(TT,4)}")
            if nr + u < 8:
                rload(nr + u, sT + 6)
    stamp(A, cfg, 'rm')
    A(f"""
    s_add_u32 s{sT+9}, s{sT+9}, 1
    s_cmp_gt_u32 s{sT+9}, 64
    s_cbranch_scc1 {Lg}_nan
    s_nop 4
    v_cmp_u_f32 vcc, v{TT}, v{TT}
    v_cvt_pk_bf16_f32 v{TT}, v{TT}, v{TT+1}
    v_cvt_pk_bf16_f32 v{TT+1}, v{TT+2}, v{TT+3}
    s_cbranch_vccnz {Lg}_red
    {Lg}_ok:
    buffer_store_dwordx2 {vr(TT,2)}, v{vRS}, {WS}, s{sT+4} offen{st}
    """)
    stamp(A, cfg, 'r1')
    A(f"""
    {'' if cfg.get('mrlate', 1) else MRS}
    {Lg}_bar:
    s_waitcnt lgkmcnt(0)
    s_barrier
    """)
    stamp(A, cfg, 6)
    G = MF

    def ground():
        A(f"buffer_load_dwordx4 {vr(G,4)}, v{vL16}, {WS}, s{sT+3} offen sc1")
        A(f"buffer_load_dwordx4 {vr(G+4,4)}, v{vL16}, {WS}, s{sT+3} offen offset:1024 sc1")
    if True:
        mA, mB = 54, 52
        h2 = [l.strip() for l in house2()] + [f"s_mov_b64 s[{mA}:{mA+1}], -1", f"s_mov_b64 s[{mB}:{mB+1}], -1", f"v_lshrrev_b32 v{TT+2}, 2, v{vL16}"]
        depth = cfg.get('gdepth', 3)
        spw = cfg.get('spw', 0)
        W0 = f"ds_write_b128 v{GW}, {vr(G,4)} offset:{L_MEM}"
        W1 = f"ds_write_b128 v{GW}, {vr(G+4,4)} offset:{L_MEM+1024}"
        n1, n2 = cfg.get('h2a', 26), cfg.get('h2b', 4)
        A("\n".join(h2[:n1]))
        ground()
        A("\n".join(h2[n1:n1+n2]))
        if depth == 3:
            ground()
        A("\n".join(h2[n1+n2:]))
        A(f"""
        {Lg}_poll:
        s_mov_b64 exec, s[{mA}:{mA+1}]
        buffer_load_dwordx4 {vr(G,4)}, v{vL16}, {WS}, s{sT+3} offen sc1
        s_mov_b64 exec, s[{mB}:{mB+1}]
        buffer_load_dwordx4 {vr(G+4,4)}, v{vL16}, {WS}, s{sT+3} offen offset:1024 sc1
        s_mov_b64 exec, -1
        s_add_u32 s{sT+10}, s{sT+10}, 1
        s_cmp_gt_u32 s{sT+10}, 0x400000
        s_cbranch_scc1 L_end
        {Lg}_chk:
        s_waitcnt vmcnt({2*depth-1})
        v_max3_u32 v{TT}, v{G}, v{G+1}, v{G+2}
        v_max_u32 v{TT}, v{TT}, v{G+3}
        {W0 if spw else ''}
        s_waitcnt vmcnt({2*depth-2})
        v_max3_u32 v{TT+1}, v{G+4}, v{G+5}, v{G+6}
        v_max_u32 v{TT+1}, v{TT+1}, v{G+7}
        {W1 if spw else ''}
        v_cmp_eq_u32 s[{mA}:{mA+1}], -1, v{TT}
        v_cmp_eq_u32 s[{mB}:{mB+1}], -1, v{TT+1}
        s_or_b64 vcc, s[{mA}:{mA+1}], s[{mB}:{mB+1}]
        s_cbranch_scc1 {Lg}_poll
        {'' if spw else W0}
        {'' if spw else W1}
        """)
    A(f"""
    v_readfirstlane_b32 s{sF0}, v{vFL}
    """)
    stamp(A, cfg, 7)
    if cfg.get('diag'):
        A("s_waitcnt lgkmcnt(0)")
        for k in range(len(cfg['diag'])):
            A(f"v_writelane_b32 v{TT+3}, s{12+2*k}, {k}")
        A(f"v_writelane_b32 v{TT+3}, s{sT+9}, 30")
        A(f"v_writelane_b32 v{TT+3}, s{sT+10}, 31")
        A(f"""
        s_lshl_b32 s{sT}, s{sStep}, 7
        s_lshl_b32 s{sT+1}, s{S_ID}, 2
        s_add_u32 s{sT+1}, s{sT+1}, s{S_W}
        s_lshl_b32 s{sT+1}, s{sT+1}, 13
        s_add_u32 s{sT}, s{sT}, s{sT+1}
        s_add_u32 s{sT}, s{sT}, {DIAG - 128:#x}
        v_lshrrev_b32 v{TT}, 2, v{vL16}
        s_mov_b32 exec_hi, 0
        buffer_store_dword v{TT+3}, v{TT}, {WS}, s{sT} offen
        s_mov_b64 exec, -1
        """)
    A(f"""
    {Lg}_compute:
    s_cmp_eq_u32 s{sStep}, 63
    s_cbranch_scc1 {Lg}_last
    """)
    A.lg = ["gw", "gw"]
    A.vm = ["poll"] * 4
    stamp(A, cfg, 0)
    mf, pub, X, slowlab = qkv_phases(False)
    pop(mf)()
    pop(mf)()
    A("\n".join(pairfold(AK)))
    A.ds(f"ds_write2_b32 v{vQW}, v{AK}, v{AK+1} offset0:64 offset1:200", "kw")
    stamp(A, cfg, 'kw')
    nv1, nv2 = cfg.get('nv1', 5), cfg.get('nv2', 5)
    assert nv1 + nv2 == 10
    for i in range(nv1):
        gap(pop(mf), pop(pub), X(f'w{i}'), (lambda: A.wv('poll')) if i == 0 else None)
    stamp(A, cfg, 'v1')
    A.wl()
    A("s_barrier")
    stamp(A, cfg, 1)
    qr = [lambda u=u: A.ds(f"ds_read_b128 {vr(AQ+4*u,4)}, v{vTQ} offset:{u*64}", ("qf", u)) for u in range(4)]
    kr = [lambda u=u: A.ds(f"ds_read_b128 {vr(KX+4*u,4)}, v{vTK} offset:{u*64}", ("kf", u)) for u in range(4)]
    pop(qr)()
    pop(qr)()
    S0, S1, SM = MF, MF + 4, MF + 8
    O0, O1, SU = MF + 12, MF + 16, MF + 20
    zero = [f"v_mov_b64 {vr(r,2)}, 0" for r in range(O0, O0 + 8, 2)]
    for i in range(nv2):
        gap(pop(mf), pop(qr), X(f'x{i}'), pop(zero) if i >= 1 else None, (lambda: A.wl(("qf", 1))) if i == nv2 - 1 else None)
    assert not qr and not mf
    stamp(A, cfg, 'v2')

    def xs(u, a):
        c = "0" if u == 0 else vr(S0 + 4 * a, 4)
        return lambda: A(f"v_mfma_f32_16x16x32_bf16 {vr(S0+4*a,4)}, {vr(KX+8*u+4*a,4)}, {vr(AQ+4*u,4)}, {c}")

    def ms(u):
        c = "0" if u == 0 else vr(SM, 4)
        return lambda: A(f"v_mfma_f32_16x16x32_bf16 {vr(SM,4)}, {vr(KX+4*u,4)}, {vr(AQ+4*u,4)}, {c}")
    vc = []
    for tau in range(2):
        x = AV + 4 * tau
        vc += fold(x) + [f"v_cvt_pk_bf16_f32 v{x+1}, v{x}, v{x+2}", f"v_cvt_pk_bf16_f32 v{x}, v{x}, v{x+2}"]
    gap(xs(0, 0), pop(kr), pop(zero))
    gap(xs(0, 1), pop(kr), f"v_xor_b32 v{vKX}, 0x2000, v{vKX}")
    gap(xs(1, 0), pop(kr), pop(vc))
    gap(xs(1, 1), pop(kr), lambda: A.wl(("qf", 3)))
    gap(xs(2, 0), pop(vc), pop(vc))
    gap(xs(2, 1), pop(vc), pop(vc))
    gap(xs(3, 0), pop(vc), pop(vc))
    gap(xs(3, 1), lambda: A.wl(("kf", 3)), pop(vc))
    assert not zero and not vc
    stamp(A, cfg, 'sx')
    wl_ = ldsf(('O', 0, 0), KX + 16, "wo0") + ldsf(('O', 0, 1), KX + 24, "wo0")
    wl2 = ldsf(('O', 2, 0), KX, "wo2") + ldsf(('O', 2, 1), KX + 8, "wo2") + ldsf(('O', 4, 0), AK, "wo4")
    m_, t_ = TT, TT + 1
    OD = f"s[{sODD}:{sODD+1}]"
    gap(ms(0), pop(wl_))
    gap(ms(1), pop(wl_), f"v_max3_f32 v{m_}, v{S0}, v{S0+1}, v{S0+2}")
    gap(ms(2), pop(wl_), f"v_max3_f32 v{t_}, v{S0+3}, v{S1}, v{S1+1}")
    gap(ms(3), pop(wl_), f"v_max3_f32 v{m_}, v{m_}, v{S1+2}, v{S1+3}")
    stamp(A, cfg, 2)
    sm = f"""
    v_max_f32 v{m_}, v{m_}, v{t_}
    v_cndmask_b32 v{S0}, v{S0}, v{S0+2}, {OD}
    v_cndmask_b32 v{S0+1}, v{S0+1}, v{S0+3}, {OD}
    v_cndmask_b32 v{S1}, v{S1}, v{S1+2}, {OD}
    v_cndmask_b32 v{S1+1}, v{S1+1}, v{S1+3}, {OD}
    W
    v_max3_f32 v{m_}, v{m_}, v{SM}, v{SM+1}
    v_max3_f32 v{m_}, v{m_}, v{SM+2}, v{SM+3}
    v_mov_b32 v{t_}, v{m_}
    v_cndmask_b32 v{SM}, v{SM}, v{SM+2}, {OD}
    v_cndmask_b32 v{SM+1}, v{SM+1}, v{SM+3}, {OD}
    v_permlane32_swap_b32 v{m_}, v{t_}
    v_max_f32 v{m_}, v{m_}, v{t_}
    v_mov_b32 v{t_}, v{m_}
    W
    V
    v_permlane16_swap_b32 v{m_}, v{t_}
    v_max_f32 v{m_}, v{m_}, v{t_}
    v_mul_f32 v{m_}, s{sC}, v{m_}
    v_fma_f32 v{S0}, v{S0}, s{sC}, -v{m_}
    v_fma_f32 v{S0+1}, v{S0+1}, s{sC}, -v{m_}
    v_fma_f32 v{S1}, v{S1}, s{sC}, -v{m_}
    v_fma_f32 v{S1+1}, v{S1+1}, s{sC}, -v{m_}
    v_fma_f32 v{SM}, v{SM}, s{sC}, -v{m_}
    v_fma_f32 v{SM+1}, v{SM+1}, s{sC}, -v{m_}
    v_exp_f32 v{SM}, v{SM}
    v_exp_f32 v{SM+1}, v{SM+1}
    w
    v_exp_f32 v{S0}, v{S0}
    v_exp_f32 v{S0+1}, v{S0+1}
    w
    v_exp_f32 v{S1}, v{S1}
    v_exp_f32 v{S1+1}, v{S1+1}
    v_cvt_pk_bf16_f32 v{S0+2}, v{SM}, v{SM+1}
    v_cvt_pk_bf16_f32 v{TT}, v{S0}, v{S0+1}
    v_cvt_pk_bf16_f32 v{TT+2}, v{S1}, v{S1+1}
    v_cndmask_b32 v{TT+1}, 0, v{S0+2}, s[{sEVL}:{sEVL+1}]
    v_cndmask_b32 v{TT+3}, 0, v{S0+2}, s[{sODL}:{sODL+1}]
    v_mov_b64 {vr(VB+4,2)}, {vr(VB+2,2)}
    v_mov_b64 {vr(VB+2,2)}, {vr(AV,2)}
    """
    nW, nP, nO = cfg.get('nW', 0), cfg.get('nP', 2), cfg.get('nO', 0)
    for ln in sm.strip().split("\n"):
        ln = ln.strip()
        if ln == "W":
            if nW > 0:
                pop(wl2)()
                nW -= 1
            else:
                A("s_nop 0")
        elif ln == "w":
            if nW > 0:
                pop(wl2)()
                nW -= 1
        elif ln == "V":
            A.wv("vx")
            if not A.lines[-1].startswith("s_waitcnt"):
                A("s_nop 0")
        else:
            A(ln)
    P = TT
    stamp(A, cfg, 3)
    WA = MF
    A(f"v_mfma_f32_16x16x32_bf16 {vr(SU,4)}, {vr(P,4)}, {vr(vONE,4)}, 0")
    A(f"v_mov_b64 {vr(VB+12,2)}, {vr(VB+10,2)}\nv_mov_b64 {vr(VB+10,2)}, {vr(AV+4,2)}")
    gap(lambda: smf(A, O0, P, Reg('v', VB)), pop(wl2) if nP > 0 else None, f"v_mov_b64 {vr(WA,2)}, 0")
    gap(lambda: smf(A, O1, P, Reg('v', VB + 8)), pop(wl2) if nP > 1 else None)
    A("\n".join(fold(SU)))
    A(f"v_rcp_f32 v{SU}, v{SU}\nv_rcp_f32 v{SU+2}, v{SU+2}")
    A("\n".join(fold(O0)))
    A(f"v_mul_f32 v{O0}, v{O0}, v{SU}\nv_mul_f32 v{O0+2}, v{O0+2}, v{SU+2}")
    A("\n".join(fold(O1)))
    A(f"v_mul_f32 v{O1}, v{O1}, v{SU}\nv_mul_f32 v{O1+2}, v{O1+2}, v{SU+2}")
    A(f"v_cvt_pk_bf16_f32 v{TT}, v{O0}, v{O1}\nv_cvt_pk_bf16_f32 v{TT+1}, v{O0+2}, v{O1+2}")
    A.ds(f"ds_write2_b32 v{vOW}, v{TT}, v{TT+1} offset0:0 offset1:80", "ow")
    stamp(A, cfg, 'ow')
    nz = cfg.get('nz', 12)
    zw = [f"v_mov_b64 {vr(r,2)}, 0" for r in range(WA + 2, WA + 32, 2)]
    for _ in range(nz):
        A(pop(zw))
    for _ in range(nO):
        if wl2:
            pop(wl2)()
    A.wl("ow")
    A("s_barrier")
    stamp(A, cfg, 4)
    OA = AQ
    for t in range(2):
        A.ds(f"ds_read_b128 {vr(OA+4*t,4)}, v{vTO} offset:{t*128}", ("of", t))
    wol = wl2 + ldsf(('O', 4, 1), AV, "wo4") + ldsf(('O', 6, 0), KX + 16, "wo6") + ldsf(('O', 6, 1), KX + 24, "wo6")
    npre = cfg.get('npre', 2)
    for _ in range(npre):
        pop(wol)()
    for f in zw:
        A(f)
    loc = {('O', 0, 0): Reg('v', KX + 16), ('O', 0, 1): Reg('v', KX + 24), ('O', 2, 0): Reg('v', KX), ('O', 2, 1): Reg('v', KX + 8),
           ('O', 4, 0): Reg('v', AK), ('O', 4, 1): Reg('v', AV), ('O', 6, 0): Reg('v', KX + 16), ('O', 6, 1): Reg('v', KX + 24)}
    seq = [(j, t) for j in range(8) for t in range(2)]
    tails = []
    for j in range(8):
        x = WA + 4 * j
        d = WA + 16 * (j // 4) + (j % 4)
        it = fold(x) + [f"v_cvt_pk_bf16_f32 v{d}, v{x}, v{x+2}"]
        b = j // 4
        px2 = cfg.get('px2', 0)
        if (px2 == 1 or (px2 == 2 and b == 1)) and j % 2 == 1:
            hh = (j % 4) // 2
            it.append(lambda b=b, hh=hh: A.vmem(f"buffer_store_dwordx2 {vr(WA+16*b+2*hh,2)}, v{vPS}, {WS}, s{sP+b} offen offset:{8*hh}{st}", "ps"))
        elif j % 4 == 3:
            it.append(lambda b=b: A.vmem(f"buffer_store_dwordx4 {vr(WA+16*b,4)}, v{vPS}, {WS}, s{sP+b} offen{st}", "ps"))
        tails.append((2 * j + 3, it))
    pend = []
    A.wl(("of", 1))
    for i, (j, t) in enumerate(seq):
        key = ('O', j, t)
        while tails and tails[0][0] <= i:
            pend += tails.pop(0)[1]
        it = []
        if wol and (len(wol) > 4 or i >= 1):
            it.append(pop(wol))
        if i == 3:
            it.append(lambda: A.wl("wo2"))
        if i == 7:
            it.append(lambda: A.wl("wo4"))
        if i == 11:
            it.append(lambda: A.wl("wo6"))
        smf(A, WA + 4 * j, OA + 4 * t, loc.get(key) or RFF[key])
        for f in it:
            emit(A, f)
        n = 2 if (i & 1) else 1
        while pend and (n > 0 or not isvalu(pend[0])):
            f = pend.pop(0)
            emit(A, f)
            n -= 1
        stamp(A, cfg, f'w{i}')
    n = 2
    for f in pend:
        emit(A, f); n += 1
    A.nop(max(0, 8 - n))
    for f in tails.pop(0)[1]:
        emit(A, f)
    assert not tails
    stamp(A, cfg, 5)
    A(f"s_cmp_lg_u32 s{S_W}, 0\ns_cbranch_scc1 {Lg}_other\ns_branch {Lg}")
    A.label(Lg + "_last")
    if cfg.get('tot'):
        A(f"""
        s_memtime s[16:17]
        s_memrealtime s[18:19]
        s_waitcnt lgkmcnt(0)
        s_sub_u32 s16, s16, s12
        s_sub_u32 s18, s18, s14
        v_mov_b32 v{TT}, s16
        v_mov_b32 v{TT+1}, s18
        s_lshl_b32 s16, s{S_ID}, 3
        s_add_u32 s16, s16, 0x11c000
        buffer_store_dwordx2 {vr(TT,2)}, v{vZ}, {WS}, s16 offen
        """)
    A.lg = ["gw", "gw"]
    A.vm = ["poll"] * 4
    mf, pub, side, _ = qkv_phases(True)
    A(f"v_lshrrev_b32 v{vL4}, 2, v{vL16}")
    weave(A, mf, pairfold(AK) + pub, per=1, lead=2)
    A.nop(8)
    A("\n".join(v_convert()))
    for f in v_publish(sKM):
        emit(A, f)
    A(f"""
    v_mov_b32 v{TT}, 64
    s_waitcnt vmcnt(0)
    s_barrier
    buffer_store_dword v{TT}, v{vZ+1}, {WS}, s{sProg} offen sc1
    s_waitcnt vmcnt(0)
    s_branch L_end
    """)
    A.label(Lg + "_other")
    house()
    pre_step(A)
    hop_addr(A)
    A(f"s_branch {Lg}_bar")
    A(f"""
    {slowlab}:
    s_add_u32 s{sT}, s{sStep}, 1
    s_and_b32 s{sT}, s{sT}, {(1 << LJ[0]) - 1}
    s_lshl_b32 s{sT}, s{sT}, 7
    s_add_u32 s{sT}, s{sT}, s{sFLc}
    {slowlab}_l:
    {GUARD}
    buffer_load_dword v{vFL}, v{vZ}, {WS}, s{sT} offen sc1
    s_waitcnt vmcnt(0)
    v_readfirstlane_b32 s{sF0}, v{vFL}
    s_cmp_le_u32 s{sF0}, s{sNeed}
    s_cbranch_scc1 {slowlab}_l
    s_branch {slowlab}_ret
    {Lg}_nan:
    {GUARD}
    s_mov_b32 s{sT+2}, {SENT_P:#x}
    s_mov_b64 s[{sT}:{sT+1}], 0
    s_waitcnt vmcnt(0)
    """)
    for i in range(32):
        A(f"v_cmp_eq_u32 vcc, s{sT+2}, v{MF+i}\ns_or_b64 s[{sT}:{sT+1}], s[{sT}:{sT+1}], vcc")
    A(f"""
    s_cmp_eq_u64 s[{sT}:{sT+1}], 0
    s_cbranch_scc1 {Lg}_acc
    """)
    rround()
    A(f"s_branch {Lg}_red\n{Lg}_acc:")
    for u in range(8):
        A(f"v_mfma_f32_16x16x32_bf16 {vr(TT,4)}, {vr(vSEL,4)}, {vr(MF+4*u,4)}, {'0' if u==0 else vr(TT,4)}")
    A(f"""
    s_nop 7
    v_cvt_pk_bf16_f32 v{TT}, v{TT}, v{TT+1}
    v_cvt_pk_bf16_f32 v{TT+1}, v{TT+2}, v{TT+3}
    v_min_u32 v{TT}, -2, v{TT}
    v_min_u32 v{TT+1}, -2, v{TT+1}
    s_branch {Lg}_ok
    """)


def chain(A, cfg):
    LJ[0] = cfg.get('lj', 2)
    chain_startup(A, cfg)
    A(f"s_mov_b32 s{sT+8}, s{sKM}\ns_mov_b32 s{sT+11}, 0\ns_mov_b32 s{sT+5}, {MRING:#x}")
    A(f"s_cmp_lt_u32 s{sT+7}, 32\ns_cbranch_scc1 Lchain_slow")
    if cfg.get('tot'):
        A("s_memtime s[12:13]\ns_memrealtime s[14:15]\ns_waitcnt lgkmcnt(0)")
    if cfg.get('forceslow'):
        A("s_branch Lchain_slow")
    chain_loop(A, cfg, 'fast')
    chain_loop(A, cfg, 'slow')
```

```python
from common import *
import common

WS = WSR
sDa, sDb = 60, 64
sOa, sOb = 68, 69
sW10 = 70
sSt, sFl, sXo, sI = 71, 72, 73, 74
LJ = [2]
sT = 76
sR = [88, 89, 90, 91, 92, 93, 10, 11]


def wstamp(A, cfg, k, vtmp=126, wave=0, cyc=False):
    if cfg.get('wdiag'):
        lab = A.uid("Lst")
        A(f"""
        s_cmp_lg_u32 s{S_W}, {wave}
        s_cbranch_scc1 {lab}
        {'s_memtime' if cyc else 's_memrealtime'} s[96:97]
        s_lshl_b32 s98, s{S_ID}, 7
        s_add_u32 s98, s98, {0x110000 + 4*k:#x}
        s_waitcnt lgkmcnt(0)
        v_mov_b32 v{vtmp}, s96
        v_mov_b32 v{vtmp+1}, 0
        buffer_store_dword v{vtmp}, v{vtmp+1}, {WS}, s98 offen
        {lab}:
        """)


vSolo, vT0, vSt, vZero, vOne, vXr, vL16, vDm = 3, 4, 6, 8, 9, 10, 11, 12
FB = 16
SG = 32
ACC = 48


def wait_checked(A, uid, load, want, lds):
    A(f"""
    {uid}_o:
    s_cmp_lg_u32 s{S_W}, 0
    s_cbranch_scc1 {uid}_x
    s_mov_b32 s{sT+1}, 0
    {uid}:
    {GUARD}
    {load}
    s_waitcnt vmcnt(0)
    v_cmp_ne_u32 vcc, {want}, v112
    s_cbranch_vccz {uid}_y
    s_sleep 4
    s_add_u32 s{sT+1}, s{sT+1}, 1
    s_cmp_lt_u32 s{sT+1}, 32
    s_cbranch_scc1 {uid}
    {uid}_y:
    v_mov_b32 v112, s{sT+1}
    v_mov_b32 v114, {lds:#x}
    ds_write_b32 v114, v112
    {uid}_x:
    v_mov_b32 v114, {lds:#x}
    s_waitcnt vmcnt(0) lgkmcnt(0)
    s_barrier
    ds_read_b32 v112, v114
    s_waitcnt lgkmcnt(0)
    v_readfirstlane_b32 s{sT+1}, v112
    s_cmp_lt_u32 s{sT+1}, 32
    s_cbranch_scc1 {uid}_d
    """)
    common.validate(A, 116)
    A(f"s_barrier\ns_branch {uid}_o\n{uid}_d:")


def ln_flag_base(A, dst, off=0):
    A(f"s_lshr_b32 s{dst}, s{S_T}, 7\ns_and_b32 s{dst}, s{dst}, 32\ns_add_u32 s{dst}, s{dst}, {F_LN+off:#x}")


def wait_ln(A, uid, off=0, checked=False):
    A("v_and_b32 v113, 7, v0\nv_lshlrev_b32 v113, 2, v113")
    ln_flag_base(A, sT, off)
    load = f"buffer_load_dword v112, v113, {WS}, s{sT} offen sc1"
    if checked:
        wait_checked(A, uid, load, "0x01010101", 0x20000)
        return
    A(f"""
    s_cmp_lg_u32 s{S_W}, 0
    s_cbranch_scc1 {uid}_x
    {uid}:
    {GUARD}
    {load}
    s_waitcnt vmcnt(0)
    v_cmp_ne_u32 vcc, 0x01010101, v112
    s_cbranch_vccz {uid}_x
    s_sleep 8
    s_branch {uid}
    {uid}_x:
    s_waitcnt vmcnt(0)
    s_barrier
    """)


def ln_rows(A, cfg):
    A(f"""
    v_lshrrev_b32 v12, 3, v1
    v_and_b32 v13, 7, v1                   ; j
    s_lshl_b32 s{sT+2}, s{sT}, 16
    s_lshl_b32 s{sT+3}, s{S_W}, 14
    s_add_u32 s{sT+2}, s{sT+2}, s{sT+3}
    v_lshlrev_b32 v14, 10, v12
    v_lshl_add_u32 v14, v13, 4, v14
    v_add_u32 v14, s{sT+2}, v14            ; row*1024 + j*16
    v_add_u32 v128, 0x2000, v14
    """)
    for g in range(2):
        for i in range(8):
            A(f"buffer_load_dwordx4 {vr(32+32*g+4*i,4)}, v{14 if g == 0 else 128}, s[{S_X}:{S_X+3}], 0 offen offset:{i*128}")
    A(f"""
    s_lshl_b32 s{sT+2}, s{sT}, 16
    s_lshr_b32 s{sT+3}, s{S_W}, 1
    s_lshl_b32 s{sT+3}, s{sT+3}, 15
    s_add_u32 s{sT+2}, s{sT+2}, s{sT+3}
    s_and_b32 s{sT+3}, s{S_W}, 1
    s_lshl_b32 s{sT+3}, s{sT+3}, 8
    s_add_u32 s{sT+2}, s{sT+2}, s{sT+3}
    s_add_u32 s{sT+2}, s{sT+2}, {WS_XN:#x}
    v_lshrrev_b32 v15, 1, v13
    v_lshlrev_b32 v15, 10, v15
    v_and_b32 v16, 1, v13
    v_lshl_add_u32 v15, v16, 9, v15
    v_lshl_add_u32 v15, v12, 4, v15
    """)
    A(f"""
    v_mov_b32 v196, 0x7f817f81
    v_mov_b32 v197, 0x7f817f81
    v_mov_b32 v198, 0x7f817f81
    v_mov_b32 v199, 0x7f817f81
    v_mov_b32 v200, -1
    s_lshl_b32 s{sT+4}, s{sT}, 15
    s_lshl_b32 s{sT+5}, s{S_W}, 13
    s_add_u32 s{sT+4}, s{sT+4}, s{sT+5}
    s_add_u32 s{sT+4}, s{sT+4}, {PRING:#x}
    s_add_u32 s{sT+5}, s{sT+4}, 0x1000
    s_lshl_b32 s{sT+6}, s{sT}, 10
    s_lshl_b32 s{sT+7}, s{S_W}, 8
    s_add_u32 s{sT+6}, s{sT+6}, s{sT+7}
    s_add_u32 s{sT+6}, s{sT+6}, {MRING:#x}
    v_lshrrev_b32 v201, 2, v{vL16}
    """)
    ring = [f"buffer_store_dwordx4 v[196:199], v{vL16}, {WS}, s{sT+4+i//4} offen offset:{(i&3)*1024} sc1" for i in range(8)]
    ring.append(f"buffer_store_dword v200, v201, {WS}, s{sT+6} offen sc1")
    for g in range(2):
        A(f"s_waitcnt vmcnt({8 if g == 0 else 8})")
        layernorm8(A, 32 + 32 * g, 132 + 32 * g, 16)
        for i in range(8):
            A(f"s_add_u32 s{sT+3}, s{sT+2}, {i*4096}")
            A(f"buffer_store_dwordx4 {vr(132+32*g+4*i,4)}, v15, {WS}, s{sT+3} offen offset:{g*128} sc1")
    A("\n".join(ring))
    common.wait_zero(A, 116)
    ln_flag_base(A, sT + 4)
    A(f"""
    s_barrier
    s_add_u32 s{sT}, s{sT}, s{sT+4}
    buffer_store_byte v{vOne}, v{vSolo}, {WS}, s{sT} offen sc1
    """)
    wstamp(A, cfg, 5)
    A(f"s_mov_b32 s{sT+3}, {WS_H:#x}")
    for g in range(2):
        layernorm8(A, 132 + 32 * g, 32 + 32 * g, 16)
        for i in range(8):
            A(f"buffer_store_dwordx4 {vr(32+32*g+4*i,4)}, v{14 if g == 0 else 128}, {WS}, s{sT+3} offen offset:{i*128} sc1")
    A(f"""
    s_waitcnt vmcnt(0)
    s_barrier
    buffer_store_byte v{vOne}, v{vSolo}, {WS}, s{sT} offen offset:128 sc1
    """)


def xn_dma(A, slot):
    out = []
    for i in range(8):
        def f(i=i):
            A(f"s_add_u32 m0, s{sW10}, {slot*32768 + i*4096:#x}")
            A(f"s_add_u32 s{sT+8}, s{sXo}, s{sR[i]}")
            A.vmem(f"buffer_load_dwordx4 v{vL16}, {WS}, s{sT+8} offen lds", "xn")
        out.append(f)
    return out


def tile_loop(A, cfg, vtype):
    L = "L_p2v" if vtype else "L_p2k"
    A.label(L)

    def rd(par, u):
        A.ds(f"ds_read_b128 {vr(FB+4*(u&3),4)}, v{vXr} offset:{par*32768 + u*1024}", ("x", u & 3))

    def epilogue(acc):
        ins = []
        for ctl in range(2):
            for a in range(2):
                for i in range(4):
                    p, q = (8 * a + 2 * i, 8 * a + 2 * i + 1) if vtype else (8 * a + i, 8 * a + 4 + i)
                    ins.append(f"v_cvt_pk_bf16_f32 v{SG+8*ctl+4*a+i}, v{acc+16*ctl+p}, v{acc+16*ctl+q}")
                if not cfg.get('nost'): ins.append(lambda ctl=ctl, a=a: A.vmem(
                    f"buffer_store_dwordx4 {vr(SG+8*ctl+4*a,4)}, v{vSt+a}, {WS}, s{sSt} offen offset:{ctl*2048} sc1", "st"))
        return ins

    tight = []
    for par in range(2):
        acc = ACC + 32 * par
        epi = epilogue(ACC + 32 * (1 - par))
        dma = []
        for u in range(32):
            if u == 24:
                tl = A.uid("Ltight")
                if par == 1:
                    A(f"s_cmp_eq_u32 s{sI}, 0\ns_cbranch_scc1 {tl}")
                    tight.append(tl)
                if cfg.get('wdiag'):
                    A(f"""
                    s_memtime s[{sT}:{sT+1}]
                    s_waitcnt vmcnt(13) lgkmcnt(0)
                    s_memtime s[{sT+2}:{sT+3}]
                    s_barrier
                    s_waitcnt lgkmcnt(0)
                    s_memtime s[{sT+4}:{sT+5}]
                    s_sub_u32 s{sT}, s{sT+2}, s{sT}
                    s_add_u32 s94, s94, s{sT}
                    s_waitcnt lgkmcnt(0)
                    s_sub_u32 s{sT}, s{sT+4}, s{sT+2}
                    s_add_u32 s95, s95, s{sT}
                    """)
                else:
                    A("s_waitcnt vmcnt(13)\ns_barrier")
                A(f"""
                buffer_store_dword v117, v116, {WS}, s{sFl} offen sc1
                {tl}_ret:
                v_add_u32 v117, 1, v117
                s_add_u32 s{sSt}, s{sSt}, {0x40000 << LJ[0]:#x}
                v_mov_b32 v{vSt}, v112
                v_mov_b32 v{vSt+1}, v113
                """)
                A(f"s_xor_b32 s{sW10}, s{sW10}, 0x10000" if par == 1 else "")
                dma = xn_dma(A, 1 - par)
            A.wl(("x", u & 3))
            for ctl in range(2):
                w = ar((ctl * 32 + u) * 4, 4)
                x = vr(FB + 4 * (u & 3), 4)
                a_, b_ = (x, w) if vtype else (w, x)
                c = "0" if u == 0 else vr(acc + 16 * ctl, 16)
                A(f"v_mfma_f32_32x32x16_bf16 {vr(acc+16*ctl,16)}, {a_}, {b_}, {c}")
                if ctl == 0:
                    if u == 29 and par == 1:
                        A(f"v_xor_b32 v{vXr}, 0x10000, v{vXr}")
                    n = u + 3
                    rd(par if n < 32 else 1 - par, n & 31)
                    if dma:
                        dma.pop(0)()
                if u >= 1:
                    for _ in range(2):
                        if epi:
                            f = epi.pop(0)
                            f() if callable(f) else A(f)
            if u == 31:
                A(f"s_add_u32 s{sXo}, s{sXo}, {0x8000 << LJ[0]:#x}")
    A(f"""
    s_add_u32 s{sI}, s{sI}, 2
    s_cmp_lt_u32 s{sI}, {64 >> LJ[0]}
    s_cbranch_scc1 {L}
    """)
    A.nop(12)
    for f in epilogue(ACC + 32):
        f() if callable(f) else A(f)
    A(f"""
    s_waitcnt vmcnt(0) lgkmcnt(0)
    s_barrier
    v_mov_b32 v117, {64 >> LJ[0]}
    buffer_store_dword v117, v116, {WS}, s{sFl} offen sc1
    s_branch L_p2_done
    {tight[0]}:
    s_waitcnt vmcnt(0)
    s_barrier
    v_mov_b32 v116, v118
    buffer_store_dword v{vOne}, v116, {WS}, s{sFl} offen sc1
    s_branch {tight[0]}_ret
    """)


def p2(A, cfg):
    LJ[0] = cfg.get('lj', 2)
    A.c("===== worker P2: K/V/Q projections (weights resident, tokens streamed) =====")
    A(f"""
    v_and_b32 v1, 63, v0
    v_lshlrev_b32 v{vL16}, 4, v1
    v_mov_b32 v{vZero}, 0
    v_mov_b32 v{vOne}, 1
    s_lshl_b32 s{sT}, s{S_W}, 6
    v_or_b32 v2, s{sT}, v1
    v_bfrev_b32 v{vSolo}, 1
    v_cmp_eq_u32 vcc, 0, v2
    s_nop 1
    v_cndmask_b32 v{vSolo}, v{vSolo}, v{vZero}, vcc
    s_mul_i32 s{sT}, s{S_ID}, 9363
    s_lshr_b32 s{sT}, s{sT}, 16                ; rank / 7
    s_mul_i32 s{sT+1}, s{sT}, 7
    s_sub_u32 s{sT+1}, s{S_ID}, s{sT+1}        ; rank % 7
    s_cmp_eq_u32 s{sT+1}, 6
    s_cbranch_scc1 L_p2_idle
    s_mul_i32 s{sT}, s{sT}, 6
    s_add_u32 s{sT}, s{sT}, s{sT+1}
    s_mov_b32 s{sT+11}, s{sT}
    s_lshr_b32 s{sT+2}, s{sT}, 2
    s_and_b32 s{sT+3}, s{sT}, 3                ; j
    s_cmp_ge_u32 s{sT+3}, {1 << LJ[0]}
    s_cbranch_scc1 L_p2_skip
    s_mov_b32 s{sDa+2}, {512*4096*2:#x}
    s_mov_b32 s{sDa+3}, 0x20000
    s_mov_b32 s{sDb+2}, {512*4096*2:#x}
    s_mov_b32 s{sDb+3}, 0x20000
    s_sub_u32 s{sT+4}, s{sT+2}, 32
    s_lshl_b32 s{sT+4}, s{sT+4}, 1
    s_add_u32 s{sT+5}, s{sT+4}, 1
    s_cmp_lt_u32 s{sT+2}, 32
    s_cselect_b64 s[{sDa}:{sDa+1}], s[{S_WK}:{S_WK+1}], s[{S_WQ}:{S_WQ+1}]
    s_cselect_b64 s[{sDb}:{sDb+1}], s[{S_WV}:{S_WV+1}], s[{S_WQ}:{S_WQ+1}]
    s_cselect_b32 s{sT+4}, s{sT+2}, s{sT+4}
    s_cselect_b32 s{sT+5}, s{sT+2}, s{sT+5}
    s_cselect_b32 s{sT+7}, 1, 3
    s_cselect_b32 s{sT+9}, 2, 3
    s_lshl_b32 s{sOa}, s{sT+4}, 8
    s_lshl_b32 s{sOb}, s{sT+5}, 8
    s_cmp_lt_u32 s{S_W}, 2
    s_cselect_b32 s{sT+4}, s{sT+4}, s{sT+5}
    s_cselect_b32 s{sT+7}, s{sT+7}, s{sT+9}
    s_lshl_b32 s{sSt}, s{sT+7}, 24
    s_lshl_b32 s{sT+9}, s{sT+3}, 18
    s_add_u32 s{sSt}, s{sSt}, s{sT+9}
    s_lshl_b32 s{sT+9}, s{sT+4}, 13
    s_add_u32 s{sSt}, s{sSt}, s{sT+9}
    s_and_b32 s{sT+9}, s{S_W}, 1
    s_lshl_b32 s{sT+9}, s{sT+9}, 12
    s_add_u32 s{sSt}, s{sSt}, s{sT+9}
    s_sub_u32 s{sSt}, s{sSt}, {0x40000 << LJ[0]:#x}
    s_lshl_b32 s{sFl}, s{sT+11}, 7
    s_add_u32 s{sFl}, s{sFl}, {F_P2:#x}
    s_lshl_b32 s{sW10}, s{S_W}, 10
    s_lshl_b32 s{sXo}, s{sT+3}, 15
    s_add_u32 s{sXo}, s{sXo}, s{sW10}
    s_add_u32 s{sXo}, s{sXo}, {WS_XN:#x}
    s_mov_b32 s{sI}, 0
    s_mov_b32 s{sT+10}, s{sT+7}
    v_and_b32 v80, 15, v1              ; n
    v_lshrrev_b32 v81, 4, v1           ; g
    v_lshlrev_b32 v82, 2, v81
    v_xor_b32 v82, v80, v82
    v_lshlrev_b32 v82, 4, v82
    s_lshl_b32 s{sT}, s{S_W}, 2
    v_add_u32 v83, s{sT}, v81
    v_lshl_add_u32 v{vDm}, v83, 13, v82
    v_add_u32 v{vDm+1}, 0x20000, v{vDm}
    v_add_u32 v{vDm+2}, 0x40000, v{vDm}
    v_add_u32 v{vDm+3}, 0x60000, v{vDm}
    """)
    for p in range(8):
        A(f"s_lshl{3-LJ[0]}_add_u32 s{sT}, s{sT+3}, {p}\ns_and_b32 s{sT}, s{sT}, 7\ns_lshl_b32 s{sR[p]}, s{sT}, 12" if not cfg.get('norot') else f"s_mov_b32 s{sR[p]}, {p*4096}")
    chunks = [(mh, t) for t in range(8) for mh in range(2)]

    def issue(ci):
        mh, t = chunks[ci]
        srd, so = (sDa, sOa) if mh == 0 else (sDb, sOb)
        A(f"s_lshl_b32 s{sT+8}, s{sR[t]}, 7\ns_add_u32 s{sT+8}, s{sT+8}, s{so}")
        for i in range(4):
            A(f"s_add_u32 m0, s{sW10}, {(2 + (ci & 7))*16384 + i*4096:#x}\ns_nop 0")
            A.vmem(f"buffer_load_dwordx4 v{vDm+i}, s[{srd}:{srd+3}], s{sT+8} offen lds", ("ch", ci))
    if cfg.get('zfirst', 1):
        common.wait_zero(A, 116)
        wstamp(A, cfg, 10)
    A.vm = []
    for ci in range(8):
        issue(ci)
    wstamp(A, cfg, 6)
    A(f"""
    v_lshrrev_b32 v87, 5, v1           ; hf
    v_lshrrev_b32 v82, 2, v80          ; r
    v_and_b32 v83, 3, v80              ; c
    v_lshl_add_u32 v84, v87, 3, v82
    v_lshlrev_b32 v84, 8, v84
    v_lshl_add_u32 v84, v82, 6, v84
    v_and_b32 v85, 1, v81
    v_lshl_add_u32 v84, v85, 5, v84
    v_lshl_add_u32 v84, v83, 3, v84
    s_and_b32 s{sT}, s{S_W}, 1
    s_lshl_b32 s{sT}, s{sT}, 7
    v_xor_b32 v{vT0}, s{sT}, v84
    v_xor_b32 v{vT0+1}, 64, v{vT0}
    v_and_b32 v88, 31, v1
    v_lshlrev_b32 v84, 10, v87
    v_lshl_add_u32 v84, v88, 4, v84
    s_cmp_eq_u32 s{sT+10}, 2
    s_cselect_b64 vcc, -1, 0
    s_movk_i32 s{sT+1}, 0x400
    s_cselect_b32 s{sT}, 512, s{sT+1}
    v_cndmask_b32 v112, v{vL16}, v84, vcc
    v_add_u32 v113, s{sT}, v112
    v_bfrev_b32 v{vSt}, 1
    v_bfrev_b32 v{vSt+1}, 1
    v_mov_b32 v{vXr}, v{vL16}
    """)
    A("v_mov_b32 v110, v112\nv_mov_b32 v111, v113")
    if not cfg.get('zfirst', 1):
        common.wait_zero(A, 116)
        wstamp(A, cfg, 10)
    ln_flag_base(A, sT)
    A(f"s_lshr_b32 s{sT+1}, s{sXo}, 16\ns_and_b32 s{sT+1}, s{sT+1}, 1\ns_add_u32 s{sT}, s{sT}, s{sT+1}")
    wait_checked(A, "L_p2_t0", f"buffer_load_ubyte v112, v{vZero}, {WS}, s{sT} offen sc1", "1", 0)
    A("s_barrier")
    wstamp(A, cfg, 7)
    A.vm = []
    for f in xn_dma(A, 0):
        f()
    A(f"s_add_u32 s{sXo}, s{sXo}, {0x8000 << LJ[0]:#x}")
    for ci in range(16):
        mh, t = chunks[ci]
        A.wv(("ch", ci))
        A("s_barrier")
        lab = A.uid("Lskw")
        A(f"s_cmp_{'ge' if mh == 0 else 'lt'}_u32 s{S_W}, 2\ns_cbranch_scc1 {lab}")
        sb = (2 + (ci & 7)) * 16384
        hi = sb & ~0xffff
        for ctl in range(2):
            A(f"v_add_u32 v86, {hi:#x}, v{vT0+ctl}")
            for kk in range(4):
                for hh in range(2):
                    A(f"ds_read_b64_tr_b16 {ar((ctl*32+4*t+kk)*4+2*hh,2)}, v86 offset:{sb-hi+kk*4096+hh*1024}")
        A("s_waitcnt lgkmcnt(0)")
        A.label(lab)
        if ci < 8:
            A("s_barrier")
            issue(ci + 8)
        if ci == 7:
            wstamp(A, cfg, 8)
    wstamp(A, cfg, 1)
    wait_ln(A, "L_p2_lnall", checked=True)
    A.vm = []
    for f in xn_dma(A, 1):
        f()
    A(f"s_add_u32 s{sXo}, s{sXo}, {0x8000 << LJ[0]:#x}")
    A(f"buffer_load_dword v119, v{vZero}, {WS}, 0 offen")
    for f in xn_dma(A, 2):
        f()
    A(f"""
    s_add_u32 s{sXo}, s{sXo}, {0x8000 << LJ[0]:#x}
    v_mov_b32 v112, v110
    v_mov_b32 v113, v111
    v_bfrev_b32 v116, 1
    v_mov_b32 v117, -1
    v_mov_b32 v118, v{vSolo}
    s_xor_b32 s{sW10}, s{sW10}, 0x10000
    """)
    for u in range(3):
        A.ds(f"ds_read_b128 {vr(FB+4*u,4)}, v{vXr} offset:{u*1024}", ("x", u))
    wstamp(A, cfg, 2)
    if cfg.get('dbgs'):
        A(f"s_memrealtime s[96:97]\ns_waitcnt lgkmcnt(0)\ns_sub_u32 s96, s96, s100\nv_mov_b32 v126, s96\nv_mov_b32 v127, 60\ns_mov_b64 exec, 1\nglobal_atomic_umax v127, v126, s[{S_DBG}:{S_DBG+1}]\ns_mov_b64 exec, -1")
    wstamp(A, cfg, 12, cyc=True)
    A('s_mov_b32 s94, 0\ns_mov_b32 s95, 0')
    lg0 = list(A.lg)
    A(f"s_cmp_eq_u32 s{sT+10}, 2\ns_cbranch_scc1 L_p2v")
    tile_loop(A, cfg, False)
    A.lg = list(lg0)
    tile_loop(A, cfg, True)
    A.label("L_p2_skip")
    common.wait_zero(A, 116)
    A("s_branch L_p2_done")
    A.label("L_p2_idle")
    ln_rows(A, cfg)
    wstamp(A, cfg, 4)
    A.label("L_p2_done")
    common.validate(A, 116)
    wstamp(A, cfg, 3)
    wstamp(A, cfg, 13, cyc=True)
    if cfg.get('wdiag'):
        A(f"v_mov_b32 v124, s94\nv_mov_b32 v125, s95\nv_mov_b32 v126, 0\ns_lshl_b32 s98, s{S_ID}, 7\ns_lshl3_add_u32 s98, s{S_W}, s98\ns_add_u32 s98, s98, {0x110000+64:#x}\nbuffer_store_dwordx2 v[124:125], v126, {WS}, s98 offen")


def worker(A, cfg):
    if cfg.get('wdiag'):
        A(f"s_lshl_b32 s98, s{S_ID}, 7\ns_add_u32 s98, s98, 0x110000\nv_mov_b32 v124, s94\nv_mov_b32 v125, 0\nbuffer_store_dword v124, v125, {WS}, s98 offen")
    wstamp(A, cfg, 9)
    p2(A, cfg)
    if cfg.get('stop') == 2:
        A("s_waitcnt vmcnt(0)\ns_branch L_end")
        return
    import importlib
    importlib.import_module(cfg.get('w2mod', 'worker2')).p345(A, cfg)
```

```python
from common import *
import math
from worker import wstamp, wait_ln, vSolo, vZero, vOne, vL16, WS

sT = 76
vLane = 1


def emit(A, f):
    f() if callable(f) else A(f)


def poll_all(A, uid, vaddr, soff, want, atleast=None, sleep=8):
    A(f"""
    s_cmp_lg_u32 s{S_W}, 0
    s_cbranch_scc1 {uid}_x
    {uid}:
    {GUARD}
    buffer_load_dword v112, v{vaddr}, {WS}, s{soff} offen sc1
    s_waitcnt vmcnt(0)
    {f'v_cmp_ne_u32 vcc, {want}, v112' if atleast is None else f'v_cmp_gt_u32 vcc, v{atleast}, v112'}
    s_cbranch_vccz {uid}_x
    s_sleep {sleep}
    s_branch {uid}
    {uid}_x:
    s_barrier
    """)


def lane_parts(A, t):
    A(f"""
    v_and_b32 v{t}, 15, v{vLane}
    v_lshrrev_b32 v{t+1}, 4, v{vLane}
    v_lshrrev_b32 v{t+2}, 2, v{t}
    v_and_b32 v{t+3}, 3, v{t}
    v_lshrrev_b32 v{t+4}, 5, v{vLane}
    v_and_b32 v{t+5}, 31, v{vLane}
    """)


def rnd_bf16(A, regs, tmp):
    for i in range(0, len(regs), 2):
        a, b = regs[i], regs[i + 1]
        A(f"v_cvt_pk_bf16_f32 v{tmp}, v{a}, v{b}\nv_lshlrev_b32 v{a}, 16, v{tmp}\nv_and_b32 v{b}, 0xffff0000, v{tmp}")


def p3(A, cfg):
    A.c("===== worker P3: U = gelu(h^T w1 + b1), 64x64 tile, K split over the waves =====")
    vH, vW, vTr = 4, 5, 6
    FB, ACC = 16, 48
    sHo, sWo, sM = 60, 61, 62
    wait_ln(A, "L_p3_h", off=128)
    lane_parts(A, 120)
    A(f"""
    v_lshrrev_b32 v112, 3, v{vLane}
    v_and_b32 v113, 7, v{vLane}
    v_and_b32 v114, 2, v112
    v_lshlrev_b32 v114, 1, v114
    v_xor_b32 v113, v113, v114
    v_lshlrev_b32 v113, 4, v113
    v_lshl_add_u32 v{vH}, v112, 10, v113
    v_mul_u32_u24 v{vW}, 3584, v112
    v_add_u32 v{vW}, v{vW}, v113
    v_lshl_add_u32 v112, v124, 3, v122
    v_lshlrev_b32 v112, 7, v112
    v_and_b32 v113, 2, v122
    v_lshl_add_u32 v112, v113, 5, v112
    v_and_b32 v113, 1, v121
    v_lshl_add_u32 v112, v113, 5, v112
    v_lshl_add_u32 v112, v123, 3, v112
    s_lshl_b32 s{sM}, s{S_W}, 15
    v_add_u32 v{vTr}, s{sM}, v112
    v_xor_b32 v{vTr+1}, 64, v{vTr}
    s_and_b32 s{sT}, s{S_ID}, 7                ; dt
    s_lshr_b32 s{sT+1}, s{S_ID}, 3             ; ft
    s_lshl_b32 s{sHo}, s{S_W}, 19
    s_lshl_b32 s{sT+2}, s{sT}, 7
    s_add_u32 s{sHo}, s{sHo}, s{sT+2}
    s_add_u32 s{sHo}, s{sHo}, {WS_H:#x}
    s_mul_i32 s{sWo}, s{S_W}, {512*3584}
    s_lshl_b32 s{sT+2}, s{sT+1}, 7
    s_add_u32 s{sWo}, s{sWo}, s{sT+2}
    """)

    def dma(c):
        out = []
        for part in range(2):
            for i in range(4):
                def f(part=part, i=i):
                    A(f"s_add_u32 m0, s{sM}, {(c&3)*8192 + part*4096 + i*1024:#x}")
                    if part == 0:
                        A(f"s_add_u32 s{sT+8}, s{sHo}, {(32*c+8*i)*1024:#x}")
                        A.vmem(f"buffer_load_dwordx4 v{vH}, {WS}, s{sT+8} offen lds", ("c", c))
                    else:
                        A(f"s_add_u32 s{sT+8}, s{sWo}, {(32*c+8*i)*3584:#x}")
                        A.vmem(f"buffer_load_dwordx4 v{vW}, s[{S_W1}:{S_W1+3}], s{sT+8} offen lds", ("c", c))
                out.append(f)
        return out

    def reads(n):
        c, kk = n // 2, n & 1
        out = []
        for part in (1, 0):
            for tl in range(2):
                for hh in range(2):
                    d = FB + 16 * (n & 1) + 8 * part + 4 * tl + 2 * hh
                    off = (c & 3) * 8192 + part * 4096 + kk * 2048 + hh * 512
                    out.append(lambda d=d, tl=tl, off=off: A.ds(f"ds_read_b64_tr_b16 {vr(d,2)}, v{vTr+tl} offset:{off}", ("f", n)))
        return out
    A.vm, A.lg = [], []
    for c in range(4):
        for f in dma(c):
            f()
    A(f"""
    s_lshr_b32 s{sT+3}, s{S_W}, 1              ; tf
    s_lshl_b32 s{sT+4}, s{sT+1}, 7
    s_lshl_b32 s{sT+5}, s{sT+3}, 6
    s_add_u32 s{sT+4}, s{sT+4}, s{sT+5}
    v_lshlrev_b32 v112, 3, v124
    """)
    for rho in range(4):
        A.vmem(f"buffer_load_dwordx2 {vr(128+2*rho,2)}, v112, s[{S_B1}:{S_B1+3}], s{sT+4} offen offset:{rho*16}", "b1")
    A.wv(("c", 0))
    for f in reads(0):
        f()
    for n in range(32):
        c, kk = n // 2, n & 1
        rd, dm = [], []
        if n + 1 < 32:
            if kk == 1:
                A.wv(("c", c + 1))
            rd = reads(n + 1)
        A.wl(("f", n))
        if kk == 0 and c >= 1 and c + 3 < 16:
            dm = dma(c + 3)
        b = FB + 16 * (n & 1)
        for tf in range(2):
            for td in range(2):
                acc = ACC + 16 * (2 * tf + td)
                A(f"v_mfma_f32_32x32x16_bf16 {vr(acc,16)}, {vr(b+8+4*tf,4)}, {vr(b+4*td,4)}, {'0' if n == 0 else vr(acc,16)}")
                for _ in range(2):
                    if rd:
                        rd.pop(0)()
                for _ in range(2):
                    if dm:
                        dm.pop(0)()
    A.nop(12)
    A(f"v_add_u32 v112, s{sM}, v{vL16}")
    for tl in range(4):
        for q in range(4):
            A(f"ds_write_b128 v112, {vr(ACC+16*tl+4*q,4)} offset:{tl*4096+q*1024}")
    A(f"""
    s_lshl_b32 s{sT+5}, s{S_W}, 12
    v_add_u32 v112, s{sT+5}, v{vL16}
    v_add_u32 v113, 0x10000, v112
    s_waitcnt lgkmcnt(0)
    s_barrier
    """)
    for wv in range(4):
        for q in range(4):
            A(f"ds_read_b128 {vr(ACC+16*wv+4*q,4)}, v{112 + wv//2} offset:{(wv&1)*32768+q*1024}")
    A("s_waitcnt vmcnt(0) lgkmcnt(0)")
    X = ACC
    for r in range(16):
        A(f"v_add_f32 v{X+r}, v{X+r}, v{X+16+r}\nv_add_f32 v{X+32+r}, v{X+32+r}, v{X+48+r}")
    for r in range(16):
        A(f"v_add_f32 v{X+r}, v{X+r}, v{X+32+r}")
    rnd_bf16(A, [X + r for r in range(16)], 112)
    for r in range(16):
        src = 128 + r // 2
        A(f"v_lshlrev_b32 v112, 16, v{src}" if r % 2 == 0 else f"v_and_b32 v112, 0xffff0000, v{src}")
        A(f"v_add_f32 v{X+r}, v{X+r}, v112")
    rnd_bf16(A, [X + r for r in range(16)], 112)
    k2 = -2.0 * math.sqrt(2.0 / math.pi) * math.log2(math.e)
    A(f"s_mov_b32 s{sT+6}, {f32bits(k2):#x}\ns_mov_b32 s{sT+7}, {f32bits(k2*0.044715):#x}\nv_mov_b32 v113, s{sT+6}")
    for r in range(16):
        t = X + 16 + r
        A(f"v_mul_f32 v{t}, v{X+r}, v{X+r}\nv_fma_f32 v{t}, v{t}, s{sT+7}, v113\nv_mul_f32 v{t}, v{t}, v{X+r}")
    for r in range(16):
        A(f"v_exp_f32 v{X+16+r}, v{X+16+r}")
    for r in range(16):
        A(f"v_add_f32 v{X+16+r}, 1.0, v{X+16+r}")
    for r in range(16):
        A(f"v_rcp_f32 v{X+16+r}, v{X+16+r}")
    for r in range(16):
        A(f"v_mul_f32 v{X+r}, v{X+r}, v{X+16+r}")
    for i in range(8):
        A(f"v_cvt_pk_bf16_f32 v{X+32+i}, v{X+2*i}, v{X+2*i+1}")
    A(f"""
    s_lshl1_add_u32 s{sT+4}, s{sT+1}, s{sT+3}
    s_lshl_b32 s{sT+4}, s{sT+4}, 15
    s_and_b32 s{sT+5}, s{S_W}, 1
    s_lshl1_add_u32 s{sT+5}, s{sT}, s{sT+5}
    s_lshl_b32 s{sT+5}, s{sT+5}, 10
    s_add_u32 s{sT+4}, s{sT+4}, s{sT+5}
    s_add_u32 s{sT+4}, s{sT+4}, {WS_U:#x}
    s_add_u32 s{sT+5}, s{sT+4}, 0x4000
    buffer_store_dwordx4 {vr(X+32,4)}, v{vL16}, {WS}, s{sT+4} offen sc1
    buffer_store_dwordx4 {vr(X+36,4)}, v{vL16}, {WS}, s{sT+5} offen sc1
    s_lshl_b32 s{sT+4}, s{S_ID}, 2
    s_add_u32 s{sT+4}, s{sT+4}, {F_U:#x}
    s_waitcnt vmcnt(0)
    s_barrier
    buffer_store_dword v{vOne}, v{vSolo}, {WS}, s{sT+4} offen sc1
    """)
    A.vm, A.lg = [], []


def tr256_addr(A, dst, rowsh, base_s, t=120):
    A(f"""
    v_lshl_add_u32 v112, v{t+4}, {rowsh}, v{t+2}
    v_lshlrev_b32 v112, 8, v112
    v_lshl_add_u32 v112, v{t+2}, 6, v112
    v_and_b32 v113, 1, v{t+1}
    v_lshl_add_u32 v112, v113, 5, v112
    v_lshl_add_u32 v112, v{t+3}, 3, v112
    v_add_u32 v{dst}, s{base_s}, v112
    v_xor_b32 v{dst+1}, 64, v{dst}
    v_xor_b32 v{dst+2}, 128, v{dst}
    v_xor_b32 v{dst+3}, 192, v{dst}
    """)


def dma256_addr(A, dst, rowshift, t=120):
    A(f"""
    v_lshlrev_b32 v112, 2, v{t+1}
    v_xor_b32 v112, v{t}, v112
    v_lshlrev_b32 v112, 4, v112
    v_lshl_add_u32 v{dst}, v{t+1}, {rowshift}, v112
    """)


def p4(A, cfg):
    A.c("===== worker P4: base = x + (U w2 + b2)^T, 128x64 tile, K split over the waves =====")
    vW, vTr = 4, 12
    FB, UF, ACC = 16, 48, 128
    sG, sWo, sUo, sM = 60, 61, 62, 63
    A(f"""
    s_lshl_b32 s{sT}, s{S_ID}, 2
    s_mul_i32 s{sG}, s{sT}, 9363
    s_lshr_b32 s{sG}, s{sG}, 16                ; g = 4*rank/7
    s_mul_i32 s{sT+1}, s{sG}, 7
    s_sub_u32 s{sT}, s{sT}, s{sT+1}
    s_cmp_ge_u32 s{sT}, 4
    s_cbranch_scc1 L_p4_done
    s_lshr_b32 s{sT+10}, s{sG}, 3              ; sb
    s_and_b32 s{sT+11}, s{sG}, 7               ; db
    s_lshl_b32 s{sM}, s{S_W}, 15
    s_mul_i32 s{sWo}, s{S_W}, {448*4096}
    s_lshl_b32 s{sT}, s{sT+10}, 8
    s_add_u32 s{sWo}, s{sWo}, s{sT}
    s_mul_i32 s{sUo}, s{S_W}, {28*16384}
    s_lshl_b32 s{sT}, s{sT+11}, 11
    s_add_u32 s{sUo}, s{sUo}, s{sT}
    s_add_u32 s{sUo}, s{sUo}, {WS_U:#x}
    """)
    dma256_addr(A, vW, 12)
    tr256_addr(A, vTr, 2, sM)

    def dma(c):
        out = []
        for i in range(8):
            def f(i=i):
                A(f"s_add_u32 m0, s{sM}, {(c&3)*8192 + i*1024:#x}")
                A(f"s_add_u32 s{sT+8}, s{sWo}, {(32*c+4*i)*4096:#x}")
                A.vmem(f"buffer_load_dwordx4 v{vW}, s[{S_W2}:{S_W2+3}], s{sT+8} offen lds", ("c", c))
            out.append(f)
        return out

    def uload(c):
        out = []
        for kk in range(2):
            n = 2 * c + kk
            def f(n=n):
                A(f"s_add_u32 s{sT+8}, s{sUo}, {n*16384:#x}")
                for td in range(2):
                    A.vmem(f"buffer_load_dwordx4 {vr(UF+8*(n&7)+4*td,4)}, v{vL16}, {WS}, s{sT+8} offen offset:{td*1024}", ("c", c))
            out.append(f)
        return out

    def reads(n):
        c, kk = n // 2, n & 1
        out = []
        for ts in range(4):
            for hh in range(2):
                d = FB + 16 * (n & 1) + 4 * ts + 2 * hh
                off = (c & 3) * 8192 + kk * 4096 + hh * 2048
                out.append(lambda d=d, ts=ts, off=off: A.ds(f"ds_read_b64_tr_b16 {vr(d,2)}, v{vTr+ts} offset:{off}", ("f", n)))
        return out
    A.vm, A.lg = [], []
    for c in range(4):
        for f in dma(c):
            f()
    A(f"""
    v_min_u32 v113, 27, v{vLane}
    v_lshlrev_b32 v113, 5, v113
    s_lshl_b32 s{sT}, s{sT+11}, 2
    s_add_u32 s{sT}, s{sT}, {F_U:#x}
    """)
    poll_all(A, "L_p4_u", 113, sT, 1)
    A.vm = [("c", c) for c in range(4) for _ in range(8)]
    for c in range(4):
        for f in uload(c):
            f()
    A(f"""
    s_lshl_b32 s{sT}, s{sT+10}, 2
    s_add_u32 s{sT+9}, s{sT}, s{S_W}           ; stile
    s_lshl_b32 s{sT}, s{sT+9}, 15
    s_lshl_b32 s{sT+1}, s{sT+11}, 7
    s_add_u32 s{sT}, s{sT}, s{sT+1}
    v_lshlrev_b32 v112, 10, v125
    v_lshl_add_u32 v112, v124, 3, v112
    s_lshl_b32 s{sT+1}, s{sT+9}, 6
    v_lshlrev_b32 v113, 1, v125
    """)
    for td in range(2):
        for rho in range(4):
            A.vmem(f"buffer_load_dwordx2 {ar(8*td+2*rho,2)}, v112, s[{S_X}:{S_X+3}], s{sT} offen offset:{td*64+rho*16}", "x")
    A.vmem(f"buffer_load_ushort v5, v113, s[{S_B2}:{S_B2+3}], s{sT+1} offen", "x")
    A.wv(("c", 0))
    for f in reads(0):
        f()
    for n in range(28):
        c, kk = n // 2, n & 1
        rd, dm = [], []
        if n + 1 < 28:
            if kk == 1:
                A.wv(("c", c + 1))
            rd = reads(n + 1)
        A.wl(("f", n))
        if kk == 0 and c >= 1 and c + 3 < 14:
            dm = dma(c + 3) + uload(c + 3)
        b = FB + 16 * (n & 1)
        for ts in range(4):
            for td in range(2):
                acc = ACC + 16 * (2 * ts + td)
                A(f"v_mfma_f32_32x32x16_bf16 {vr(acc,16)}, {vr(UF+8*(n&7)+4*td,4)}, {vr(b+4*ts,4)}, {'0' if n == 0 else vr(acc,16)}")
                if rd:
                    rd.pop(0)()
                if dm and not (ts == 0 and td == 0):
                    dm.pop(0)()
                    if len(dm) > 6 - 2 * ts - td:
                        dm.pop(0)()
    A.nop(12)
    A(f"v_add_u32 v112, s{sM}, v{vL16}")
    for tl in range(8):
        for q in range(4):
            A(f"ds_write_b128 v112, {vr(ACC+16*tl+4*q,4)} offset:{tl*4096+q*1024}")
    A(f"""
    s_lshl_b32 s{sT+5}, s{S_W}, 13
    v_add_u32 v112, s{sT+5}, v{vL16}
    v_add_u32 v113, 0x10000, v112
    s_waitcnt lgkmcnt(0)
    s_barrier
    """)
    for wv in range(4):
        for q in range(8):
            A(f"ds_read_b128 {vr(ACC+32*wv+4*q,4)}, v{112 + wv//2} offset:{(wv&1)*32768+q*1024}")
    A("s_waitcnt vmcnt(0) lgkmcnt(0)")
    X = ACC
    for r in range(32):
        A(f"v_add_f32 v{X+r}, v{X+r}, v{X+32+r}\nv_add_f32 v{X+64+r}, v{X+64+r}, v{X+96+r}")
    for r in range(32):
        A(f"v_add_f32 v{X+r}, v{X+r}, v{X+64+r}")
    rnd_bf16(A, [X + r for r in range(32)], 112)
    A("v_lshlrev_b32 v5, 16, v5")
    for r in range(32):
        A(f"v_add_f32 v{X+r}, v{X+r}, v5")
    rnd_bf16(A, [X + r for r in range(32)], 112)
    for i in range(16):
        A(f"""
        v_accvgpr_read_b32 v112, a{i}
        v_lshlrev_b32 v113, 16, v112
        v_and_b32 v112, 0xffff0000, v112
        v_add_f32 v{X+2*i}, v{X+2*i}, v113
        v_add_f32 v{X+2*i+1}, v{X+2*i+1}, v112
        """)
    A(f"""
    s_lshl_b32 s{sT}, s{sT+9}, 16
    s_lshl_b32 s{sT+1}, s{sT+11}, 13
    s_add_u32 s{sT}, s{sT}, s{sT+1}
    s_add_u32 s{sT}, s{sT}, {WS_BASE:#x}
    s_add_u32 s{sT+1}, s{sT}, 0x1000
    """)
    for td in range(2):
        for rho in range(4):
            A(f"buffer_store_dwordx4 {vr(X+16*td+4*rho,4)}, v{vL16}, {WS}, s{sT+td} offen offset:{rho*1024} sc1")
    A(f"""
    s_lshl_b32 s{sT+4}, s{sG}, 2
    s_add_u32 s{sT+4}, s{sT+4}, {F_BASE:#x}
    s_waitcnt vmcnt(0)
    s_barrier
    buffer_store_dword v{vOne}, v{vSolo}, {WS}, s{sT+4} offen sc1
    L_p4_done:
    """)
    A.vm, A.lg = [], []


def p5(A, cfg):
    A.c("===== worker P5: attention of the segment tokens, output projection, head reduction =====")
    sH, sSeg, sM, sPrev, sQo, sMo, sPo, sBuf, sProg, sW10 = 60, 61, 62, 63, 64, 65, 66, 67, 68, 69
    sMask = 12
    vRd, vKm, vVx, vVm, vPs, vRl, vBs, vOut, vTeam, vCnt = 4, 5, 6, 7, 10, 12, 13, 14, 15, 2
    vSel = 16
    QF, KF, S, SM, P, PM, VF, O, OA, ACC = 20, 52, 84, 100, 116, 124, 128, 144, 208, 144
    NEG = f32bits(-1e9 / (128 ** -0.5))
    A(f"""
    s_mul_i32 s{sH}, s{S_ID}, 9363
    s_lshr_b32 s{sH}, s{sH}, 16                ; head
    s_mul_i32 s{sT}, s{sH}, 7
    s_sub_u32 s{sSeg}, s{S_ID}, s{sT}
    s_lshl_b32 s{sM}, s{S_W}, 15
    s_lshl_b32 s{sW10}, s{S_W}, 10
    s_lshl_b32 s{sProg}, s{sH}, 7
    s_add_u32 s{sProg}, s{sProg}, {F_PROG:#x}
    s_barrier
    """)
    dma256_addr(A, 4, 10)
    tr256_addr(A, 12, 2, sM)
    A(f"s_lshl_b32 s{sT}, s{sH}, 17\ns_lshl_b32 s{sT+1}, s{S_W}, 8\ns_add_u32 s{sT}, s{sT}, s{sT+1}")
    for i in range(32):
        A(f"s_add_u32 m0, s{sM}, {i*1024:#x}\ns_add_u32 s{sT+8}, s{sT}, {i*4096:#x}")
        A(f"buffer_load_dwordx4 v4, s[{S_WO}:{S_WO+3}], s{sT+8} offen lds")
    A(f"""
    v_and_b32 v113, {(1 << cfg.get('lj', 2)) - 1}, v{vLane}
    v_lshlrev_b32 v113, 7, v113
    s_lshr_b32 s{sT+1}, s{sH}, 1
    s_add_u32 s{sT+1}, s{sT+1}, 32
    s_sub_u32 s{sT+1}, s{sT+1}, s{sH}
    s_lshl_b32 s{sT+1}, s{sT+1}, 9
    v_and_b32 v114, 4, v{vLane}
    v_cmp_ne_u32 vcc, 0, v114
    v_mov_b32 v114, s{sT+1}
    s_nop 0
    v_cndmask_b32 v114, 0, v114, vcc
    v_add_u32 v113, v113, v114
    s_lshl_b32 s{sT+1}, s{sH}, 9
    s_add_u32 s{sT+1}, s{sT+1}, {F_P2:#x}
    """)
    poll_all(A, "L_p5_p2", 113, sT + 1, 64 >> cfg.get('lj', 2))
    A("s_waitcnt vmcnt(0)")
    for dt in range(4):
        for kap in range(8):
            for hh in range(2):
                A(f"ds_read_b64_tr_b16 {ar((dt*8+kap)*4+2*hh,2)}, v{12+dt} offset:{kap*4096+hh*2048}")
        A("s_waitcnt lgkmcnt(0)")
    n_, g_, r_, c_, hf_, el_ = 120, 121, 122, 123, 124, 125
    A(f"""
    s_barrier
    v_mov_b32 v{vRd}, v{vL16}
    v_and_b32 v112, 1, v{vLane}
    v_lshlrev_b32 v112, 8, v112
    v_bfe_u32 v113, v{vLane}, 1, 2
    v_lshl_add_u32 v112, v113, 6, v112
    v_lshl_add_u32 v112, v{hf_}, 4, v112
    v_add_u32 v{vKm}, 24576, v112
    v_lshlrev_b32 v112, 10, v{hf_}
    v_lshl_add_u32 v112, v{el_}, 4, v112
    v_add_u32 v{vVx}, 16384, v112
    v_and_b32 v112, 1, v{g_}
    v_lshlrev_b32 v112, 8, v112
    v_lshl_add_u32 v112, v{hf_}, 7, v112
    v_lshl_add_u32 v112, v{n_}, 2, v112
    v_add_u32 v{vVm}, {24576+2048}, v112
    v_lshlrev_b32 v112, 18, v{hf_}
    v_lshl_add_u32 v{vPs}, v{el_}, 4, v112
    v_lshlrev_b32 v112, 10, v{g_}
    v_lshl_add_u32 v112, v{n_}, 4, v112
    s_lshl_b32 s{sT}, s{S_W}, 8
    v_add_u32 v{vRl}, s{sT}, v112
    s_lshr_b32 s{sT}, s{sH}, 4
    s_lshl_b32 s{sT}, s{sT}, 4
    s_lshr_b32 s{sT+1}, s{sH}, 1
    s_and_b32 s{sT+1}, s{sT+1}, 4
    s_add_u32 s{sT}, s{sT}, s{sT+1}
    v_and_b32 v112, 1, v{r_}
    v_lshl_add_u32 v112, v112, 3, v{c_}
    v_add_u32 v112, s{sT}, v112                ; token
    s_and_b32 s{sT+2}, s{sH}, 7                ; q
    s_lshr_b32 s{sT}, s{S_W}, 1
    s_lshl1_add_u32 s{sT}, s{sT+2}, s{sT}
    s_lshl_b32 s{sT}, s{sT}, 12
    s_and_b32 s{sT+1}, s{S_W}, 1
    s_lshl_b32 s{sT+1}, s{sT+1}, 11
    s_add_u32 s{sT}, s{sT}, s{sT+1}
    v_lshlrev_b32 v113, 9, v{g_}
    v_lshl_add_u32 v113, v112, 4, v113
    v_add_u32 v{vBs}, s{sT}, v113
    s_lshl_b32 s{sT}, s{sT+2}, 7
    s_lshl_b32 s{sT+1}, s{S_W}, 5
    s_add_u32 s{sT}, s{sT}, s{sT+1}
    v_lshlrev_b32 v113, 10, v112
    v_lshl_add_u32 v113, v{g_}, 3, v113
    v_add_u32 v113, s{sT}, v113
    v_bfrev_b32 v114, 1
    v_cmp_lt_u32 vcc, 7, v{n_}
    s_nop 1
    v_cndmask_b32 v{vOut}, v113, v114, vcc
    v_and_b32 v112, 7, v{n_}
    v_lshrrev_b32 v113, 1, v112
    v_and_b32 v112, 1, v112
    v_mov_b32 v114, 0x3f80
    v_mov_b32 v115, 0x3f800000
    v_cmp_eq_u32 vcc, 1, v112
    s_nop 1
    v_cndmask_b32 v114, v114, v115, vcc
    """)
    for d in range(4):
        A(f"v_cmp_eq_u32 vcc, {d}, v113\ns_nop 1\nv_cndmask_b32 v{vSel+d}, 0, v114, vcc")
    A(f"v_lshlrev_b32 v112, 2, v{hf_}\nv_sub_u32 v112, v{el_}, v112")
    for r in range(16):
        A(f"v_cmp_le_i32 s[{sMask+2*r}:{sMask+2*r+1}], {8*(r>>2)+(r&3)}, v112")
    A(f"""
    v_mul_u32_u24 v{vTeam}, 448, v{vLane}
    s_lshl_b32 s{sT}, s{sSeg}, 6
    s_add_u32 s{sT}, s{sT}, {F_PART:#x}
    v_add_u32 v{vTeam}, s{sT}, v{vTeam}
    v_mov_b32 v{vCnt}, 0
    v_mov_b32 v{PM+2}, 0
    v_mov_b32 v{PM+3}, 0
    s_mov_b32 s{sPrev}, -1
    s_mov_b32 s{sBuf}, 0
    s_lshl_b32 s{sT}, s{sSeg}, 18
    s_lshl_b32 s{sT+1}, s{sH}, 13
    s_add_u32 s{sQo}, s{sT}, s{sT+1}
    s_add_u32 s{sQo}, s{sQo}, s{sW10}
    """)

    def qkv_dma(buf_s, src_s):
        for k, img in enumerate((WS_QX, WS_KX, WS_VX)):
            for i in range(2):
                A(f"s_add_u32 m0, s{buf_s}, {k*8192 + i*4096:#x}\ns_add_u32 s{sT+8}, s{src_s}, {img + i*4096:#x}")
                A(f"buffer_load_dwordx4 v{vL16}, {WS}, s{sT+8} offen lds")
    qkv_dma(sW10, sQo)

    def reduce_prev(uid):
        A(f"""
        s_lshr_b32 s{sT+1}, s{sPrev}, 2
        s_lshl_b32 s{sT+1}, s{sT+1}, 3
        s_and_b32 s{sT+2}, s{sH}, 7
        s_add_u32 s{sT+1}, s{sT+1}, s{sT+2}
        s_lshl_b32 s{sT+1}, s{sT+1}, 2
        s_add_u32 s{sT+1}, s{sT+1}, {F_BASE:#x}
        v_mov_b32 v114, s{sT+1}
        v_cmp_lt_u32 vcc, 31*16, v{vL16}
        s_mov_b32 s{sT+2}, 0
        s_nop 0
        v_cndmask_b32 v113, v{vTeam}, v114, vcc
        v_cndmask_b32 v114, v{vCnt}, v{vOne}, vcc
        """)
        poll_all(A, uid, 113, sT + 2, None, atleast=114, sleep=2)
        wstamp(A, cfg, 29, vtmp=244)
        A(f"""
        s_lshl_b32 s{sT}, s{sPrev}, 20
        s_lshl_b32 s{sT+1}, s{sH}, 15
        s_add_u32 s{sT}, s{sT}, s{sT+1}
        s_add_u32 s{sT}, s{sT}, {WS_PART:#x}
        """)
        for u in range(8):
            A(f"buffer_load_dwordx4 {vr(QF+4*u,4)}, v{vRl}, {WS}, s{sT} offen sc1\ns_add_u32 s{sT}, s{sT}, 0x1000")
        A(f"""
        s_lshl_b32 s{sT}, s{sPrev}, 16
        s_add_u32 s{sT}, s{sT}, {WS_BASE:#x}
        buffer_load_dwordx4 {vr(KF,4)}, v{vBs}, {WS}, s{sT} offen sc1
        s_lshl_b32 s{sT}, s{sPrev}, 15
        """)
        for u in range(8):
            A(f"s_waitcnt vmcnt({8-u})")
            A(f"v_mfma_f32_16x16x32_bf16 {vr(KF+4,4)}, {vr(QF+4*u,4)}, {vr(vSel,4)}, {'0' if u == 0 else vr(KF+4,4)}")
        A("s_waitcnt vmcnt(0)\ns_nop 7")
        for r in range(4):
            A(f"v_add_f32 v{KF+r}, v{KF+r}, v{KF+4+r}")
        A(f"""
        v_cvt_pk_bf16_f32 v{KF}, v{KF}, v{KF+1}
        v_cvt_pk_bf16_f32 v{KF+1}, v{KF+2}, v{KF+3}
        buffer_store_dwordx2 {vr(KF,2)}, v{vOut}, s[{S_OUT}:{S_OUT+3}], s{sT} offen
        """)

    A(f"""
    L_p5_loop:
    s_cmp_eq_u32 s{sPrev}, -1
    s_cbranch_scc1 L_p5_nored
    """)
    reduce_prev("L_p5_r1")
    A(f"""
    L_p5_nored:
    s_waitcnt vmcnt(0)
    s_barrier
    """)
    for k in range(8):
        A(f"ds_read_b128 {vr(QF+4*k,4)}, v{vRd} offset:{k*1024}")
        A(f"ds_read_b128 {vr(KF+4*k,4)}, v{vRd} offset:{8192+k*1024}")
    for k in range(8):
        A(f"s_waitcnt lgkmcnt({min(15, 14-2*k)})")
        A(f"v_mfma_f32_32x32x16_bf16 {vr(S,16)}, {vr(KF+4*k,4)}, {vr(QF+4*k,4)}, {'0' if k == 0 else vr(S,16)}")
    A(f"""
    s_cmp_lg_u32 s{S_W}, 0
    s_cbranch_scc1 L_p5_pgx
    L_p5_pg:
    {GUARD}
    buffer_load_dword v112, v{vZero}, {WS}, s{sProg} offen sc1
    s_waitcnt vmcnt(0)
    v_cmp_ge_u32 vcc, s{sSeg}, v112
    s_cbranch_vccz L_p5_pgx
    s_sleep 2
    s_branch L_p5_pg
    L_p5_pgx:
    s_barrier
    """)
    wstamp(A, cfg, 25, vtmp=244)
    A(f"""
    s_add_u32 s{sT}, s{sBuf}, s{sW10}
    s_add_u32 m0, s{sT}, 24576
    s_add_u32 s{sT+8}, s{sQo}, {WS_KVM:#x}
    buffer_load_dwordx4 v{vL16}, {WS}, s{sT+8} offen sc1 lds
    v_mov_b32 v243, {NEG:#x}
    s_nop 3
    """)
    for r in range(16):
        A(f"v_cndmask_b32 v{S+r}, v243, v{S+r}, s[{sMask+2*r}:{sMask+2*r+1}]")
    m_, t_ = 240, 241
    A(f"v_max3_f32 v{m_}, v{S}, v{S+1}, v{S+2}")
    for r in range(3, 15, 2):
        A(f"v_max3_f32 v{m_}, v{m_}, v{S+r}, v{S+r+1}")
    A(f"v_max_f32 v{m_}, v{m_}, v{S+15}")
    A("s_waitcnt vmcnt(0)\ns_barrier")
    wstamp(A, cfg, 26, vtmp=244)
    for k in range(8):
        A(f"ds_read_b128 {vr(KF+4*k,4)}, v{vKm} offset:{(k>>1)*512+(k&1)*32}")
    A(f"""
    s_xor_b32 s{sBuf}, s{sBuf}, 0x8000
    s_add_u32 s{sT}, s{sBuf}, s{sW10}
    s_add_u32 s{sT+1}, s{sQo}, {7 << 18:#x}
    """)
    qkv_dma(sT, sT + 1)
    for k in range(8):
        A(f"s_waitcnt lgkmcnt({7-k})")
        A(f"v_mfma_f32_32x32x16_bf16 {vr(SM,16)}, {vr(KF+4*k,4)}, {vr(QF+4*k,4)}, {'0' if k == 0 else vr(SM,16)}")
    VX, VM = QF, KF
    for et in range(4):
        for v in range(2):
            A(f"ds_read_b128 {vr(VX+8*et+4*v,4)}, v{vVx} offset:{et*2048+v*512}")
    for et in range(4):
        A(f"ds_read2_b32 {vr(VM+4*et,2)}, v{vVm} offset0:{et*128} offset1:{et*128+16}" if et < 2 else
          f"ds_read2_b32 {vr(VM+4*et,2)}, v242 offset0:{(et-2)*128} offset1:{(et-2)*128+16}")
        if et == 0:
            A(f"v_add_u32 v242, 1024, v{vVm}")
    A(f"""
    s_mov_b32 s{sT}, {f32bits(SM_C):#x}
    s_nop 3
    v_max3_f32 v{m_}, v{m_}, v{SM}, v{SM+1}
    v_max3_f32 v{m_}, v{m_}, v{SM+2}, v{SM+3}
    v_mov_b32 v{t_}, v{m_}
    s_nop 1
    v_permlane32_swap_b32 v{m_}, v{t_}
    v_max_f32 v{m_}, v{m_}, v{t_}
    v_mul_f32 v{m_}, s{sT}, v{m_}
    """)
    vals = [S + r for r in range(16)] + [SM + r for r in range(4)]
    for v in vals:
        A(f"v_fma_f32 v{v}, v{v}, s{sT}, -v{m_}")
    for v in vals:
        A(f"v_exp_f32 v{v}, v{v}")
    A(f"v_add_f32 v{m_}, v{vals[0]}, v{vals[1]}\nv_add_f32 v{t_}, v{vals[2]}, v{vals[3]}")
    for i in range(4, 20, 2):
        A(f"v_add_f32 v{m_}, v{m_}, v{vals[i]}\nv_add_f32 v{t_}, v{t_}, v{vals[i+1]}")
    A(f"""
    v_add_f32 v{m_}, v{m_}, v{t_}
    v_mov_b32 v{t_}, v{m_}
    s_nop 1
    v_permlane32_swap_b32 v{m_}, v{t_}
    v_add_f32 v{m_}, v{m_}, v{t_}
    v_rcp_f32 v{m_}, v{m_}
    s_nop 0
    """)
    for v in vals:
        A(f"v_mul_f32 v{v}, v{v}, v{m_}")
    for i in range(8):
        A(f"v_cvt_pk_bf16_f32 v{P+i}, v{S+2*i}, v{S+2*i+1}")
    A(f"v_cvt_pk_bf16_f32 v{PM}, v{SM}, v{SM+1}\nv_cvt_pk_bf16_f32 v{PM+1}, v{SM+2}, v{SM+3}")
    A("s_waitcnt lgkmcnt(0)")
    for et in range(4):
        A(f"v_mov_b32 v{VM+4*et+2}, 0\nv_mov_b32 v{VM+4*et+3}, 0")
    A("s_nop 1")
    for et in range(4):
        o = O + 16 * et
        A(f"v_mfma_f32_32x32x16_bf16 {vr(o,16)}, {vr(VX+8*et,4)}, {vr(P,4)}, 0")
        A(f"v_mfma_f32_32x32x16_bf16 {vr(o,16)}, {vr(VX+8*et+4,4)}, {vr(P+4,4)}, {vr(o,16)}")
        A(f"v_mfma_f32_32x32x16_bf16 {vr(o,16)}, {vr(VM+4*et,4)}, {vr(PM,4)}, {vr(o,16)}")
        if et >= 1:
            for i in range(8):
                A(f"v_cvt_pk_bf16_f32 v{OA+8*(et-1)+i}, v{o-16+2*i}, v{o-16+2*i+1}")
    A.nop(4)
    for i in range(8):
        A(f"v_cvt_pk_bf16_f32 v{OA+24+i}, v{O+48+2*i}, v{O+48+2*i+1}")
    A(f"""
    s_lshl_b32 s{sPo}, s{sSeg}, 20
    s_lshl_b32 s{sT}, s{sH}, 10
    s_add_u32 s{sPo}, s{sPo}, s{sT}
    s_lshl_b32 s{sT}, s{S_W}, 16
    s_add_u32 s{sPo}, s{sPo}, s{sT}
    s_add_u32 s{sPo}, s{sPo}, {WS_PART:#x}
    """)
    SGp = S
    def tail(dt):
        ins = []
        for a in range(2):
            for i in range(4):
                ins.append(f"v_cvt_pk_bf16_f32 v{SGp+8*(dt&1)+4*a+i}, v{ACC+16*dt+8*a+2*i}, v{ACC+16*dt+8*a+2*i+1}")
            ins.append(f"s_add_u32 s{sT+8}, s{sPo}, {(a*16 + (dt>>1))*32768:#x}\n"
                       f"buffer_store_dwordx4 {vr(SGp+8*(dt&1)+4*a,4)}, v{vPs}, {WS}, s{sT+8} offen offset:{(dt&1)*512} sc1")
        return ins
    pend = []
    for dt in range(4):
        for k in range(8):
            A(f"v_mfma_f32_32x32x16_bf16 {vr(ACC+16*dt,16)}, {vr(OA+4*k,4)}, {ar((dt*8+k)*4,4)}, {'0' if k == 0 else vr(ACC+16*dt,16)}")
            if k >= 2:
                for _ in range(2):
                    if pend:
                        A(pend.pop(0))
        pend = tail(dt)
    A.nop(12)
    for f in pend:
        A(f)
    wstamp(A, cfg, 27, vtmp=244)
    A(f"""
    s_lshl_b32 s{sT}, s{S_ID}, 6
    s_add_u32 s{sT}, s{sT}, {F_PART:#x}
    v_add_u32 v{vCnt}, 1, v{vCnt}
    v_xor_b32 v{vRd}, 0x8000, v{vRd}
    v_xor_b32 v{vKm}, 0x8000, v{vKm}
    v_xor_b32 v{vVx}, 0x8000, v{vVx}
    v_xor_b32 v{vVm}, 0x8000, v{vVm}
    s_waitcnt vmcnt(0)
    s_barrier
    buffer_store_dword v{vCnt}, v{vSolo}, {WS}, s{sT} offen sc1
    """)
    wstamp(A, cfg, 28, vtmp=244)
    A(f"""
    s_mov_b32 s{sPrev}, s{sSeg}
    s_add_u32 s{sSeg}, s{sSeg}, 7
    s_add_u32 s{sQo}, s{sQo}, {7 << 18:#x}
    s_cmp_lt_u32 s{sSeg}, 64
    s_cbranch_scc1 L_p5_loop
    """)
    reduce_prev("L_p5_r2")
    A("s_waitcnt vmcnt(0)")


def p345(A, cfg):
    p3(A, cfg)
    wstamp(A, cfg, 14)
    if cfg.get('stop') == 3:
        A("s_waitcnt vmcnt(0)\ns_branch L_end")
        return
    p4(A, cfg)
    wstamp(A, cfg, 15)
    if cfg.get('stop') == 4:
        A("s_waitcnt vmcnt(0)\ns_branch L_end")
        return
    p5(A, cfg)
    wstamp(A, cfg, 24)
```

```python
from common import *

L_KX = 0x0000
L_MEM = 0x4000
L_Q = 0x6000
L_O = 0x7200
L_W = 0x8000

vL16, vIDX, vQW, vTQ, vTK, vTO, vKX, vWL, vPS, vOW, vRS, vFL = range(12)
vONE = 12
vSEL = 16
MF = 20
AQ, AK, AV = 52, 60, 68
KX = 76
VB = 108
TT = 124
vZ = VB + 6

sODL = 10
sStep = 60
sP = 61
sPF = 63
sVXb = 64
sPR = 65
sRL, sFLc, sMO, sMRs, sG, sKXo, sVXo, sKM, sFLo, sM0K = 69, 70, 71, 72, 73, 74, 75, 76, 77, 78
sProg = 79
sODD = 80
sEVL = 82
sC = 84
sF0 = 85
sW11 = 86
sNeed = 87
sPb = 68
sT = 88
SENT_P = 0x7F817F81
LJ = [2]

LDSF = {('Q', 1, 0): 0, ('Q', 1, 2): 1, ('Q', 1, 4): 2, ('Q', 1, 6): 3,
        ('K', 1, 0): 4, ('K', 1, 2): 5, ('K', 1, 4): 6, ('K', 1, 6): 7,
        ('O', 0, 0): 8, ('O', 0, 1): 9, ('O', 2, 0): 10, ('O', 2, 1): 11,
        ('O', 4, 0): 12, ('O', 4, 1): 13, ('O', 6, 0): 14, ('O', 6, 1): 15}
RFF = {}
_slots = [Reg('a', 8 * i) for i in range(32)] + [Reg('v', 128 + 8 * i) for i in range(16)]
for m in 'QKV':
    for tau in range(2):
        for t in range(8):
            if (m, tau, t) not in LDSF:
                RFF[(m, tau, t)] = _slots.pop(0)
for j in range(8):
    for t in range(2):
        if ('O', j, t) not in LDSF:
            RFF[('O', j, t)] = _slots.pop(0)
assert not _slots
WS = f"s[{S_WS}:{S_WS+3}]"
import common


def smf(A, acc, a, b):
    A(f"v_smfmac_f32_16x16x64_bf16 {vr(acc,4)}, {vr(a,4)}, {b.r(0,8)}, v{vIDX}")


def lds_frag_load(A, key, dst, tag):
    f = LDSF[key]
    A.ds(f"ds_read_b128 {vr(dst,4)}, v{vWL} offset:{f*2048}", tag)
    A.ds(f"ds_read_b128 {vr(dst+4,4)}, v{vWL} offset:{f*2048+1024}", tag)


def cstamp(A, cfg, k):
    if cfg.get('cdiag'):
        A(f"s_memrealtime s[96:97]\ns_waitcnt lgkmcnt(0)\n" + (f"s_mov_b32 s{71+k}, s96" if k <= 6 else f"v_writelane_b32 v{TT}, s96, {k}") + ("".join(f"\nv_writelane_b32 v{TT}, s{71+j}, {j}" for j in range(1, 7)) if k == 6 else ""))


def perwave(A, fn):
    end = A.uid("Lwe")
    for w in range(4):
        nx = A.uid("Lwn")
        if w < 3:
            A(f"s_cmp_lg_u32 s{S_W}, {w}\ns_cbranch_scc1 {nx}")
        fn(w)
        if w < 3:
            A(f"s_branch {end}\n{nx}:")
    A.label(end)


def chain_startup(A, cfg):
    A.c("===== chain startup =====")
    A(f"""
    v_and_b32 v1, 63, v0              ; lane
    v_and_b32 v2, 15, v1              ; n
    v_lshrrev_b32 v3, 4, v1           ; g
    v_lshrrev_b32 v4, 1, v3           ; g>>1
    v_and_b32 v5, 1, v3               ; g&1
    v_lshrrev_b32 v6, 2, v2           ; r = n>>2
    v_and_b32 v7, 3, v2               ; c = n&3
    v_lshrrev_b32 v9, 3, v2
    v_lshl_add_u32 v9, v9, 1, v4       ; jl
    v_and_b32 v10, 7, v2
    v_lshl_add_u32 v8, v5, 3, v10
    v_lshlrev_b32 v8, 4, v8
    v_lshl_add_u32 v8, v9, 13, v8
    s_lshl_b32 s{sT}, s{S_W}, 3
    s_xor_b32 s{sT}, s{sT}, s{S_ID}
    s_xor_b32 s{sT}, s{sT}, 31
    v_xor_b32 v9, s{sT}, v9
    v_lshl_add_u32 v8, v9, 8, v8
    ; vRS = (h>>1)*512 + (h&1)*128 + ((n>>2)&1)*256 + (2(n>>3) + (g&1))*32 + (n&3)*8
    s_lshr_b32 s{sT}, s{S_ID}, 1
    s_lshl_b32 s{sT}, s{sT}, 9
    s_and_b32 s{sT+1}, s{S_ID}, 1
    s_lshl_b32 s{sT+1}, s{sT+1}, 7
    s_add_u32 s{sT}, s{sT}, s{sT+1}
    v_lshrrev_b32 v9, 3, v2
    v_lshl_add_u32 v10, v9, 1, v5
    v_lshlrev_b32 v10, 5, v10
    v_lshl_add_u32 v10, v7, 3, v10
    v_and_b32 v9, 1, v6
    v_lshl_add_u32 v10, v9, 8, v10
    v_add_u32 v10, s{sT}, v10
    """)
    A(f"""
    v_lshlrev_b32 v9, 1, v3
    v_xor_b32 v9, v2, v9
    v_lshlrev_b32 v9, 4, v9
    s_lshl_b32 s{sT}, s{S_W}, 2
    v_add_u32 v13, s{sT}, v3          ; 4w+g
    v_lshl_add_u32 v11, v13, 13, v9   ; vDmaA
    v_lshl_add_u32 v12, v13, 10, v9   ; vDmaB
    v_and_b32 v9, 1, v6               ; r&1
    v_lshrrev_b32 v13, 1, v6          ; r>>1
    v_lshl_add_u32 v14, v13, 1, v5    ; 2(r>>1)+(g&1)
    v_lshl_add_u32 v15, v9, 2, v14    ; phi
    v_lshl_add_u32 v14, v4, 2, v14
    v_lshl_add_u32 v14, v9, 4, v14    ; row
    v_lshlrev_b32 v14, 8, v14
    v_lshl_add_u32 v14, v15, 5, v14
    s_lshl_b32 s{sT}, s{S_W}, 6
    v_xor_b32 v14, s{sT}, v14
    v_lshrrev_b32 v15, 1, v7
    v_lshlrev_b32 v15, 5, v15
    v_xor_b32 v1, v15, v14
    v_and_b32 v15, 1, v7
    v_lshl_add_u32 v2, v15, 3, v1
    v_lshl_add_u32 v14, v7, 3, v14
    v_lshlrev_b32 v15, 1, v5
    v_lshl_add_u32 v1, v13, 2, v15
    v_lshl_add_u32 v1, v4, 3, v1
    v_lshl_add_u32 v1, v9, 4, v1      ; row
    v_lshl_add_u32 v15, v9, 2, v15    ; phi
    v_lshlrev_b32 v1, 8, v1
    v_lshl_add_u32 v1, v7, 3, v1
    v_lshl_add_u32 v13, v15, 5, v1
    v_xor_b32 v5, 128, v11
    v_xor_b32 v6, 128, v12
    """)
    chunks = [('O', t, c) for t in range(2) for c in range(4)]
    chunks += [(m, t, None) for m in 'QK' for t in (2, 4, 6)]
    chunks += [('V', t, None) for t in range(8)]
    chunks += [(m, t, None) for m in 'QK' for t in (1, 3, 5, 7)]
    chunks += [('Q', 0, None), ('K', 0, None)]
    slot = lambda ci: 2 + (ci % 8) if ci < 30 else (ci - 30)
    A(f"""
    s_lshl_b32 s{sT+2}, s{S_ID}, 8        ; h*256
    s_lshl_b32 s{sT+3}, s{S_ID}, 17       ; h*128*1024
    s_lshl_b32 s{sT+4}, s{S_W}, 10        ; w*4*256
    """)

    def issue(ci):
        m, t, c = chunks[ci]
        srd = {'Q': S_WQ, 'K': S_WK, 'V': S_WV, 'O': S_WO}[m]
        for i in range(4):
            A(f"s_add_u32 m0, s{sT+4}, {slot(ci)*16384 + i*4096:#x}")
            if m == 'O':
                A(f"s_add_u32 s{sT+1}, s{sT+3}, {(64*t+16*i)*1024 + c*256:#x}")
                va = 6 if i & 1 else 12
            else:
                A(f"s_add_u32 s{sT+1}, s{sT+2}, {(64*t+16*i)*8192:#x}")
                va = 5 if i & 1 else 11
            A.vmem(f"buffer_load_dwordx4 v{va}, s[{srd}:{srd+3}], s{sT+1} offen{' nt' if cfg.get('wnt') else ''} lds", ("ch", ci))

    held = {}
    hfree = [16 + 8 * i for i in range(14)]
    PD = cfg.get('pd', 0)

    def rowpf(ci, now):
        if not PD or ci >= 32 or chunks[ci][0] == 'O':
            return
        m, t, c = chunks[ci]
        srd = {'Q': S_WQ, 'K': S_WK, 'V': S_WV}[m]
        A(f"""
        v_and_b32 v9, 63, v0
        v_lshlrev_b32 v9, 6, v9
        s_lshl_b32 s{sT}, s{S_ID}, 14
        s_lshl_b32 s{sT+1}, s{S_W}, 12
        s_add_u32 s{sT}, s{sT}, s{sT+1}
        s_add_u32 s{sT}, s{sT}, {t << 19:#x}
        """)
        A.vmem(f"buffer_load_dword v{7 if now < 12 else 4}, v9, s[{srd}:{srd+3}], s{sT} offen", "rpf")
    WD = cfg.get('wd', 8)
    for ci in list(range(WD)) + ([30, 31] if WD == 8 else []):
        issue(ci)
    cstamp(A, cfg, 1)
    PK = lambda w: RFF[('K', 0, 2 * w)]
    PQ = lambda w: RFF[('Q', 0, 2 * w)]
    A(f"""
    v_and_b32 v9, 63, v0
    v_bfe_u32 v15, v9, 1, 3
    v_lshlrev_b32 v15, 10, v15
    v_lshrrev_b32 v1, 4, v9
    v_lshl_add_u32 v15, v1, 3, v15
    v_and_b32 v1, 1, v9
    v_lshl_add_u32 v15, v1, 2, v15
    s_lshl_b32 s{sT}, s{S_W}, 8
    """)
    perwave(A, lambda w: A("\n".join(f"buffer_load_dword {PK(w).r(4*u+tl)}, v15, s[{S_MEM0}:{S_MEM0+3}], s{sT} offen offset:{u*128+tl*32}"
                                     for u in range(2) for tl in range(4))))
    A.vm += ["m0"] * 8
    A(f"s_mov_b32 s{sT+5}, 0")
    for ci in range(32):
        m, t, c = chunks[ci]
        if ci == 3:
            common.zero_load(A, 3)
            A.vm.append("zl")
        if ci == 11:
            A.wv("zl")
            lab = A.uid("Lz")
            A(f"v_cmp_ne_u32 vcc, 1, v3\ns_cbranch_vccnz {lab}\ns_mov_b32 s{sT+5}, 1")
            common.announce(A, 3)
            A.label(lab)
        if ci == 20:
            A(f"""
            s_lshl_b32 s{sFLc}, s{S_ID}, 9
            s_add_u32 s{sFLc}, s{sFLc}, {F_P2:#x}
            v_and_b32 v1, 1, v0
            v_lshlrev_b32 v1, 7, v1
            """)
            A.vmem(f"buffer_load_dword v1, v1, {WS}, s{sFLc} offen sc1", "f0")
        if ci == 28:
            A.wv("f0")
            lab = A.uid("Lpf")
            A(f"""
            v_cmp_eq_u32 vcc, 0, v1
            s_cbranch_vccnz {lab}
            s_cmp_eq_u32 s{sT+5}, 0
            s_cbranch_scc1 {lab}
            s_mov_b32 s{sT+5}, 2
            v_and_b32 v1, 63, v0
            v_lshlrev_b32 v1, 7, v1
            s_lshl_b32 s{sT}, s{S_ID}, 13
            s_lshl_b32 s{sT+1}, s{S_W}, 18
            s_add_u32 s{sT+1}, s{sT+1}, s{sT}
            s_add_u32 s{sT+1}, s{sT+1}, {PRING:#x}
            buffer_load_dword v3, v1, {WS}, s{sT+1} offen
            s_lshl_b32 s{sT+1}, s{S_W}, 13
            s_add_u32 s{sT+1}, s{sT+1}, {MRING:#x}
            buffer_load_dword v3, v1, {WS}, s{sT+1} offen sc1
            s_and_b32 s{sT+1}, s{S_W}, 1
            s_lshl_b32 s{sT+1}, s{sT+1}, 18
            s_add_u32 s{sT}, s{sT}, s{sT+1}
            s_lshr_b32 s{sT+1}, s{S_W}, 1
            s_lshl_b32 s{sT+1}, s{sT+1}, 24
            s_add_u32 s{sT}, s{sT}, s{sT+1}
            s_add_u32 s{sT}, s{sT}, {WS_KX:#x}
            buffer_load_dword v3, v1, {WS}, s{sT} offen
            {lab}:
            """)
        if ci == 24:
            perwave(A, lambda w: common.table_load(A, PQ(w).r(0, 2), 9))
            A.vm.append("tl")
        if ci in (1, 10, 20, 30):
            cstamp(A, cfg, {1: 2, 10: 3, 20: 4, 30: 5}[ci])
        if ci == 22:
            A(f"""
            v_and_b32 v9, 63, v0
            v_lshlrev_b32 v9, 4, v9
            s_lshl_b32 s{sT+1}, s{S_W}, 15
            s_add_u32 s{sT+1}, s{sT+1}, {L_W:#x}
            v_add_u32 v7, s{sT+1}, v9          ; vWL
            """)
        if ci in (24, 26, 28, 30):
            lab = A.uid("Lhw")
            A(f"s_cmp_lg_u32 s{S_W}, { {24: 3, 26: 0, 28: 1, 30: 2}[ci] }\ns_cbranch_scc1 {lab}")
            wv_ = {24: 3, 26: 0, 28: 1, 30: 2}[ci]
            for key, r in held.items():
                f = LDSF[key] if key[0] == 'O' else LDSF[(key[0], 1, key[2] ^ (2 * wv_))]
                A(f"ds_write_b128 v7, {vr(r,4)} offset:{f*2048}")
                A(f"ds_write_b128 v7, {vr(r+4,4)} offset:{f*2048+1024}")
            A(f"s_waitcnt lgkmcnt(0)\n{lab}:")
        if ci == 30:
            A.wv("tl")
            perwave(A, lambda w: A("\n".join([f"v_accvgpr_read_b32 v{40+i}, {PK(w).r(i)}" for i in range(8)] +
                                              [f"v_accvgpr_read_b32 v{48+i}, {PQ(w).r(i)}" for i in range(2)])))
        A.wv(("ch", ci))
        A("s_barrier")
        sb = slot(ci) * 16384
        hi = sb & ~0x7fff
        lo = sb - hi
        if m == 'O':
            lab = A.uid("Lskipo")
            A(f"s_cmp_lg_u32 s{S_W}, {c}")
            A(f"s_cbranch_scc1 {lab}")
            for j in range(8):
                key = ('O', j, t)
                if key in LDSF:
                    if key not in held:
                        held[key] = hfree.pop(0)
                    dst = Reg('v', held[key])
                else:
                    dst = RFF[key]
                A(f"v_xor_b32 v9, {j*32}, v13")
                A(f"v_add_u32 v9, {hi:#x}, v9")
                A(f"v_xor_b32 v15, 32, v9")
                for k, (ad, off) in enumerate([(9, 0), (15, 256), (9, 8192), (15, 8192 + 256)]):
                    A.ds(f"ds_read_b64_tr_b16 {dst.r(2*k,2)}, v{ad} offset:{lo+off}", "tr")
                A.wl()
            A.label(lab)
        else:
            lds1 = m != 'V' and t % 2 == 0
            if lds1 and ci < 30:
                held[(m, 1, t)] = hfree.pop(0)
            for tau in range(2):
                ad = 9 if tau == 0 else 15
                if m == 'V':
                    A(f"v_xor_b32 v{ad}, {tau*32}, v14")
                    A(f"v_add_u32 v{ad}, {hi:#x}, v{ad}")
                else:
                    A(f"v_add_u32 v{ad}, {hi + tau*16:#x}, v2")
            end = A.uid("Lwe")
            for wv_ in range(4):
                nx = A.uid("Lwn")
                if wv_ < 3:
                    A(f"s_cmp_lg_u32 s{S_W}, {wv_}\ns_cbranch_scc1 {nx}")
                for tau in range(2):
                    if tau == 1 and lds1:
                        dst = Reg('v', held[(m, 1, t)] if ci < 30 else 16)
                    else:
                        dst = RFF[(m, tau, t ^ (2 * wv_))]
                    for k, off in enumerate([0, 8192, 2048, 8192 + 2048]):
                        A(f"ds_read_b64_tr_b16 {dst.r(2*k,2)}, v{9 if tau == 0 else 15} offset:{lo+off}")
                A("s_waitcnt lgkmcnt(0)")
                if lds1 and ci >= 30:
                    f = LDSF[(m, 1, t ^ (2 * wv_))]
                    A(f"ds_write_b128 v7, {vr(16,4)} offset:{f*2048}\nds_write_b128 v7, {vr(20,4)} offset:{f*2048+1024}\ns_waitcnt lgkmcnt(0)")
                if wv_ < 3:
                    A(f"s_branch {end}\n{nx}:")
            A.label(end)
        A("s_barrier")
        rowpf(ci + PD, ci)
        nxt = ci + WD
        if nxt < (30 if WD == 8 else 32):
            issue(nxt)
    assert not hfree
    cstamp(A, cfg, 6)
    A.c("chain address registers")
    A(f"""
    v_and_b32 v20, 63, v0             ; lane
    v_and_b32 v21, 15, v20            ; n
    v_lshrrev_b32 v22, 4, v20         ; g
    v_lshrrev_b32 v23, 1, v22         ; g>>1
    v_and_b32 v24, 1, v22             ; g&1
    v_lshrrev_b32 v25, 2, v21         ; r
    v_and_b32 v26, 3, v21             ; c
    v_lshlrev_b32 v{vL16}, 4, v20
    v_mov_b32 v{vIDX}, 0x4444
    v_mov_b32 v27, 0xeeee
    s_mov_b32 s{sODD}, 0xaaaaaaaa
    s_mov_b32 s{sODD+1}, 0xaaaaaaaa
    s_mov_b32 s{sEVL}, 0x55555555
    s_mov_b32 s{sEVL+1}, 0
    s_mov_b32 s{sODL}, 0xaaaaaaaa
    s_mov_b32 s{sODL+1}, 0
    s_mov_b32 s{sC}, {f32bits(SM_C):#x}
    s_mov_b32 s{sT+11}, {L_Q:#x}
    s_mov_b32 s{sT+10}, {L_O:#x}
    v_cndmask_b32 v{vIDX}, v{vIDX}, v27, s[{sODD}:{sODD+1}]
    s_lshl_b32 s{sT}, s{S_W}, 6
    v_lshlrev_b32 v27, 2, v21
    v_add_u32 v27, s{sT}, v27
    v_mul_u32_u24 v28, 1088, v22
    v_add3_u32 v{vQW}, v27, v28, s{sT+11}
    v_mul_u32_u24 v28, 640, v22
    v_add3_u32 v{vOW}, v27, v28, s{sT+10}
    v_lshrrev_b32 v27, 1, v21
    v_mul_u32_u24 v28, 544, v27
    v_lshl_add_u32 v28, v22, 4, v28
    v_add_u32 v{vTQ}, {L_Q:#x}, v28
    v_mul_u32_u24 v28, 320, v27
    v_lshl_add_u32 v28, v22, 5, v28
    v_and_b32 v29, 1, v21
    v_lshl_add_u32 v28, v29, 4, v28
    v_add_u32 v{vTO}, {L_O:#x}, v28
    v_and_b32 v27, 7, v21
    v_mul_u32_u24 v28, 544, v27
    v_lshl_add_u32 v28, v22, 4, v28
    v_add_u32 v{vTK}, {L_Q + 256:#x}, v28
    v_lshlrev_b32 v27, 9, v22
    v_lshl_add_u32 v{vKX}, v21, 4, v27
    v_and_b32 v29, 1, v25
    v_mov_b32 v30, 0x3f80
    v_mov_b32 v31, 0x3f800000
    v_cmp_eq_u32 vcc, 1, v29
    s_nop 1
    v_cndmask_b32 v30, v30, v31, vcc
    """)
    for d in range(4):
        A(f"v_cmp_eq_u32 vcc, {d}, v26\ns_nop 1\nv_cndmask_b32 v{vSEL+d}, 0, v30, vcc")
    for z in (VB + 6, VB + 7, VB + 14, VB + 15):
        A(f"v_mov_b32 v{z}, 0")
    if cfg.get('rsmask', 1):
        A(f"v_bfrev_b32 v30, 1\nv_cmp_lt_u32 vcc, 31, v20\ns_nop 1\nv_cndmask_b32 v{vRS}, v{vRS}, v30, vcc")
    A(f"v_bfrev_b32 v30, 1\nv_cmp_ne_u32 vcc, 0, v20\ns_nop 1\nv_cndmask_b32 v{vZ}, v{vZ}, v30, vcc")
    for z in range(4):
        A(f"v_mov_b32 v{vONE+z}, 0x3f803f80")
    lab = A.uid("Lci")
    A(f"s_cmp_lg_u32 s{sT+5}, 0\ns_cbranch_scc1 {lab}_z")
    common.wait_zero(A, 48)
    A(f"v_mov_b32 v48, 0\n{lab}_z:")
    common.validate(A, 48, preloaded=True)
    cstamp(A, cfg, 7)
    A(f"""
    s_mov_b32 s{sT+7}, s3
    v_mov_b32 v32, 0
    s_cmp_eq_u32 s{S_T}, 0
    s_cbranch_scc1 {lab}_r
    v_lshrrev_b32 v33, 2, v{vL16}
    s_mov_b32 s{sT+5}, 0
    {lab}_p2:
    {GUARD}
    buffer_load_dword v34, v33, {WS}, 0 offen sc1
    s_waitcnt vmcnt(0)
    v_cmp_ne_u32 vcc, 0x01010101, v34
    s_cbranch_vccnz {lab}_p2
    v_and_b32 v33, 28, v33
    {lab}_p3:
    {GUARD}
    buffer_load_dword v34, v33, {WS}, 0 offen offset:{F_LN+32} sc1
    s_waitcnt vmcnt(0)
    v_cmp_ne_u32 vcc, 0x01010101, v34
    s_cbranch_vccnz {lab}_p3
    {lab}_r:
    """)
    cstamp(A, cfg, 8)
    lab = A.uid("Lf0")
    A(f"""
    s_mov_b32 s{sF0}, 1
    s_cmp_eq_u32 s{sT+5}, 2
    s_cbranch_scc1 {lab}_ok
    {lab}:
    {GUARD}
    buffer_load_dword v{vFL}, v32, {WS}, s{sFLc} offen sc1
    buffer_load_dword v34, v32, {WS}, s{sFLc} offen offset:128 sc1
    s_waitcnt vmcnt(0)
    v_min_u32 v{vFL}, v{vFL}, v34
    s_nop 0
    v_readfirstlane_b32 s{sF0}, v{vFL}
    s_cmp_eq_u32 s{sF0}, 0
    s_cbranch_scc1 {lab}
    {lab}_ok:
    s_lshl_b32 s{sT}, s{S_ID}, 13
    s_lshl_b32 s{sT+1}, s{S_W}, 11
    s_add_u32 s{sVXb}, s{sT}, s{sT+1}
    s_add_u32 s{sVXb}, s{sVXb}, {WS_VX:#x}
    s_mov_b32 s{sVXo}, s{sVXb}
    s_add_u32 s{sKXo}, s{sT}, s{sT+1}
    s_add_u32 s{sKXo}, s{sKXo}, {WS_KX:#x}
    s_mov_b32 s{sM0K}, s{sT+1}
    s_lshl_b32 s{sT+2}, s{S_W}, 9
    s_add_u32 s{sKM}, s{sT}, s{sT+2}
    s_add_u32 s{sKM}, s{sKM}, {WS_KVM - 0x40000:#x}
    s_add_u32 s{sPF}, s{sT}, s{sT+1}
    s_add_u32 s{sPF}, s{sPF}, {WS_VX:#x}
    s_mov_b32 m0, s{sM0K}
    s_nop 0
    buffer_load_dwordx4 v{vL16}, {WS}, s{sKXo} offen lds
    buffer_load_dwordx4 v{vL16}, {WS}, s{sKXo} offen offset:1024 lds
    """)
    A(f"""
    s_mov_b32 s{sT}, 0x05040100
    s_mov_b32 s{sT+1}, 0x07060302
    """)
    for u in range(2):
        b = 40 + 4 * u
        A(f"""
        v_perm_b32 v{MF+4*u}, v{b+1}, v{b}, s{sT}
        v_perm_b32 v{MF+4*u+1}, v{b+3}, v{b+2}, s{sT}
        v_perm_b32 v{MF+4*u+2}, v{b+1}, v{b}, s{sT+1}
        v_perm_b32 v{MF+4*u+3}, v{b+3}, v{b+2}, s{sT+1}
        """)
    A(f"""
    s_mov_b32 s{sStep}, 0
    s_lshl_b32 s{sProg}, s{S_ID}, 7
    s_add_u32 s{sProg}, s{sProg}, {F_PROG:#x}
    v_bfrev_b32 v{TT}, 1
    s_cmp_eq_u32 s{S_W}, 1
    s_cselect_b64 vcc, -1, 0
    s_nop 1
    v_cndmask_b32 v{vZ+1}, v{TT}, v{vZ}, vcc
    """)
    A.vm = []
    A.lg = []
    step_offsets(A)
    pre_step(A)
    hop_addr(A)
    A(f"v_lshrrev_b32 v{TT+2}, 2, v{vL16}")
    A(f"ds_write_b128 v{GW}, {vr(MF,4)} offset:{L_MEM}\nds_write_b128 v{GW}, {vr(MF+4,4)} offset:{L_MEM+1024}")
    A("s_waitcnt vmcnt(0) lgkmcnt(0)")
    A.lg = []
    cstamp(A, cfg, 9)
    if cfg.get('cdiag'):
        A(f"v_writelane_b32 v{TT}, s100, 0")
        A(f"s_lshl_b32 s96, s{S_ID}, 8\ns_add_u32 s96, s96, 0x118000\nv_lshrrev_b32 v{TT+1}, 2, v{vL16}\nbuffer_store_dword v{TT}, v{TT+1}, {WS}, s96 offen")


def step_offsets(A):
    A(f"""
    s_and_b32 s{sT}, s{sStep}, 3
    s_lshl_b32 s{sT+1}, s{sT}, 18
    s_add_u32 s{sT+1}, s{sT+1}, {PRING:#x}
    s_lshl_b32 s{sT+2}, s{S_W}, 16
    s_add_u32 s{sP}, s{sT+1}, s{sT+2}
    s_bitcmp1_b32 s{S_ID}, 2
    s_movk_i32 s{sPb}, 0x7c00
    s_cselect_b32 s{sPb}, 0x8400, s{sPb}
    s_add_u32 s{sP+1}, s{sP}, s{sPb}
    s_lshl_b32 s{sT+2}, s{S_ID}, 13
    s_add_u32 s{sRL}, s{sT+1}, s{sT+2}
    s_add_u32 s{sT+1}, s{sStep}, 3
    s_and_b32 s{sT+1}, s{sT+1}, 3
    s_lshl_b32 s{sT+1}, s{sT+1}, 18
    s_lshl_b32 s{sT+2}, s{S_W}, 16
    s_add_u32 s{sT+1}, s{sT+1}, s{sT+2}
    s_add_u32 s{sPR}, s{sT+1}, {PRING:#x}
    s_add_u32 s{sPR+1}, s{sPR}, s{sPb}
    s_lshl_b32 s{sMRs}, s{sT}, 13
    s_add_u32 s{sMRs}, s{sMRs}, {MRING:#x}
    s_add_u32 s{sT+1}, s{sStep}, 1
    s_and_b32 s{sT+1}, s{sT+1}, 3
    s_lshl_b32 s{sT+1}, s{sT+1}, 13
    s_add_u32 s{sMO}, s{sT+1}, {MRING:#x}
    s_lshl_b32 s{sT+1}, s{S_W}, 11
    s_add_u32 s{sG}, s{sMO}, s{sT+1}
    s_add_u32 s{sKXo}, s{sKXo}, 0x40000
    s_add_u32 s{sPF}, s{sPF}, 0x40000
    s_add_u32 s{sKM}, s{sKM}, 0x40000
    s_xor_b32 s{sM0K}, s{sM0K}, 0x2000
    s_add_u32 s{sFLo}, s{sFLc}, {128 * (2 & ((1 << LJ[0]) - 1))}
    s_mov_b32 s{sNeed}, 0
    s_lshl_b32 s{sW11}, s{S_W}, 11
    """)


def pre_step(A):
    for t in range(4):
        lds_frag_load(A, ('Q', 1, 2 * t), KX + 8 * t, ("sb", t))
    for r in range(AQ, AQ + 24, 2):
        A(f"v_mov_b64 {vr(r,2)}, 0")


GW = VB + 3
vM = [None, VB, VB + 1, VB + 4]


def hop_addr(A):
    A(f"v_add_u32 v{GW}, s{sW11}, v{vL16}")
    for j in range(1, 4):
        A(f"v_xor_b32 v{vM[j]}, {j << 11:#x}, v{GW}")


def emit(A, f):
    f() if callable(f) else A(f)


def weave(A, mf, fill, per=1, lead=0):
    fill = list(fill)
    for i, m in enumerate(mf):
        m()
        if i >= lead:
            for _ in range(per):
                if fill:
                    emit(A, fill.pop(0))
    for f in fill:
        emit(A, f)


def stamp(A, cfg, name):
    d = cfg.get('diag', ())
    if name in d:
        k = list(d).index(name)
        A(f"{'s_memrealtime' if cfg.get('abs') else 's_memtime'} s[{12+2*k}:{13+2*k}]")


def fold(x):
    return [f"v_add_f32 v{x}, v{x}, v{x+1}", f"v_add_f32 v{x+2}, v{x+2}, v{x+3}"]


def chain_loop(A, cfg, mode):
    st = " sc1" if mode == 'slow' else ""
    L = f"Lchain_{mode}"
    dA, dB, dB2 = cfg.get('dA', 0), cfg.get('dB', 24), cfg.get('dB2', 12)
    noside = cfg.get('noside', 0)
    A.c(f"===== chain loop ({mode}) =====")
    Lg = A.uid("Lhop")

    def isvalu(f):
        return isinstance(f, str) and f.startswith("v_")

    def gap(m, *items):
        m()
        its = [f for f in items if f is not None]
        for f in its:
            if not isvalu(f):
                emit(A, f)
        for f in its:
            if isvalu(f):
                A(f)

    def pop(lst):
        return lst.pop(0) if lst else None

    def ldsf(key, dst, tag):
        f = LDSF[key]
        return [lambda: A.ds(f"ds_read_b128 {vr(dst,4)}, v{vWL} offset:{f*2048}", tag),
                lambda: A.ds(f"ds_read_b128 {vr(dst+4,4)}, v{vWL} offset:{f*2048+1024}", tag)]

    def v_convert():
        ins = []
        for tau in range(2):
            x, b = AV + 4 * tau, VB + 8 * tau
            ins += fold(x) + [f"v_cvt_pk_bf16_f32 v{b+2}, v{x}, v{x+2}", f"v_cvt_pk_bf16_f32 v{b+3}, v{x}, v{x+2}"]
        return ins

    vL4 = TT + 2

    def v_publish(so):
        if cfg.get('nopub'):
            return []
        return [lambda: A.vmem(f"buffer_store_dword v{VB+2}, v{vL4}, {WS}, s{so} offen offset:2048 sc1", "vm"),
                lambda: A.vmem(f"buffer_store_dword v{VB+10}, v{vL4}, {WS}, s{so} offen offset:2304 sc1", "vm")]

    def pairfold(x):
        return fold(x) + fold(x + 4) + [f"v_cvt_pk_bf16_f32 v{x}, v{x}, v{x+4}", f"v_cvt_pk_bf16_f32 v{x+1}, v{x+2}, v{x+6}"]

    def qkv_phases(last):
        slowlab = A.uid("Lflagslow")

        def Q(i, tau):
            b = Reg('v', KX + 4 * i) if (tau and i % 2 == 0) else RFF[('Q', tau, i)]
            return (lambda: A("s_nop 0")) if last else (lambda: smf(A, AQ + 4 * tau, MF + 4 * i, b))

        def K(i, tau):
            b = Reg('v', KX + 4 * i) if (tau and i % 2 == 0) else RFF[('K', tau, i)]
            return lambda: smf(A, AK + 4 * tau, MF + 4 * i, b)
        mfr = [lambda i=i: A.ds(f"ds_read_b128 {vr(MF+4*i,4)}, v{vM[i//2]} offset:{L_MEM+(i&1)*1024}", ("mf", i)) for i in range(2, 8)]
        kl = {i: ldsf(('K', 1, i), KX + 4 * i, ("sb", i)) for i in (0, 2, 4, 6)}
        rst = [lambda b=b: A.vmem(f"buffer_store_dwordx4 {vr(TT,4)}, v{vPS}, {WS}, s{sPR+b} offen{st}", "rst") for b in range(2)]
        if last or cfg.get('rhop'):
            rst = [None, None]
        C0, C1 = TT + 3, TT + 1
        ops = {'r0': rst[0], 'r1': rst[1],
               'pg': lambda: A.vmem(f"buffer_store_dword v{TT}, v{vZ+1}, {WS}, s{sProg} offen sc1", "prog")}
        if not cfg.get('nopub'):
            ops['m0'] = lambda: A.vmem(f"buffer_store_dword v{C0}, v{vL4}, {WS}, s{sT+8} offen offset:2048 sc1", "vm")
            ops['m1'] = lambda: A.vmem(f"buffer_store_dword v{C1}, v{vL4}, {WS}, s{sT+8} offen offset:2304 sc1", "vm")
        if not last and not noside:
            ops.update({
                'v0': lambda: A.vmem(f"buffer_load_dwordx4 {vr(VB,4)}, v{vKX}, {WS}, s{sVXo} offen", "vx"),
                'v1': lambda: A.vmem(f"buffer_load_dwordx4 {vr(VB+8,4)}, v{vKX}, {WS}, s{sVXo} offen offset:256", "vx"),
                'k0': lambda: A.vmem(f"buffer_load_dwordx4 v{vL16}, {WS}, s{sKXo} offen lds", "kx"),
                'k1': lambda: A.vmem(f"buffer_load_dwordx4 v{vL16}, {WS}, s{sKXo} offen offset:1024 lds", "kx"),
                'pa': f"v_lshlrev_b32 v{VB+5}, 1, v{vL16}",
                'pf': lambda: A.vmem(f"buffer_load_dword v{vFL}, v{VB+5}, {WS}, s{sPF} offen", "pf"),
                'fl': lambda: A.vmem(f"buffer_load_dword v{vFL}, v{vZ}, {WS}, s{sFLo} offen sc1", "fl")})
        plan = cfg.get('plan', {'g0': 'm0', 'g1': 'm1', 'g4': 'n0', 'g5': 'n1', 'g6': 'pv', 'g8': 'pg', 'q0': 's0', 'q1': 's1', 'q2': 's2', 'q3': 'v0',
                                'q4': 's3', 'q6': 'v1', 'q8': 'pa', 'q9': 'r0', 'k0': 'pf', 'k4': 'r1', 'k8': 'k0', 'k11': 'fl', 'w1': 'k1'})
        used = set()

        def X(name):
            o = plan.get(name)
            used.add(name)
            return ops.get(o)
        kmlate = not cfg.get('nopub')
        V = lambda i, tau: (lambda: smf(A, AV + 4 * tau, MF + 4 * i, RFF[('V', tau, i)]))
        if kmlate:
            ops['n0'] = lambda: (A.wl("kr"), A.vmem(f"buffer_store_dword v{TT}, v{vL4}, {WS}, s{sT+8} offen sc1", "km"))
            ops['n1'] = lambda: A.vmem(f"buffer_store_dword v{TT+1}, v{vL4}, {WS}, s{sT+8} offen offset:256 sc1", "km")
        C0, C1 = VB + 2, VB + 10
        ops['pv'] = f"v_mov_b32 v{TT+3}, s{sT+11}"
        ops['pg'] = lambda: A.vmem(f"buffer_store_dword v{TT+3}, v{vZ+1}, {WS}, s{sProg} offen sc1", "prog")
        if not last and not cfg.get('rhop'):
            for i in range(4):
                ops[f's{i}'] = f"v_mov_b32 v{TT+i}, {SENT_P:#x}"
        own = [Q(0, 1), Q(0, 0), Q(1, 0), Q(1, 1), K(1, 0), K(1, 1), V(0, 0), V(0, 1), V(1, 0), V(1, 1), K(0, 0), K(0, 1)]
        npre = cfg.get('npre0', 7)
        for g, m in enumerate(own):
            it = [X(f'g{g}')]
            if g == 0:
                it.insert(0, lambda: A.ds(f"ds_read2_b32 {vr(TT,2)}, v{vQW} offset0:64 offset1:200", "kr"))
            if g in (1, 2):
                it.insert(0, kl[0][g - 1])
            if g == 3 and not last:
                it.append(f"s_cmp_le_u32 s{sF0}, s{sNeed}\ns_cbranch_scc1 {slowlab}\n{slowlab}_ret:")
            if g == 4:
                it.append(f"s_mov_b32 m0, s{sM0K}")
            if g >= npre:
                it.insert(0, pop(mfr))
            if g == 10:
                it.append(lambda: A.wl(("sb", 0)))
            gap(m, *it)
            if g == npre - 1:
                if not last:
                    stamp(A, cfg, 'b0')
                A.wl("gw")
                A("s_barrier")
                if not last:
                    stamp(A, cfg, 'b1')
                pop(mfr)()
        A.wl(("mf", 2))
        if not last:
            stamp(A, cfg, 'mf')
        kxr, fill = [], []
        if not last:
            fill = pairfold(AQ)
            kxr = [lambda t=t, a=a: A.ds(f"ds_read_b128 {vr(KX+8*t+4*a,4)}, v{vKX} offset:{t*2048+a*256}", "kxf")
                   for t in range(4) for a in range(2)]
        ds = {0: pop(mfr), 1: pop(mfr), 2: kl[2][0], 3: kl[2][1], 4: pop(kxr), 5: pop(kxr), 6: kl[4][0], 7: kl[4][1], 10: kl[6][0], 11: kl[6][1]}
        wt = {1: ("mf", 4), 5: ("mf", 7)}
        for n in range(12):
            i, tau = 2 + n // 2, (n + 1) & 1 if (2 + n // 2) % 2 == 0 else n & 1
            it = [ds.get(n), X(f'q{n}')]
            if n in wt:
                it.append(lambda n=n: A.wl(wt[n]))
            if n == 11:
                it.append(lambda: A.wl(("sb", 2)))
            gap(Q(i, tau), *it)
        if not last:
            stamp(A, cfg, 'q')
        for n in range(12):
            i, tau = 2 + n // 2, (n + 1) & 1 if (2 + n // 2) % 2 == 0 else n & 1
            it = []
            if n >= 1:
                it.append(pop(fill))
            if n == 7 and not last:
                it.append(lambda: A.ds(f"ds_write2_b32 v{vQW}, v{AQ}, v{AQ+1} offset0:0 offset1:136", "qw"))
            elif n in (1, 2, 5, 6, 9, 10):
                it.append(pop(kxr))
            if n == 3:
                it.append(lambda: A.wl(("sb", 6)))
            it.append(X(f'k{n}'))
            gap(K(i, tau), *it)
        assert not kxr and not fill and not mfr
        if not last:
            stamp(A, cfg, 'k')
        mf = [lambda t=t, tau=tau: smf(A, AV + 4 * tau, MF + 4 * t, RFF[('V', tau, t)]) for t in range(2, 8) for tau in range(2)]
        pub = [lambda: A.vmem(f"buffer_store_dword v{AK}, v{vL4}, {WS}, s{sKM} offen sc1", "km"),
               lambda: A.vmem(f"buffer_store_dword v{AK+1}, v{vL4}, {WS}, s{sKM} offen offset:256 sc1", "km")]
        if cfg.get('nopub') or (kmlate and not last):
            pub = []
        return mf, pub, X, slowlab


    def house():
        A(f"""
        s_mov_b32 s{sT+6}, s{sRL}
        s_add_u32 s{sT+7}, s{sRL}, 0x1000
        s_mov_b32 s{sT+4}, s{sMO}
        s_mov_b32 s{sT+5}, s{sMRs}
        s_mov_b32 s{sT+3}, s{sG}
        s_mov_b32 s{sT+9}, 0
        s_mov_b32 s{sT+10}, 0
        s_mov_b32 s{sT+8}, s{sKM}
        s_mov_b32 s{sT+11}, s{sStep}
        """)

    def house2():
        return f"""
        s_add_u32 s{sStep}, s{sStep}, 1
        s_mov_b32 s{sPR}, s{sP}
        s_mov_b32 s{sPR+1}, s{sP+1}
        s_mov_b32 s{sMRs}, s{sMO}
        s_add_u32 s{sP}, s{sP}, 0x40000
        s_bitset0_b32 s{sP}, 20
        s_add_u32 s{sP+1}, s{sP}, s{sPb}
        s_add_u32 s{sRL}, s{sRL}, 0x40000
        s_bitset0_b32 s{sRL}, 20
        s_add_u32 s{sMO}, s{sMO}, 0x2000
        s_bitset0_b32 s{sMO}, 15
        s_add_u32 s{sG}, s{sG}, 0x2000
        s_bitset0_b32 s{sG}, 15
        s_add_u32 s{sKXo}, s{sKXo}, 0x40000
        s_add_u32 s{sVXb}, s{sVXb}, 0x40000
        s_and_b32 s{sT}, s{sM0K}, 0x2000
        s_sub_u32 s{sVXo}, s{sVXb}, s{sT}
        s_add_u32 s{sPF}, s{sPF}, 0x40000
        s_add_u32 s{sKM}, s{sKM}, 0x40000
        s_xor_b32 s{sM0K}, s{sM0K}, 0x2000
        s_add_u32 s{sT}, s{sStep}, 1
        s_lshr_b32 s{sNeed}, s{sT}, {LJ[0]}
        s_add_u32 s{sT}, s{sStep}, 2
        s_and_b32 s{sT}, s{sT}, {(1 << LJ[0]) - 1}
        s_lshl_b32 s{sT}, s{sT}, 7
        s_add_u32 s{sFLo}, s{sFLc}, s{sT}
        """.strip().split("\n")

    def rload(u, s0):
        A(f"buffer_load_dwordx4 {vr(MF+4*u,4)}, v{vL16}, {WS}, s{s0+u//4} offen offset:{(u%4)*1024} sc1")

    def rround():
        for u in range(8):
            rload(u, sT + 6)
    A(f"{L}:\ns_branch {Lg}_compute")
    A(f".p2align {cfg.get('al', 6)}")
    for _ in range(cfg.get('alo', 0)):
        A("s_nop 0")
    A.label(Lg)
    n0 = len(A.lines)
    MRS = f"v_mov_b32 v{TT+2}, -1\nv_mov_b32 v{TT+3}, -1\nbuffer_store_dwordx2 {vr(TT+2,2)}, v{vRS}, {WS}, s{sT+5} offen{st}"
    if cfg.get('mrlate', 1):
        A(MRS)
    house()
    pre_step(A)
    hop_addr(A)
    hk = A.lines[n0:]
    del A.lines[n0:]
    hs = max(2, min(len(hk), cfg.get('hsplit', len(hk))))
    A.lines += hk[:hs]
    A.nop(dA)
    stamp(A, cfg, 'r0')
    rround()
    stamp(A, cfg, 'ri')
    A.lines += hk[hs:]
    nr = cfg.get('nr', 4)
    if nr < 0:
        A(f"s_branch {Lg}_red1\n{Lg}_red:") if hk[hs:] or True else None
        rround()
        A.label(Lg + "_red1")
        for u in range(8):
            A(f"s_waitcnt vmcnt({7 - u})")
            A(f"v_mfma_f32_16x16x32_bf16 {vr(TT,4)}, {vr(vSEL,4)}, {vr(MF+4*u,4)}, {'0' if u==0 else vr(TT,4)}")
    else:
        A.label(Lg + "_red")
        for u in range(nr):
            rload(u, sT + 6)
        for u in range(8):
            A(f"s_waitcnt vmcnt({7 - u + min(8, nr + u)})")
            A(f"v_mfma_f32_16x16x32_bf16 {vr(TT,4)}, {vr(vSEL,4)}, {vr(MF+4*u,4)}, {'0' if u==0 else vr(TT,4)}")
            if nr + u < 8:
                rload(nr + u, sT + 6)
    stamp(A, cfg, 'rm')
    A(f"""
    s_add_u32 s{sT+9}, s{sT+9}, 1
    s_cmp_gt_u32 s{sT+9}, 64
    s_cbranch_scc1 {Lg}_nan
    s_nop 4
    v_cmp_u_f32 vcc, v{TT}, v{TT}
    v_cvt_pk_bf16_f32 v{TT}, v{TT}, v{TT+1}
    v_cvt_pk_bf16_f32 v{TT+1}, v{TT+2}, v{TT+3}
    s_cbranch_vccnz {Lg}_red
    {Lg}_ok:
    buffer_store_dwordx2 {vr(TT,2)}, v{vRS}, {WS}, s{sT+4} offen{st}
    """)
    stamp(A, cfg, 'r1')
    A(f"""
    {'' if cfg.get('mrlate', 1) else MRS}
    {Lg}_bar:
    s_waitcnt lgkmcnt(0)
    s_barrier
    """)
    stamp(A, cfg, 6)
    G = MF

    def ground():
        A(f"buffer_load_dwordx4 {vr(G,4)}, v{vL16}, {WS}, s{sT+3} offen sc1")
        A(f"buffer_load_dwordx4 {vr(G+4,4)}, v{vL16}, {WS}, s{sT+3} offen offset:1024 sc1")
    if True:
        mA, mB = 54, 52
        h2 = [l.strip() for l in house2()] + [f"s_mov_b64 s[{mA}:{mA+1}], -1", f"s_mov_b64 s[{mB}:{mB+1}], -1", f"v_lshrrev_b32 v{TT+2}, 2, v{vL16}"]
        depth = cfg.get('gdepth', 3)
        spw = cfg.get('spw', 0)
        W0 = f"ds_write_b128 v{GW}, {vr(G,4)} offset:{L_MEM}"
        W1 = f"ds_write_b128 v{GW}, {vr(G+4,4)} offset:{L_MEM+1024}"
        n1, n2 = cfg.get('h2a', 26), cfg.get('h2b', 4)
        A("\n".join(h2[:n1]))
        ground()
        A("\n".join(h2[n1:n1+n2]))
        if depth == 3:
            ground()
        A("\n".join(h2[n1+n2:]))
        A(f"""
        {Lg}_poll:
        s_mov_b64 exec, s[{mA}:{mA+1}]
        buffer_load_dwordx4 {vr(G,4)}, v{vL16}, {WS}, s{sT+3} offen sc1
        s_mov_b64 exec, s[{mB}:{mB+1}]
        buffer_load_dwordx4 {vr(G+4,4)}, v{vL16}, {WS}, s{sT+3} offen offset:1024 sc1
        s_mov_b64 exec, -1
        s_add_u32 s{sT+10}, s{sT+10}, 1
        s_cmp_gt_u32 s{sT+10}, 0x400000
        s_cbranch_scc1 L_end
        {Lg}_chk:
        s_waitcnt vmcnt({2*depth-1})
        v_max3_u32 v{TT}, v{G}, v{G+1}, v{G+2}
        v_max_u32 v{TT}, v{TT}, v{G+3}
        {W0 if spw else ''}
        s_waitcnt vmcnt({2*depth-2})
        v_max3_u32 v{TT+1}, v{G+4}, v{G+5}, v{G+6}
        v_max_u32 v{TT+1}, v{TT+1}, v{G+7}
        {W1 if spw else ''}
        v_cmp_eq_u32 s[{mA}:{mA+1}], -1, v{TT}
        v_cmp_eq_u32 s[{mB}:{mB+1}], -1, v{TT+1}
        s_or_b64 vcc, s[{mA}:{mA+1}], s[{mB}:{mB+1}]
        s_cbranch_scc1 {Lg}_poll
        {'' if spw else W0}
        {'' if spw else W1}
        """)
    A(f"""
    v_readfirstlane_b32 s{sF0}, v{vFL}
    """)
    stamp(A, cfg, 7)
    if cfg.get('diag'):
        A("s_waitcnt lgkmcnt(0)")
        for k in range(len(cfg['diag'])):
            A(f"v_writelane_b32 v{TT+3}, s{12+2*k}, {k}")
        A(f"v_writelane_b32 v{TT+3}, s{sT+9}, 30")
        A(f"v_writelane_b32 v{TT+3}, s{sT+10}, 31")
        A(f"""
        s_lshl_b32 s{sT}, s{sStep}, 7
        s_lshl_b32 s{sT+1}, s{S_ID}, 2
        s_add_u32 s{sT+1}, s{sT+1}, s{S_W}
        s_lshl_b32 s{sT+1}, s{sT+1}, 13
        s_add_u32 s{sT}, s{sT}, s{sT+1}
        s_add_u32 s{sT}, s{sT}, {DIAG - 128:#x}
        v_lshrrev_b32 v{TT}, 2, v{vL16}
        s_mov_b32 exec_hi, 0
        buffer_store_dword v{TT+3}, v{TT}, {WS}, s{sT} offen
        s_mov_b64 exec, -1
        """)
    A(f"""
    {Lg}_compute:
    s_cmp_eq_u32 s{sStep}, 63
    s_cbranch_scc1 {Lg}_last
    """)
    A.lg = ["gw", "gw"]
    A.vm = ["poll"] * 4
    stamp(A, cfg, 0)
    mf, pub, X, slowlab = qkv_phases(False)
    pop(mf)()
    pop(mf)()
    A("\n".join(pairfold(AK)))
    A.ds(f"ds_write2_b32 v{vQW}, v{AK}, v{AK+1} offset0:64 offset1:200", "kw")
    stamp(A, cfg, 'kw')
    nv1, nv2 = cfg.get('nv1', 5), cfg.get('nv2', 5)
    assert nv1 + nv2 == 10
    for i in range(nv1):
        gap(pop(mf), pop(pub), X(f'w{i}'), (lambda: A.wv('poll')) if i == 0 else None)
    stamp(A, cfg, 'v1')
    A.wl()
    A("s_barrier")
    stamp(A, cfg, 1)
    qr = [lambda u=u: A.ds(f"ds_read_b128 {vr(AQ+4*u,4)}, v{vTQ} offset:{u*64}", ("qf", u)) for u in range(4)]
    kr = [lambda u=u: A.ds(f"ds_read_b128 {vr(KX+4*u,4)}, v{vTK} offset:{u*64}", ("kf", u)) for u in range(4)]
    pop(qr)()
    pop(qr)()
    S0, S1, SM = MF, MF + 4, MF + 8
    O0, O1, SU = MF + 12, MF + 16, MF + 20
    zero = [f"v_mov_b64 {vr(r,2)}, 0" for r in range(O0, O0 + 8, 2)]
    for i in range(nv2):
        gap(pop(mf), pop(qr), X(f'x{i}'), pop(zero) if i >= 1 else None, (lambda: A.wl(("qf", 1))) if i == nv2 - 1 else None)
    assert not qr and not mf
    stamp(A, cfg, 'v2')

    def xs(u, a):
        c = "0" if u == 0 else vr(S0 + 4 * a, 4)
        return lambda: A(f"v_mfma_f32_16x16x32_bf16 {vr(S0+4*a,4)}, {vr(KX+8*u+4*a,4)}, {vr(AQ+4*u,4)}, {c}")

    def ms(u):
        c = "0" if u == 0 else vr(SM, 4)
        return lambda: A(f"v_mfma_f32_16x16x32_bf16 {vr(SM,4)}, {vr(KX+4*u,4)}, {vr(AQ+4*u,4)}, {c}")
    vc = []
    for tau in range(2):
        x = AV + 4 * tau
        vc += fold(x) + [f"v_cvt_pk_bf16_f32 v{x+1}, v{x}, v{x+2}", f"v_cvt_pk_bf16_f32 v{x}, v{x}, v{x+2}"]
    gap(xs(0, 0), pop(kr), pop(zero))
    gap(xs(0, 1), pop(kr), f"v_xor_b32 v{vKX}, 0x2000, v{vKX}")
    gap(xs(1, 0), pop(kr), pop(vc))
    gap(xs(1, 1), pop(kr), lambda: A.wl(("qf", 3)))
    gap(xs(2, 0), pop(vc), pop(vc))
    gap(xs(2, 1), pop(vc), pop(vc))
    gap(xs(3, 0), pop(vc), pop(vc))
    gap(xs(3, 1), lambda: A.wl(("kf", 3)), pop(vc))
    assert not zero and not vc
    stamp(A, cfg, 'sx')
    wl_ = ldsf(('O', 0, 0), KX + 16, "wo0") + ldsf(('O', 0, 1), KX + 24, "wo0")
    wl2 = ldsf(('O', 2, 0), KX, "wo2") + ldsf(('O', 2, 1), KX + 8, "wo2") + ldsf(('O', 4, 0), AK, "wo4")
    m_, t_ = TT, TT + 1
    OD = f"s[{sODD}:{sODD+1}]"
    gap(ms(0), pop(wl_))
    gap(ms(1), pop(wl_), f"v_max3_f32 v{m_}, v{S0}, v{S0+1}, v{S0+2}")
    gap(ms(2), pop(wl_), f"v_max3_f32 v{t_}, v{S0+3}, v{S1}, v{S1+1}")
    gap(ms(3), pop(wl_), f"v_max3_f32 v{m_}, v{m_}, v{S1+2}, v{S1+3}")
    stamp(A, cfg, 2)
    sm = f"""
    v_max_f32 v{m_}, v{m_}, v{t_}
    v_cndmask_b32 v{S0}, v{S0}, v{S0+2}, {OD}
    v_cndmask_b32 v{S0+1}, v{S0+1}, v{S0+3}, {OD}
    v_cndmask_b32 v{S1}, v{S1}, v{S1+2}, {OD}
    v_cndmask_b32 v{S1+1}, v{S1+1}, v{S1+3}, {OD}
    W
    v_max3_f32 v{m_}, v{m_}, v{SM}, v{SM+1}
    v_max3_f32 v{m_}, v{m_}, v{SM+2}, v{SM+3}
    v_mov_b32 v{t_}, v{m_}
    v_cndmask_b32 v{SM}, v{SM}, v{SM+2}, {OD}
    v_cndmask_b32 v{SM+1}, v{SM+1}, v{SM+3}, {OD}
    v_permlane32_swap_b32 v{m_}, v{t_}
    v_max_f32 v{m_}, v{m_}, v{t_}
    v_mov_b32 v{t_}, v{m_}
    W
    V
    v_permlane16_swap_b32 v{m_}, v{t_}
    v_max_f32 v{m_}, v{m_}, v{t_}
    v_mul_f32 v{m_}, s{sC}, v{m_}
    v_fma_f32 v{S0}, v{S0}, s{sC}, -v{m_}
    v_fma_f32 v{S0+1}, v{S0+1}, s{sC}, -v{m_}
    v_fma_f32 v{S1}, v{S1}, s{sC}, -v{m_}
    v_fma_f32 v{S1+1}, v{S1+1}, s{sC}, -v{m_}
    v_fma_f32 v{SM}, v{SM}, s{sC}, -v{m_}
    v_fma_f32 v{SM+1}, v{SM+1}, s{sC}, -v{m_}
    v_exp_f32 v{SM}, v{SM}
    v_exp_f32 v{SM+1}, v{SM+1}
    w
    v_exp_f32 v{S0}, v{S0}
    v_exp_f32 v{S0+1}, v{S0+1}
    w
    v_exp_f32 v{S1}, v{S1}
    v_exp_f32 v{S1+1}, v{S1+1}
    v_cvt_pk_bf16_f32 v{S0+2}, v{SM}, v{SM+1}
    v_cvt_pk_bf16_f32 v{TT}, v{S0}, v{S0+1}
    v_cvt_pk_bf16_f32 v{TT+2}, v{S1}, v{S1+1}
    v_cndmask_b32 v{TT+1}, 0, v{S0+2}, s[{sEVL}:{sEVL+1}]
    v_cndmask_b32 v{TT+3}, 0, v{S0+2}, s[{sODL}:{sODL+1}]
    v_mov_b64 {vr(VB+4,2)}, {vr(VB+2,2)}
    v_mov_b64 {vr(VB+2,2)}, {vr(AV,2)}
    """
    nW, nP, nO = cfg.get('nW', 0), cfg.get('nP', 2), cfg.get('nO', 0)
    for ln in sm.strip().split("\n"):
        ln = ln.strip()
        if ln == "W":
            if nW > 0:
                pop(wl2)()
                nW -= 1
            else:
                A("s_nop 0")
        elif ln == "w":
            if nW > 0:
                pop(wl2)()
                nW -= 1
        elif ln == "V":
            A.wv("vx")
            if not A.lines[-1].startswith("s_waitcnt"):
                A("s_nop 0")
        else:
            A(ln)
    P = TT
    stamp(A, cfg, 3)
    WA = MF
    A(f"v_mfma_f32_16x16x32_bf16 {vr(SU,4)}, {vr(P,4)}, {vr(vONE,4)}, 0")
    A(f"v_mov_b64 {vr(VB+12,2)}, {vr(VB+10,2)}\nv_mov_b64 {vr(VB+10,2)}, {vr(AV+4,2)}")
    gap(lambda: smf(A, O0, P, Reg('v', VB)), pop(wl2) if nP > 0 else None, f"v_mov_b64 {vr(WA,2)}, 0")
    gap(lambda: smf(A, O1, P, Reg('v', VB + 8)), pop(wl2) if nP > 1 else None)
    A("\n".join(fold(SU)))
    A(f"v_rcp_f32 v{SU}, v{SU}\nv_rcp_f32 v{SU+2}, v{SU+2}")
    A("\n".join(fold(O0)))
    A(f"v_mul_f32 v{O0}, v{O0}, v{SU}\nv_mul_f32 v{O0+2}, v{O0+2}, v{SU+2}")
    A("\n".join(fold(O1)))
    A(f"v_mul_f32 v{O1}, v{O1}, v{SU}\nv_mul_f32 v{O1+2}, v{O1+2}, v{SU+2}")
    A(f"v_cvt_pk_bf16_f32 v{TT}, v{O0}, v{O1}\nv_cvt_pk_bf16_f32 v{TT+1}, v{O0+2}, v{O1+2}")
    A.ds(f"ds_write2_b32 v{vOW}, v{TT}, v{TT+1} offset0:0 offset1:80", "ow")
    stamp(A, cfg, 'ow')
    nz = cfg.get('nz', 12)
    zw = [f"v_mov_b64 {vr(r,2)}, 0" for r in range(WA + 2, WA + 32, 2)]
    for _ in range(nz):
        A(pop(zw))
    for _ in range(nO):
        if wl2:
            pop(wl2)()
    A.wl("ow")
    A("s_barrier")
    stamp(A, cfg, 4)
    OA = AQ
    for t in range(2):
        A.ds(f"ds_read_b128 {vr(OA+4*t,4)}, v{vTO} offset:{t*128}", ("of", t))
    wol = wl2 + ldsf(('O', 4, 1), AV, "wo4") + ldsf(('O', 6, 0), KX + 16, "wo6") + ldsf(('O', 6, 1), KX + 24, "wo6")
    npre = cfg.get('npre', 2)
    for _ in range(npre):
        pop(wol)()
    for f in zw:
        A(f)
    loc = {('O', 0, 0): Reg('v', KX + 16), ('O', 0, 1): Reg('v', KX + 24), ('O', 2, 0): Reg('v', KX), ('O', 2, 1): Reg('v', KX + 8),
           ('O', 4, 0): Reg('v', AK), ('O', 4, 1): Reg('v', AV), ('O', 6, 0): Reg('v', KX + 16), ('O', 6, 1): Reg('v', KX + 24)}
    seq = [(j, t) for j in range(8) for t in range(2)]
    tails = []
    for j in range(8):
        x = WA + 4 * j
        d = WA + 16 * (j // 4) + (j % 4)
        it = fold(x) + [f"v_cvt_pk_bf16_f32 v{d}, v{x}, v{x+2}"]
        b = j // 4
        px2 = cfg.get('px2', 0)
        if (px2 == 1 or (px2 == 2 and b == 1)) and j % 2 == 1:
            hh = (j % 4) // 2
            it.append(lambda b=b, hh=hh: A.vmem(f"buffer_store_dwordx2 {vr(WA+16*b+2*hh,2)}, v{vPS}, {WS}, s{sP+b} offen offset:{8*hh}{st}", "ps"))
        elif j % 4 == 3:
            it.append(lambda b=b: A.vmem(f"buffer_store_dwordx4 {vr(WA+16*b,4)}, v{vPS}, {WS}, s{sP+b} offen{st}", "ps"))
        tails.append((2 * j + 3, it))
    pend = []
    A.wl(("of", 1))
    for i, (j, t) in enumerate(seq):
        key = ('O', j, t)
        while tails and tails[0][0] <= i:
            pend += tails.pop(0)[1]
        it = []
        if wol and (len(wol) > 4 or i >= 1):
            it.append(pop(wol))
        if i == 3:
            it.append(lambda: A.wl("wo2"))
        if i == 7:
            it.append(lambda: A.wl("wo4"))
        if i == 11:
            it.append(lambda: A.wl("wo6"))
        smf(A, WA + 4 * j, OA + 4 * t, loc.get(key) or RFF[key])
        for f in it:
            emit(A, f)
        n = 2 if (i & 1) else 1
        while pend and (n > 0 or not isvalu(pend[0])):
            f = pend.pop(0)
            emit(A, f)
            n -= 1
        stamp(A, cfg, f'w{i}')
    n = 2
    for f in pend:
        emit(A, f); n += 1
    A.nop(max(0, 8 - n))
    for f in tails.pop(0)[1]:
        emit(A, f)
    assert not tails
    stamp(A, cfg, 5)
    A(f"s_cmp_lg_u32 s{S_W}, 0\ns_cbranch_scc1 {Lg}_other\ns_branch {Lg}")
    A.label(Lg + "_last")
    if cfg.get('tot'):
        A(f"""
        s_memtime s[16:17]
        s_memrealtime s[18:19]
        s_waitcnt lgkmcnt(0)
        s_sub_u32 s16, s16, s12
        s_sub_u32 s18, s18, s14
        v_mov_b32 v{TT}, s16
        v_mov_b32 v{TT+1}, s18
        s_lshl_b32 s16, s{S_ID}, 3
        s_add_u32 s16, s16, 0x11c000
        buffer_store_dwordx2 {vr(TT,2)}, v{vZ}, {WS}, s16 offen
        """)
        if cfg.get('dbgt'):
            A(f"""
            s_sub_u32 s14, s14, s100
            v_mov_b32 v{TT+3}, s14
            v_mov_b32 v{TT+2}, 36
            s_mov_b64 exec, 1
            global_atomic_umax v{TT+2}, v{TT+3}, s[{S_DBG}:{S_DBG+1}]
            global_atomic_umax v{TT+2}, v{TT+1}, s[{S_DBG}:{S_DBG+1}] offset:4
            global_atomic_umax v{TT+2}, v{TT}, s[{S_DBG}:{S_DBG+1}] offset:8
            s_mov_b64 exec, -1
            v_lshrrev_b32 v{TT+2}, 2, v{vL16}
            """)
    A.lg = ["gw", "gw"]
    A.vm = ["poll"] * 4
    mf, pub, side, _ = qkv_phases(True)
    A(f"v_lshrrev_b32 v{vL4}, 2, v{vL16}")
    weave(A, mf, pairfold(AK) + pub, per=1, lead=2)
    A.nop(8)
    A("\n".join(v_convert()))
    for f in v_publish(sKM):
        emit(A, f)
    A(f"""
    v_mov_b32 v{TT}, 64
    s_waitcnt vmcnt(0)
    s_barrier
    buffer_store_dword v{TT}, v{vZ+1}, {WS}, s{sProg} offen sc1
    s_waitcnt vmcnt(0)
    s_branch L_end
    """)
    A.label(Lg + "_other")
    house()
    pre_step(A)
    hop_addr(A)
    A(f"s_branch {Lg}_bar")
    A(f"""
    {slowlab}:
    s_add_u32 s{sT}, s{sStep}, 1
    s_and_b32 s{sT}, s{sT}, {(1 << LJ[0]) - 1}
    s_lshl_b32 s{sT}, s{sT}, 7
    s_add_u32 s{sT}, s{sT}, s{sFLc}
    {slowlab}_l:
    {GUARD}
    buffer_load_dword v{vFL}, v{vZ}, {WS}, s{sT} offen sc1
    s_waitcnt vmcnt(0)
    v_readfirstlane_b32 s{sF0}, v{vFL}
    s_cmp_le_u32 s{sF0}, s{sNeed}
    s_cbranch_scc1 {slowlab}_l
    s_branch {slowlab}_ret
    {Lg}_nan:
    {GUARD}
    s_mov_b32 s{sT+2}, {SENT_P:#x}
    s_mov_b64 s[{sT}:{sT+1}], 0
    s_waitcnt vmcnt(0)
    """)
    for i in range(32):
        A(f"v_cmp_eq_u32 vcc, s{sT+2}, v{MF+i}\ns_or_b64 s[{sT}:{sT+1}], s[{sT}:{sT+1}], vcc")
    A(f"""
    s_cmp_eq_u64 s[{sT}:{sT+1}], 0
    s_cbranch_scc1 {Lg}_acc
    """)
    rround()
    A(f"s_branch {Lg}_red\n{Lg}_acc:")
    for u in range(8):
        A(f"v_mfma_f32_16x16x32_bf16 {vr(TT,4)}, {vr(vSEL,4)}, {vr(MF+4*u,4)}, {'0' if u==0 else vr(TT,4)}")
    A(f"""
    s_nop 7
    v_cvt_pk_bf16_f32 v{TT}, v{TT}, v{TT+1}
    v_cvt_pk_bf16_f32 v{TT+1}, v{TT+2}, v{TT+3}
    v_min_u32 v{TT}, -2, v{TT}
    v_min_u32 v{TT+1}, -2, v{TT+1}
    s_branch {Lg}_ok
    """)


def chain(A, cfg):
    LJ[0] = cfg.get('lj', 2)
    chain_startup(A, cfg)
    A(f"s_mov_b32 s{sT+8}, s{sKM}\ns_mov_b32 s{sT+11}, 0\ns_mov_b32 s{sT+5}, {MRING:#x}")
    A(f"s_cmp_lt_u32 s{sT+7}, 32\ns_cbranch_scc1 Lchain_slow")
    if cfg.get('tot'):
        A("s_memtime s[12:13]\ns_memrealtime s[14:15]\ns_waitcnt lgkmcnt(0)")
    if cfg.get('forceslow'):
        A("s_branch Lchain_slow")
    chain_loop(A, cfg, 'fast')
    chain_loop(A, cfg, 'slow')
```

```python
import sys, json
from common import *
import chain as chain_mod
import common

HEADER = open('parallel_sum__memory_aug_recurrent_mem_tr__mixer_token_mlp__prompt.s.ref').read().split("; Override launch")[0]


def prologue(A, cfg):
    A(f"""
    s_cmp_ge_u32 s2, 256
    s_cbranch_scc1 L_end
    """)
    if cfg.get('wdiag') or cfg.get('dbgt') or cfg.get('dbgs') or cfg.get('lite'):
        A("s_memrealtime s[94:95]")
    build_srds(A)
    if cfg.get('wdiag') or cfg.get('dbgt') or cfg.get('dbgs') or cfg.get('lite'):
        A("s_mov_b32 s100, s94")
    DBG = f"s[{S_DBG}:{S_DBG+1}]"
    A(f"""
    s_mov_b32 s{S_SPIN}, 0
    s_getreg_b32 s{S_XCC}, hwreg(HW_REG_XCC_ID, 0, 4)
    {'s_xor_b32 s58, s58, ' + str(cfg['xccx']) if cfg.get('xccx') else ''}
    v_lshrrev_b32 v1, 6, v0
    v_and_b32 v2, 63, v0
    s_nop 0
    v_readfirstlane_b32 s{S_W}, v1
    s_add_u32 s{S_XCC}, s{S_XCC}, 1
    v_mov_b32 v16, 0
    s_cmp_lg_u32 s{S_W}, 0
    s_cbranch_scc1 L_role_wait
    s_cmp_ge_u32 s2, 8
    s_cbranch_scc1 L_role_wait
    """)
    if not cfg.get('chain_only'):
        A(f"""
        v_lshlrev_b32 v8, 4, v2
        v_mov_b32 v17, 0
        v_mov_b32 v18, 0
        v_mov_b32 v19, 0
        s_lshl_b32 s61, s2, 13
        s_add_u32 s62, s61, 0x1000
        """)
        for i in range(8):
            A(f"buffer_store_dwordx4 v[16:19], v8, {WSR}, s{61 + i//4} offen offset:{(i&3)*1024} sc1")
    A(f"""
    s_lshl_b32 s61, s2, 2
    v_mov_b32 v3, s61
    v_mov_b32 v4, 1
    s_waitcnt vmcnt(0)
    s_mov_b64 exec, 1
    global_store_dword v3, v4, {DBG} sc1
    s_mov_b64 exec, -1
    L_role_wait:
    s_lshr_b32 s60, s2, 3
    s_sub_u32 s61, s{S_XCC}, 1
    s_and_b32 s61, s61, 7
    s_lshl_b32 s61, s61, 5
    s_add_u32 s{S_ID}, s60, s61
    s_mov_b32 s{S_T}, 0
    L_dispatch:
    s_cmp_ge_u32 s{S_ID}, 32
    s_cbranch_scc1 L_worker
    """)


def zero_load(A, v):
    A(f"""
    v_mbcnt_lo_u32_b32 v{v+1}, -1, 0
    v_and_b32 v{v+1}, 7, v{v+1}
    v_lshlrev_b32 v{v+1}, 2, v{v+1}
    global_load_dword v{v}, v{v+1}, s[{S_DBG}:{S_DBG+1}] sc1
    """)


def announce(A, v):
    u = A.uid("Lann")
    A(f"""
    s_cmp_lg_u32 s{S_W}, 0
    s_cbranch_scc1 {u}
    s_lshr_b32 s3, s2, 3
    s_lshl_b32 s3, s3, 7
    s_and_b32 vcc_lo, s2, 7
    s_add_u32 s3, s3, vcc_lo
    s_add_u32 s3, s3, {F_TAB:#x}
    v_mov_b32 v{v}, s3
    v_mov_b32 v{v+1}, s{S_XCC}
    s_mov_b64 exec, 1
    buffer_store_byte v{v+1}, v{v}, {WSR}, 0 offen sc1
    s_mov_b64 exec, -1
    {u}:
    """)


def wait_zero(A, v):
    u = A.uid("Lwz")
    A(f"{u}:\n{GUARD}")
    zero_load(A, v)
    A(f"s_waitcnt vmcnt(0)\nv_cmp_ne_u32 vcc, 1, v{v}\ns_cbranch_vccnz {u}")
    announce(A, v)


def table_load(A, dst, t):
    A(f"""
    v_mbcnt_lo_u32_b32 v{t}, -1, 0
    v_lshlrev_b32 v{t}, 7, v{t}
    v_and_b32 v{t}, 0xf80, v{t}
    v_add_u32 v{t}, {F_TAB:#x}, v{t}
    buffer_load_dwordx2 {dst}, v{t}, {WSR}, 0 offen sc1
    """)


def validate(A, v, preloaded=False):
    u = A.uid("Lval")
    if preloaded:
        A(f"s_branch {u}_chk")
    A(f"{u}:\n{GUARD}")
    table_load(A, vr(v, 2), v + 2)
    A(f"s_waitcnt vmcnt(0)\n{u}_chk:")
    for b in range(8):
        A(f"v_bfe_u32 v{v+2+b}, v{v + b//4}, {8*(b&3)}, 5")
    A(f"""
    v_min3_u32 v{v+10}, v{v+2}, v{v+3}, v{v+4}
    v_min3_u32 v{v+10}, v{v+10}, v{v+5}, v{v+6}
    v_min3_u32 v{v+10}, v{v+10}, v{v+7}, v{v+8}
    v_min_u32 v{v+10}, v{v+10}, v{v+9}
    v_cmp_eq_u32 vcc, 0, v{v+10}
    s_cbranch_vccnz {u}
    s_mov_b32 s3, s{S_T}
    s_cmp_lg_u32 s{S_T}, 0
    s_cbranch_scc1 {u}_ok
    v_lshlrev_b32 v{v+10}, v{v+2}, 1
    """)
    for b in range(1, 8):
        A(f"v_lshlrev_b32 v{v+11}, v{v+2+b}, 1\nv_or_b32 v{v+10}, v{v+10}, v{v+11}")
    A(f"""
    v_cmp_ne_u32 vcc, 0x1fe, v{v+10}
    s_mov_b32 s3, 32
    s_cbranch_vccz {u}_ok
    s_lshr_b32 s60, s2, 3
    s_lshl_b32 s62, 1, s60
    s_sub_u32 s64, s62, 1
    s_or_b32 s66, s62, s64
    s_and_b32 s61, s2, 7
    s_mov_b32 s68, 0
    s_mov_b32 s69, 0
    s_mov_b32 s70, 0
    """)
    for b in range(8):
        A(f"""
        v_cmp_eq_u32 vcc, s{S_XCC}, v{v+2+b}
        s_cmp_gt_u32 s61, {b}
        s_cselect_b32 s74, s66, s64
        s_and_b32 s74, s74, vcc_lo
        s_bcnt1_i32_b32 s71, s74
        s_add_u32 s68, s68, s71
        v_cmp_eq_u32 vcc, 1, v{v+2+b}
        s_bcnt1_i32_b32 s71, vcc_lo
        s_add_u32 s69, s69, s71
        v_cmp_gt_u32 vcc, s{S_XCC}, v{v+2+b}
        s_bcnt1_i32_b32 s71, vcc_lo
        s_add_u32 s70, s70, s71
        """)
    A(f"""
    s_min_u32 s71, s69, 32                 ; c0
    s_sub_u32 s70, s70, s69
    s_add_u32 s70, s70, s71
    s_add_u32 s70, s70, s68
    s_sub_u32 s71, 256, s69
    s_add_u32 s71, s71, s68
    s_cmp_lt_u32 s68, 32
    s_cselect_b32 s71, s68, s71
    s_cmp_eq_u32 s{S_XCC}, 1
    s_cselect_b32 s{S_ID}, s71, s70
    s_or_b32 s{S_T}, s69, 0x1000
    v_mbcnt_lo_u32_b32 v0, -1, 0
    v_mbcnt_hi_u32_b32 v0, -1, v0
    v_mov_b32 v{v}, s2
    v_mov_b32 v{v+1}, 1
    s_waitcnt vmcnt(0) lgkmcnt(0)
    s_barrier
    buffer_store_byte v{v+1}, v{v}, {WSR}, 0 offen sc1
    s_branch L_dispatch
    {u}_ok:
    s_and_b32 s3, s3, 0xfff
    """)
    assert F_RS == 0


def generate(cfg):
    A = Asm()
    for f in (validate, wait_zero, zero_load, announce, table_load):
        setattr(common, f.__name__, f)
    prologue(A, cfg)
    if cfg.get('nochain'):
        wait_zero(A, 20)
        A("s_waitcnt vmcnt(0)\ns_branch L_end")
    import importlib
    importlib.import_module(cfg.get('chainmod', 'chain')).chain(A, cfg)
    A.label("L_worker")
    if cfg.get('chain_only'):
        wait_zero(A, 20)
        A("s_waitcnt vmcnt(0)")
    if not cfg.get('chain_only'):
        import worker as worker_mod
        A(f"s_sub_u32 s{S_ID}, s{S_ID}, 32")
        worker_mod.worker(A, cfg)
    if cfg.get('dbgt'):
        A(f"""
        s_memrealtime s[96:97]
        s_waitcnt lgkmcnt(0)
        s_sub_u32 s96, s96, s100
        v_mov_b32 v0, 32
        v_mov_b32 v1, s96
        s_mov_b64 exec, 1
        global_atomic_umax v0, v1, s[{S_DBG}:{S_DBG+1}]
        s_waitcnt vmcnt(0)
        """)
    A.label("L_end")
    body = A.text()
    return f"""{HEADER}; @launch grid=(256,1,1) block=(256,1,1) lds=163840
.amdgcn_target "amdgcn-amd-amdhsa--gfx950"
.text
.globl {KNAME}
.p2align 8
.type {KNAME},@function
{KNAME}:
{body}    s_endpgm
.section .rodata,"a"
.p2align 6
.amdhsa_kernel {KNAME}
  .amdhsa_next_free_vgpr 512
  .amdhsa_next_free_sgpr 102
  .amdhsa_accum_offset 256
  .amdhsa_group_segment_fixed_size 0
  .amdhsa_kernarg_size 120
  .amdhsa_user_sgpr_count 2
  .amdhsa_user_sgpr_kernarg_segment_ptr 1
  .amdhsa_system_sgpr_workgroup_id_x 1
.end_amdhsa_kernel
"""


if __name__ == "__main__":
    cfg = json.loads(sys.argv[2]) if len(sys.argv) > 2 else {}
    open(sys.argv[1], "w").write(generate(cfg))
```

```python
from common import *

L_KX = 0x0000
L_MEM = 0x4000
L_Q = 0x6000
L_O = 0x7200
L_W = 0x8000

vL16, vIDX, vQW, vTQ, vTK, vTO, vKX, vWL, vPS, vOW, vRS, vFL = range(12)
vONE = 12
vSEL = 16
MF = 20
AQ, AK, AV = 52, 60, 68
KX = 76
VB = 108
TT = 124
vZ = VB + 6

sODL = 10
sStep = 60
sP = 61
sPF = 63
sVXb = 64
sPR = 65
sRL, sFLc, sMO, sMRs, sG, sKXo, sVXo, sKM, sFLo, sM0K = 69, 70, 71, 72, 73, 74, 75, 76, 77, 78
sProg = 79
sODD = 80
sEVL = 82
sC = 84
sF0 = 85
sW11 = 86
sNeed = 87
sPb = 68
sT = 88
SENT_P = 0x7F817F81
LJ = [2]

LDSF = {('Q', 1, 0): 0, ('Q', 1, 2): 1, ('Q', 1, 4): 2, ('Q', 1, 6): 3,
        ('K', 1, 0): 4, ('K', 1, 2): 5, ('K', 1, 4): 6, ('K', 1, 6): 7,
        ('O', 0, 0): 8, ('O', 0, 1): 9, ('O', 2, 0): 10, ('O', 2, 1): 11,
        ('O', 4, 0): 12, ('O', 4, 1): 13, ('O', 6, 0): 14, ('O', 6, 1): 15}
RFF = {}
_slots = [Reg('a', 8 * i) for i in range(32)] + [Reg('v', 128 + 8 * i) for i in range(16)]
for m in 'QKV':
    for tau in range(2):
        for t in range(8):
            if (m, tau, t) not in LDSF:
                RFF[(m, tau, t)] = _slots.pop(0)
for j in range(8):
    for t in range(2):
        if ('O', j, t) not in LDSF:
            RFF[('O', j, t)] = _slots.pop(0)
assert not _slots
WS = f"s[{S_WS}:{S_WS+3}]"
import common


def smf(A, acc, a, b):
    A(f"v_smfmac_f32_16x16x64_bf16 {vr(acc,4)}, {vr(a,4)}, {b.r(0,8)}, v{vIDX}")


def lds_frag_load(A, key, dst, tag):
    f = LDSF[key]
    A.ds(f"ds_read_b128 {vr(dst,4)}, v{vWL} offset:{f*2048}", tag)
    A.ds(f"ds_read_b128 {vr(dst+4,4)}, v{vWL} offset:{f*2048+1024}", tag)


def cstamp(A, cfg, k):
    if cfg.get('cdiag'):
        A(f"s_memrealtime s[96:97]\ns_waitcnt lgkmcnt(0)\n" + (f"s_mov_b32 s{71+k}, s96" if k <= 6 else f"v_writelane_b32 v{TT}, s96, {k}") + ("".join(f"\nv_writelane_b32 v{TT}, s{71+j}, {j}" for j in range(1, 7)) if k == 6 else ""))


def perwave(A, fn):
    end = A.uid("Lwe")
    for w in range(4):
        nx = A.uid("Lwn")
        if w < 3:
            A(f"s_cmp_lg_u32 s{S_W}, {w}\ns_cbranch_scc1 {nx}")
        fn(w)
        if w < 3:
            A(f"s_branch {end}\n{nx}:")
    A.label(end)


def chain_startup(A, cfg):
    A.c("===== chain startup =====")
    A(f"""
    v_and_b32 v1, 63, v0              ; lane
    v_and_b32 v2, 15, v1              ; n
    v_lshrrev_b32 v3, 4, v1           ; g
    v_lshrrev_b32 v4, 1, v3           ; g>>1
    v_and_b32 v5, 1, v3               ; g&1
    v_lshrrev_b32 v6, 2, v2           ; r = n>>2
    v_and_b32 v7, 3, v2               ; c = n&3
    v_lshrrev_b32 v9, 3, v2
    v_lshl_add_u32 v9, v9, 1, v4       ; jl
    v_and_b32 v10, 7, v2
    v_lshl_add_u32 v8, v5, 3, v10
    v_lshlrev_b32 v8, 4, v8
    v_lshl_add_u32 v8, v9, 13, v8
    s_lshl_b32 s{sT}, s{S_W}, 3
    s_xor_b32 s{sT}, s{sT}, s{S_ID}
    s_xor_b32 s{sT}, s{sT}, 31
    v_xor_b32 v9, s{sT}, v9
    v_lshl_add_u32 v8, v9, 8, v8
    ; vRS = (h>>1)*512 + (h&1)*128 + ((n>>2)&1)*256 + (2(n>>3) + (g&1))*32 + (n&3)*8
    s_lshr_b32 s{sT}, s{S_ID}, 1
    s_lshl_b32 s{sT}, s{sT}, 9
    s_and_b32 s{sT+1}, s{S_ID}, 1
    s_lshl_b32 s{sT+1}, s{sT+1}, 7
    s_add_u32 s{sT}, s{sT}, s{sT+1}
    v_lshrrev_b32 v9, 3, v2
    v_lshl_add_u32 v10, v9, 1, v5
    v_lshlrev_b32 v10, 5, v10
    v_lshl_add_u32 v10, v7, 3, v10
    v_and_b32 v9, 1, v6
    v_lshl_add_u32 v10, v9, 8, v10
    v_add_u32 v10, s{sT}, v10
    """)
    A(f"""
    v_lshlrev_b32 v9, 1, v3
    v_xor_b32 v9, v2, v9
    v_lshlrev_b32 v9, 4, v9
    s_lshl_b32 s{sT}, s{S_W}, 2
    v_add_u32 v13, s{sT}, v3          ; 4w+g
    v_lshl_add_u32 v11, v13, 13, v9   ; vDmaA
    v_lshl_add_u32 v12, v13, 10, v9   ; vDmaB
    v_and_b32 v9, 1, v6               ; r&1
    v_lshrrev_b32 v13, 1, v6          ; r>>1
    v_lshl_add_u32 v14, v13, 1, v5    ; 2(r>>1)+(g&1)
    v_lshl_add_u32 v15, v9, 2, v14    ; phi
    v_lshl_add_u32 v14, v4, 2, v14
    v_lshl_add_u32 v14, v9, 4, v14    ; row
    v_lshlrev_b32 v14, 8, v14
    v_lshl_add_u32 v14, v15, 5, v14
    s_lshl_b32 s{sT}, s{S_W}, 6
    v_xor_b32 v14, s{sT}, v14
    v_lshrrev_b32 v15, 1, v7
    v_lshlrev_b32 v15, 5, v15
    v_xor_b32 v1, v15, v14
    v_and_b32 v15, 1, v7
    v_lshl_add_u32 v2, v15, 3, v1
    v_lshl_add_u32 v14, v7, 3, v14
    v_lshlrev_b32 v15, 1, v5
    v_lshl_add_u32 v1, v13, 2, v15
    v_lshl_add_u32 v1, v4, 3, v1
    v_lshl_add_u32 v1, v9, 4, v1      ; row
    v_lshl_add_u32 v15, v9, 2, v15    ; phi
    v_lshlrev_b32 v1, 8, v1
    v_lshl_add_u32 v1, v7, 3, v1
    v_lshl_add_u32 v13, v15, 5, v1
    v_xor_b32 v5, 128, v11
    v_xor_b32 v6, 128, v12
    """)
    chunks = [('O', t, c) for t in range(2) for c in range(4)]
    chunks += [(m, t, None) for m in 'QK' for t in (2, 4, 6)]
    chunks += [('V', t, None) for t in range(8)]
    chunks += [(m, t, None) for m in 'QK' for t in (1, 3, 5, 7)]
    chunks += [('Q', 0, None), ('K', 0, None)]
    slot = lambda ci: 2 + (ci % 8) if ci < 30 else (ci - 30)
    A(f"""
    s_lshl_b32 s{sT+2}, s{S_ID}, 8        ; h*256
    s_lshl_b32 s{sT+3}, s{S_ID}, 17       ; h*128*1024
    s_lshl_b32 s{sT+4}, s{S_W}, 10        ; w*4*256
    """)

    def issue(ci):
        m, t, c = chunks[ci]
        srd = {'Q': S_WQ, 'K': S_WK, 'V': S_WV, 'O': S_WO}[m]
        for i in range(4):
            A(f"s_add_u32 m0, s{sT+4}, {slot(ci)*16384 + i*4096:#x}")
            if m == 'O':
                A(f"s_add_u32 s{sT+1}, s{sT+3}, {(64*t+16*i)*1024 + c*256:#x}")
                va = 6 if i & 1 else 12
            else:
                A(f"s_add_u32 s{sT+1}, s{sT+2}, {(64*t+16*i)*8192:#x}")
                va = 5 if i & 1 else 11
            A.vmem(f"buffer_load_dwordx4 v{va}, s[{srd}:{srd+3}], s{sT+1} offen{' nt' if cfg.get('wnt') else ''} lds", ("ch", ci))

    held = {}
    hfree = [16 + 8 * i for i in range(14)]
    PD = cfg.get('pd', 0)

    def rowpf(ci, now):
        if not PD or ci >= 32 or chunks[ci][0] == 'O':
            return
        m, t, c = chunks[ci]
        srd = {'Q': S_WQ, 'K': S_WK, 'V': S_WV}[m]
        A(f"""
        v_and_b32 v9, 63, v0
        v_lshlrev_b32 v9, 6, v9
        s_lshl_b32 s{sT}, s{S_ID}, 14
        s_lshl_b32 s{sT+1}, s{S_W}, 12
        s_add_u32 s{sT}, s{sT}, s{sT+1}
        s_add_u32 s{sT}, s{sT}, {t << 19:#x}
        """)
        A.vmem(f"buffer_load_dword v{7 if now < 12 else 4}, v9, s[{srd}:{srd+3}], s{sT} offen", "rpf")
    WD = cfg.get('wd', 8)
    for ci in list(range(WD)) + ([30, 31] if WD == 8 else []):
        issue(ci)
    cstamp(A, cfg, 1)
    PK = lambda w: RFF[('K', 0, 2 * w)]
    PQ = lambda w: RFF[('Q', 0, 2 * w)]
    A(f"""
    v_and_b32 v9, 63, v0
    v_bfe_u32 v15, v9, 1, 3
    v_lshlrev_b32 v15, 10, v15
    v_lshrrev_b32 v1, 4, v9
    v_lshl_add_u32 v15, v1, 3, v15
    v_and_b32 v1, 1, v9
    v_lshl_add_u32 v15, v1, 2, v15
    s_lshl_b32 s{sT}, s{S_W}, 8
    """)
    perwave(A, lambda w: A("\n".join(f"buffer_load_dword {PK(w).r(4*u+tl)}, v15, s[{S_MEM0}:{S_MEM0+3}], s{sT} offen offset:{u*128+tl*32}"
                                     for u in range(2) for tl in range(4))))
    A.vm += ["m0"] * 8
    A(f"s_mov_b32 s{sT+5}, 0")
    for ci in range(32):
        m, t, c = chunks[ci]
        if ci == 3:
            common.zero_load(A, 3)
            A.vm.append("zl")
        if ci == 11:
            A.wv("zl")
            lab = A.uid("Lz")
            A(f"v_cmp_ne_u32 vcc, 1, v3\ns_cbranch_vccnz {lab}\ns_mov_b32 s{sT+5}, 1")
            common.announce(A, 3)
            A.label(lab)
        if ci == 20:
            A(f"""
            s_lshl_b32 s{sFLc}, s{S_ID}, 9
            s_add_u32 s{sFLc}, s{sFLc}, {F_P2:#x}
            v_and_b32 v1, 1, v0
            v_lshlrev_b32 v1, 7, v1
            """)
            A.vmem(f"buffer_load_dword v1, v1, {WS}, s{sFLc} offen sc1", "f0")
        if ci == 28:
            A.wv("f0")
            lab = A.uid("Lpf")
            A(f"""
            v_cmp_eq_u32 vcc, 0, v1
            s_cbranch_vccnz {lab}
            s_cmp_eq_u32 s{sT+5}, 0
            s_cbranch_scc1 {lab}
            s_mov_b32 s{sT+5}, 2
            v_and_b32 v1, 63, v0
            v_lshlrev_b32 v1, 7, v1
            s_lshl_b32 s{sT}, s{S_ID}, 13
            s_lshl_b32 s{sT+1}, s{S_W}, 18
            s_add_u32 s{sT+1}, s{sT+1}, s{sT}
            s_add_u32 s{sT+1}, s{sT+1}, {PRING:#x}
            buffer_load_dword v3, v1, {WS}, s{sT+1} offen
            s_lshl_b32 s{sT+1}, s{S_W}, 13
            s_add_u32 s{sT+1}, s{sT+1}, {MRING:#x}
            buffer_load_dword v3, v1, {WS}, s{sT+1} offen sc1
            s_and_b32 s{sT+1}, s{S_W}, 1
            s_lshl_b32 s{sT+1}, s{sT+1}, 18
            s_add_u32 s{sT}, s{sT}, s{sT+1}
            s_lshr_b32 s{sT+1}, s{S_W}, 1
            s_lshl_b32 s{sT+1}, s{sT+1}, 24
            s_add_u32 s{sT}, s{sT}, s{sT+1}
            s_add_u32 s{sT}, s{sT}, {WS_KX:#x}
            buffer_load_dword v3, v1, {WS}, s{sT} offen
            {lab}:
            """)
        if ci == 24:
            perwave(A, lambda w: common.table_load(A, PQ(w).r(0, 2), 9))
            A.vm.append("tl")
        if ci in (1, 10, 20, 30):
            cstamp(A, cfg, {1: 2, 10: 3, 20: 4, 30: 5}[ci])
        if ci == 22:
            A(f"""
            v_and_b32 v9, 63, v0
            v_lshlrev_b32 v9, 4, v9
            s_lshl_b32 s{sT+1}, s{S_W}, 15
            s_add_u32 s{sT+1}, s{sT+1}, {L_W:#x}
            v_add_u32 v7, s{sT+1}, v9          ; vWL
            """)
        if ci in (24, 26, 28, 30):
            lab = A.uid("Lhw")
            A(f"s_cmp_lg_u32 s{S_W}, { {24: 3, 26: 0, 28: 1, 30: 2}[ci] }\ns_cbranch_scc1 {lab}")
            wv_ = {24: 3, 26: 0, 28: 1, 30: 2}[ci]
            for key, r in held.items():
                f = LDSF[key] if key[0] == 'O' else LDSF[(key[0], 1, key[2] ^ (2 * wv_))]
                A(f"ds_write_b128 v7, {vr(r,4)} offset:{f*2048}")
                A(f"ds_write_b128 v7, {vr(r+4,4)} offset:{f*2048+1024}")
            A(f"s_waitcnt lgkmcnt(0)\n{lab}:")
        if ci == 30:
            A.wv("tl")
            perwave(A, lambda w: A("\n".join([f"v_accvgpr_read_b32 v{40+i}, {PK(w).r(i)}" for i in range(8)] +
                                              [f"v_accvgpr_read_b32 v{48+i}, {PQ(w).r(i)}" for i in range(2)])))
        A.wv(("ch", ci))
        A("s_barrier")
        sb = slot(ci) * 16384
        hi = sb & ~0x7fff
        lo = sb - hi
        if m == 'O':
            lab = A.uid("Lskipo")
            A(f"s_cmp_lg_u32 s{S_W}, {c}")
            A(f"s_cbranch_scc1 {lab}")
            for j in range(8):
                key = ('O', j, t)
                if key in LDSF:
                    if key not in held:
                        held[key] = hfree.pop(0)
                    dst = Reg('v', held[key])
                else:
                    dst = RFF[key]
                A(f"v_xor_b32 v9, {j*32}, v13")
                A(f"v_add_u32 v9, {hi:#x}, v9")
                A(f"v_xor_b32 v15, 32, v9")
                for k, (ad, off) in enumerate([(9, 0), (15, 256), (9, 8192), (15, 8192 + 256)]):
                    A.ds(f"ds_read_b64_tr_b16 {dst.r(2*k,2)}, v{ad} offset:{lo+off}", "tr")
                A.wl()
            A.label(lab)
        else:
            lds1 = m != 'V' and t % 2 == 0
            if lds1 and ci < 30:
                held[(m, 1, t)] = hfree.pop(0)
            for tau in range(2):
                ad = 9 if tau == 0 else 15
                if m == 'V':
                    A(f"v_xor_b32 v{ad}, {tau*32}, v14")
                    A(f"v_add_u32 v{ad}, {hi:#x}, v{ad}")
                else:
                    A(f"v_add_u32 v{ad}, {hi + tau*16:#x}, v2")
            end = A.uid("Lwe")
            for wv_ in range(4):
                nx = A.uid("Lwn")
                if wv_ < 3:
                    A(f"s_cmp_lg_u32 s{S_W}, {wv_}\ns_cbranch_scc1 {nx}")
                for tau in range(2):
                    if tau == 1 and lds1:
                        dst = Reg('v', held[(m, 1, t)] if ci < 30 else 16)
                    else:
                        dst = RFF[(m, tau, t ^ (2 * wv_))]
                    for k, off in enumerate([0, 8192, 2048, 8192 + 2048]):
                        A(f"ds_read_b64_tr_b16 {dst.r(2*k,2)}, v{9 if tau == 0 else 15} offset:{lo+off}")
                A("s_waitcnt lgkmcnt(0)")
                if lds1 and ci >= 30:
                    f = LDSF[(m, 1, t ^ (2 * wv_))]
                    A(f"ds_write_b128 v7, {vr(16,4)} offset:{f*2048}\nds_write_b128 v7, {vr(20,4)} offset:{f*2048+1024}\ns_waitcnt lgkmcnt(0)")
                if wv_ < 3:
                    A(f"s_branch {end}\n{nx}:")
            A.label(end)
        A("s_barrier")
        rowpf(ci + PD, ci)
        nxt = ci + WD
        if nxt < (30 if WD == 8 else 32):
            issue(nxt)
    assert not hfree
    cstamp(A, cfg, 6)
    A.c("chain address registers")
    A(f"""
    v_and_b32 v20, 63, v0             ; lane
    v_and_b32 v21, 15, v20            ; n
    v_lshrrev_b32 v22, 4, v20         ; g
    v_lshrrev_b32 v23, 1, v22         ; g>>1
    v_and_b32 v24, 1, v22             ; g&1
    v_lshrrev_b32 v25, 2, v21         ; r
    v_and_b32 v26, 3, v21             ; c
    v_lshlrev_b32 v{vL16}, 4, v20
    v_mov_b32 v{vIDX}, 0x4444
    v_mov_b32 v27, 0xeeee
    s_mov_b32 s{sODD}, 0xaaaaaaaa
    s_mov_b32 s{sODD+1}, 0xaaaaaaaa
    s_mov_b32 s{sEVL}, 0x55555555
    s_mov_b32 s{sEVL+1}, 0
    s_mov_b32 s{sODL}, 0xaaaaaaaa
    s_mov_b32 s{sODL+1}, 0
    s_mov_b32 s{sC}, {f32bits(SM_C):#x}
    s_mov_b32 s{sT+11}, {L_Q:#x}
    s_mov_b32 s{sT+10}, {L_O:#x}
    v_cndmask_b32 v{vIDX}, v{vIDX}, v27, s[{sODD}:{sODD+1}]
    s_lshl_b32 s{sT}, s{S_W}, 6
    v_lshlrev_b32 v27, 2, v21
    v_add_u32 v27, s{sT}, v27
    v_mul_u32_u24 v28, 1088, v22
    v_add3_u32 v{vQW}, v27, v28, s{sT+11}
    v_mul_u32_u24 v28, 640, v22
    v_add3_u32 v{vOW}, v27, v28, s{sT+10}
    v_lshrrev_b32 v27, 1, v21
    v_mul_u32_u24 v28, 544, v27
    v_lshl_add_u32 v28, v22, 4, v28
    v_add_u32 v{vTQ}, {L_Q:#x}, v28
    v_mul_u32_u24 v28, 320, v27
    v_lshl_add_u32 v28, v22, 5, v28
    v_and_b32 v29, 1, v21
    v_lshl_add_u32 v28, v29, 4, v28
    v_add_u32 v{vTO}, {L_O:#x}, v28
    v_and_b32 v27, 7, v21
    v_mul_u32_u24 v28, 544, v27
    v_lshl_add_u32 v28, v22, 4, v28
    v_add_u32 v{vTK}, {L_Q + 256:#x}, v28
    v_lshlrev_b32 v27, 9, v22
    v_lshl_add_u32 v{vKX}, v21, 4, v27
    v_and_b32 v29, 1, v25
    v_mov_b32 v30, 0x3f80
    v_mov_b32 v31, 0x3f800000
    v_cmp_eq_u32 vcc, 1, v29
    s_nop 1
    v_cndmask_b32 v30, v30, v31, vcc
    """)
    for d in range(4):
        A(f"v_cmp_eq_u32 vcc, {d}, v26\ns_nop 1\nv_cndmask_b32 v{vSEL+d}, 0, v30, vcc")
    for z in (VB + 6, VB + 7, VB + 14, VB + 15):
        A(f"v_mov_b32 v{z}, 0")
    if cfg.get('rsmask', 1):
        A(f"v_bfrev_b32 v30, 1\nv_cmp_lt_u32 vcc, 31, v20\ns_nop 1\nv_cndmask_b32 v{vRS}, v{vRS}, v30, vcc")
    A(f"v_bfrev_b32 v30, 1\nv_cmp_ne_u32 vcc, 0, v20\ns_nop 1\nv_cndmask_b32 v{vZ}, v{vZ}, v30, vcc")
    for z in range(4):
        A(f"v_mov_b32 v{vONE+z}, 0x3f803f80")
    lab = A.uid("Lci")
    A(f"s_cmp_lg_u32 s{sT+5}, 0\ns_cbranch_scc1 {lab}_z")
    common.wait_zero(A, 48)
    A(f"v_mov_b32 v48, 0\n{lab}_z:")
    common.validate(A, 48, preloaded=True)
    cstamp(A, cfg, 7)
    A(f"""
    s_mov_b32 s{sT+7}, s3
    v_mov_b32 v32, 0
    s_cmp_eq_u32 s{S_T}, 0
    s_cbranch_scc1 {lab}_r
    v_lshrrev_b32 v33, 2, v{vL16}
    s_mov_b32 s{sT+5}, 0
    {lab}_p2:
    {GUARD}
    buffer_load_dword v34, v33, {WS}, 0 offen sc1
    s_waitcnt vmcnt(0)
    v_cmp_ne_u32 vcc, 0x01010101, v34
    s_cbranch_vccnz {lab}_p2
    v_and_b32 v33, 28, v33
    {lab}_p3:
    {GUARD}
    buffer_load_dword v34, v33, {WS}, 0 offen offset:{F_LN+32} sc1
    s_waitcnt vmcnt(0)
    v_cmp_ne_u32 vcc, 0x01010101, v34
    s_cbranch_vccnz {lab}_p3
    {lab}_r:
    """)
    cstamp(A, cfg, 8)
    lab = A.uid("Lf0")
    A(f"""
    s_mov_b32 s{sF0}, 1
    s_cmp_eq_u32 s{sT+5}, 2
    s_cbranch_scc1 {lab}_ok
    {lab}:
    {GUARD}
    buffer_load_dword v{vFL}, v32, {WS}, s{sFLc} offen sc1
    buffer_load_dword v34, v32, {WS}, s{sFLc} offen offset:128 sc1
    s_waitcnt vmcnt(0)
    v_min_u32 v{vFL}, v{vFL}, v34
    s_nop 0
    v_readfirstlane_b32 s{sF0}, v{vFL}
    s_cmp_eq_u32 s{sF0}, 0
    s_cbranch_scc1 {lab}
    {lab}_ok:
    s_lshl_b32 s{sT}, s{S_ID}, 13
    s_lshl_b32 s{sT+1}, s{S_W}, 11
    s_add_u32 s{sVXb}, s{sT}, s{sT+1}
    s_add_u32 s{sVXb}, s{sVXb}, {WS_VX:#x}
    s_mov_b32 s{sVXo}, s{sVXb}
    s_add_u32 s{sKXo}, s{sT}, s{sT+1}
    s_add_u32 s{sKXo}, s{sKXo}, {WS_KX:#x}
    s_mov_b32 s{sM0K}, s{sT+1}
    s_lshl_b32 s{sT+2}, s{S_W}, 9
    s_add_u32 s{sKM}, s{sT}, s{sT+2}
    s_add_u32 s{sKM}, s{sKM}, {WS_KVM - 0x40000:#x}
    s_add_u32 s{sPF}, s{sT}, s{sT+1}
    s_add_u32 s{sPF}, s{sPF}, {WS_VX:#x}
    s_mov_b32 m0, s{sM0K}
    s_nop 0
    buffer_load_dwordx4 v{vL16}, {WS}, s{sKXo} offen lds
    buffer_load_dwordx4 v{vL16}, {WS}, s{sKXo} offen offset:1024 lds
    """)
    A(f"""
    s_mov_b32 s{sT}, 0x05040100
    s_mov_b32 s{sT+1}, 0x07060302
    """)
    for u in range(2):
        b = 40 + 4 * u
        A(f"""
        v_perm_b32 v{MF+4*u}, v{b+1}, v{b}, s{sT}
        v_perm_b32 v{MF+4*u+1}, v{b+3}, v{b+2}, s{sT}
        v_perm_b32 v{MF+4*u+2}, v{b+1}, v{b}, s{sT+1}
        v_perm_b32 v{MF+4*u+3}, v{b+3}, v{b+2}, s{sT+1}
        """)
    A(f"""
    s_mov_b32 s{sStep}, 0
    s_lshl_b32 s{sProg}, s{S_ID}, 7
    s_add_u32 s{sProg}, s{sProg}, {F_PROG:#x}
    v_bfrev_b32 v{TT}, 1
    s_cmp_eq_u32 s{S_W}, 1
    s_cselect_b64 vcc, -1, 0
    s_nop 1
    v_cndmask_b32 v{vZ+1}, v{TT}, v{vZ}, vcc
    """)
    A.vm = []
    A.lg = []
    step_offsets(A)
    pre_step(A)
    hop_addr(A)
    A(f"v_lshrrev_b32 v{TT+2}, 2, v{vL16}")
    A(f"ds_write_b128 v{GW}, {vr(MF,4)} offset:{L_MEM}\nds_write_b128 v{GW}, {vr(MF+4,4)} offset:{L_MEM+1024}")
    A("s_waitcnt vmcnt(0) lgkmcnt(0)")
    A.lg = []
    cstamp(A, cfg, 9)
    if cfg.get('cdiag'):
        A(f"v_writelane_b32 v{TT}, s100, 0")
        if cfg.get('dbgs'):
            A(f"""
            v_subrev_u32 v{TT}, s100, v{TT}
            v_readlane_b32 s96, v{TT}, 9
            s_nop 3
            v_writelane_b32 v{TT}, s96, 7
            v_lshrrev_b32 v{TT+1}, 2, v{vL16}
            v_add_u32 v{TT+1}, 28, v{TT+1}
            s_mov_b64 exec, 0xfe
            global_atomic_umax v{TT+1}, v{TT}, s[{S_DBG}:{S_DBG+1}]
            s_mov_b64 exec, -1
            """)
        A(f"s_lshl_b32 s96, s{S_ID}, 8\ns_add_u32 s96, s96, 0x118000\nv_lshrrev_b32 v{TT+1}, 2, v{vL16}\nbuffer_store_dword v{TT}, v{TT+1}, {WS}, s96 offen")


def step_offsets(A):
    A(f"""
    s_and_b32 s{sT}, s{sStep}, 3
    s_lshl_b32 s{sT+1}, s{sT}, 18
    s_add_u32 s{sT+1}, s{sT+1}, {PRING:#x}
    s_lshl_b32 s{sT+2}, s{S_W}, 16
    s_add_u32 s{sP}, s{sT+1}, s{sT+2}
    s_bitcmp1_b32 s{S_ID}, 2
    s_movk_i32 s{sPb}, 0x7c00
    s_cselect_b32 s{sPb}, 0x8400, s{sPb}
    s_add_u32 s{sP+1}, s{sP}, s{sPb}
    s_lshl_b32 s{sT+2}, s{S_ID}, 13
    s_add_u32 s{sRL}, s{sT+1}, s{sT+2}
    s_add_u32 s{sT+1}, s{sStep}, 3
    s_and_b32 s{sT+1}, s{sT+1}, 3
    s_lshl_b32 s{sT+1}, s{sT+1}, 18
    s_lshl_b32 s{sT+2}, s{S_W}, 16
    s_add_u32 s{sT+1}, s{sT+1}, s{sT+2}
    s_add_u32 s{sPR}, s{sT+1}, {PRING:#x}
    s_add_u32 s{sPR+1}, s{sPR}, s{sPb}
    s_lshl_b32 s{sMRs}, s{sT}, 13
    s_add_u32 s{sMRs}, s{sMRs}, {MRING:#x}
    s_add_u32 s{sT+1}, s{sStep}, 1
    s_and_b32 s{sT+1}, s{sT+1}, 3
    s_lshl_b32 s{sT+1}, s{sT+1}, 13
    s_add_u32 s{sMO}, s{sT+1}, {MRING:#x}
    s_lshl_b32 s{sT+1}, s{S_W}, 11
    s_add_u32 s{sG}, s{sMO}, s{sT+1}
    s_add_u32 s{sKXo}, s{sKXo}, 0x40000
    s_add_u32 s{sPF}, s{sPF}, 0x40000
    s_add_u32 s{sKM}, s{sKM}, 0x40000
    s_xor_b32 s{sM0K}, s{sM0K}, 0x2000
    s_add_u32 s{sFLo}, s{sFLc}, {128 * (2 & ((1 << LJ[0]) - 1))}
    s_mov_b32 s{sNeed}, 0
    s_lshl_b32 s{sW11}, s{S_W}, 11
    """)


def pre_step(A):
    for t in range(4):
        lds_frag_load(A, ('Q', 1, 2 * t), KX + 8 * t, ("sb", t))
    for r in range(AQ, AQ + 24, 2):
        A(f"v_mov_b64 {vr(r,2)}, 0")


GW = VB + 3
vM = [None, VB, VB + 1, VB + 4]


def hop_addr(A):
    A(f"v_add_u32 v{GW}, s{sW11}, v{vL16}")
    for j in range(1, 4):
        A(f"v_xor_b32 v{vM[j]}, {j << 11:#x}, v{GW}")


def emit(A, f):
    f() if callable(f) else A(f)


def weave(A, mf, fill, per=1, lead=0):
    fill = list(fill)
    for i, m in enumerate(mf):
        m()
        if i >= lead:
            for _ in range(per):
                if fill:
                    emit(A, fill.pop(0))
    for f in fill:
        emit(A, f)


def stamp(A, cfg, name):
    d = cfg.get('diag', ())
    if name in d:
        k = list(d).index(name)
        A(f"{'s_memrealtime' if cfg.get('abs') else 's_memtime'} s[{12+2*k}:{13+2*k}]")


def fold(x):
    return [f"v_add_f32 v{x}, v{x}, v{x+1}", f"v_add_f32 v{x+2}, v{x+2}, v{x+3}"]


def chain_loop(A, cfg, mode):
    st = " sc1" if mode == 'slow' else ""
    L = f"Lchain_{mode}"
    dA, dB, dB2 = cfg.get('dA', 0), cfg.get('dB', 24), cfg.get('dB2', 12)
    noside = cfg.get('noside', 0)
    A.c(f"===== chain loop ({mode}) =====")
    Lg = A.uid("Lhop")

    def isvalu(f):
        return isinstance(f, str) and f.startswith("v_")

    def gap(m, *items):
        m()
        its = [f for f in items if f is not None]
        for f in its:
            if not isvalu(f):
                emit(A, f)
        for f in its:
            if isvalu(f):
                A(f)

    def pop(lst):
        return lst.pop(0) if lst else None

    def ldsf(key, dst, tag):
        f = LDSF[key]
        return [lambda: A.ds(f"ds_read_b128 {vr(dst,4)}, v{vWL} offset:{f*2048}", tag),
                lambda: A.ds(f"ds_read_b128 {vr(dst+4,4)}, v{vWL} offset:{f*2048+1024}", tag)]

    def v_convert():
        ins = []
        for tau in range(2):
            x, b = AV + 4 * tau, VB + 8 * tau
            ins += fold(x) + [f"v_cvt_pk_bf16_f32 v{b+2}, v{x}, v{x+2}", f"v_cvt_pk_bf16_f32 v{b+3}, v{x}, v{x+2}"]
        return ins

    vL4 = TT + 2

    def v_publish(so):
        if cfg.get('nopub'):
            return []
        return [lambda: A.vmem(f"buffer_store_dword v{VB+2}, v{vL4}, {WS}, s{so} offen offset:2048 sc1", "vm"),
                lambda: A.vmem(f"buffer_store_dword v{VB+10}, v{vL4}, {WS}, s{so} offen offset:2304 sc1", "vm")]

    def pairfold(x):
        return fold(x) + fold(x + 4) + [f"v_cvt_pk_bf16_f32 v{x}, v{x}, v{x+4}", f"v_cvt_pk_bf16_f32 v{x+1}, v{x+2}, v{x+6}"]

    def qkv_phases(last):
        slowlab = A.uid("Lflagslow")

        def Q(i, tau):
            b = Reg('v', KX + 4 * i) if (tau and i % 2 == 0) else RFF[('Q', tau, i)]
            return (lambda: A("s_nop 0")) if last else (lambda: smf(A, AQ + 4 * tau, MF + 4 * i, b))

        def K(i, tau):
            b = Reg('v', KX + 4 * i) if (tau and i % 2 == 0) else RFF[('K', tau, i)]
            return lambda: smf(A, AK + 4 * tau, MF + 4 * i, b)
        mfr = [lambda i=i: A.ds(f"ds_read_b128 {vr(MF+4*i,4)}, v{vM[i//2]} offset:{L_MEM+(i&1)*1024}", ("mf", i)) for i in range(2, 8)]
        kl = {i: ldsf(('K', 1, i), KX + 4 * i, ("sb", i)) for i in (0, 2, 4, 6)}
        rst = [lambda b=b: A.vmem(f"buffer_store_dwordx4 {vr(TT,4)}, v{vPS}, {WS}, s{sPR+b} offen{st}", "rst") for b in range(2)]
        if last or cfg.get('rhop'):
            rst = [None, None]
        C0, C1 = TT + 3, TT + 1
        ops = {'r0': rst[0], 'r1': rst[1],
               'pg': lambda: A.vmem(f"buffer_store_dword v{TT}, v{vZ+1}, {WS}, s{sProg} offen sc1", "prog")}
        if not cfg.get('nopub'):
            ops['m0'] = lambda: A.vmem(f"buffer_store_dword v{C0}, v{vL4}, {WS}, s{sT+8} offen offset:2048 sc1", "vm")
            ops['m1'] = lambda: A.vmem(f"buffer_store_dword v{C1}, v{vL4}, {WS}, s{sT+8} offen offset:2304 sc1", "vm")
        if not last and not noside:
            ops.update({
                'v0': lambda: A.vmem(f"buffer_load_dwordx4 {vr(VB,4)}, v{vKX}, {WS}, s{sVXo} offen", "vx"),
                'v1': lambda: A.vmem(f"buffer_load_dwordx4 {vr(VB+8,4)}, v{vKX}, {WS}, s{sVXo} offen offset:256", "vx"),
                'k0': lambda: A.vmem(f"buffer_load_dwordx4 v{vL16}, {WS}, s{sKXo} offen lds", "kx"),
                'k1': lambda: A.vmem(f"buffer_load_dwordx4 v{vL16}, {WS}, s{sKXo} offen offset:1024 lds", "kx"),
                'pa': f"v_lshlrev_b32 v{VB+5}, 1, v{vL16}",
                'pf': lambda: A.vmem(f"buffer_load_dword v{vFL}, v{VB+5}, {WS}, s{sPF} offen", "pf"),
                'fl': lambda: A.vmem(f"buffer_load_dword v{vFL}, v{vZ}, {WS}, s{sFLo} offen sc1", "fl")})
        plan = cfg.get('plan', {'g0': 'm0', 'g1': 'm1', 'g4': 'n0', 'g5': 'n1', 'g6': 'pv', 'g8': 'pg', 'q0': 's0', 'q1': 's1', 'q2': 's2', 'q3': 'v0',
                                'q4': 's3', 'q6': 'v1', 'q8': 'pa', 'q9': 'r0', 'k0': 'pf', 'k4': 'r1', 'k8': 'k0', 'k11': 'fl', 'w1': 'k1'})
        used = set()

        def X(name):
            o = plan.get(name)
            used.add(name)
            return ops.get(o)
        kmlate = not cfg.get('nopub')
        V = lambda i, tau: (lambda: smf(A, AV + 4 * tau, MF + 4 * i, RFF[('V', tau, i)]))
        if kmlate:
            ops['n0'] = lambda: (A.wl("kr"), A.vmem(f"buffer_store_dword v{TT}, v{vL4}, {WS}, s{sT+8} offen sc1", "km"))
            ops['n1'] = lambda: A.vmem(f"buffer_store_dword v{TT+1}, v{vL4}, {WS}, s{sT+8} offen offset:256 sc1", "km")
        C0, C1 = VB + 2, VB + 10
        ops['pv'] = f"v_mov_b32 v{TT+3}, s{sT+11}"
        ops['pg'] = lambda: A.vmem(f"buffer_store_dword v{TT+3}, v{vZ+1}, {WS}, s{sProg} offen sc1", "prog")
        if not last and not cfg.get('rhop'):
            for i in range(4):
                ops[f's{i}'] = f"v_mov_b32 v{TT+i}, {SENT_P:#x}"
        own = [Q(0, 1), Q(0, 0), Q(1, 0), Q(1, 1), K(1, 0), K(1, 1), V(0, 0), V(0, 1), V(1, 0), V(1, 1), K(0, 0), K(0, 1)]
        npre = cfg.get('npre0', 7)
        for g, m in enumerate(own):
            it = [X(f'g{g}')]
            if g == 0:
                it.insert(0, lambda: A.ds(f"ds_read2_b32 {vr(TT,2)}, v{vQW} offset0:64 offset1:200", "kr"))
            if g in (1, 2):
                it.insert(0, kl[0][g - 1])
            if g == 3 and not last:
                it.append(f"s_cmp_le_u32 s{sF0}, s{sNeed}\ns_cbranch_scc1 {slowlab}\n{slowlab}_ret:")
            if g == 4:
                it.append(f"s_mov_b32 m0, s{sM0K}")
            if g >= npre:
                it.insert(0, pop(mfr))
            if g == 10:
                it.append(lambda: A.wl(("sb", 0)))
            gap(m, *it)
            if g == npre - 1:
                if not last:
                    stamp(A, cfg, 'b0')
                A.wl("gw")
                A("s_barrier")
                if not last:
                    stamp(A, cfg, 'b1')
                pop(mfr)()
        A.wl(("mf", 2))
        if not last:
            stamp(A, cfg, 'mf')
        kxr, fill = [], []
        if not last:
            fill = pairfold(AQ)
            kxr = [lambda t=t, a=a: A.ds(f"ds_read_b128 {vr(KX+8*t+4*a,4)}, v{vKX} offset:{t*2048+a*256}", "kxf")
                   for t in range(4) for a in range(2)]
        ds = {0: pop(mfr), 1: pop(mfr), 2: kl[2][0], 3: kl[2][1], 4: pop(kxr), 5: pop(kxr), 6: kl[4][0], 7: kl[4][1], 10: kl[6][0], 11: kl[6][1]}
        wt = {1: ("mf", 4), 5: ("mf", 7)}
        for n in range(12):
            i, tau = 2 + n // 2, (n + 1) & 1 if (2 + n // 2) % 2 == 0 else n & 1
            it = [ds.get(n), X(f'q{n}')]
            if n in wt:
                it.append(lambda n=n: A.wl(wt[n]))
            if n == 11:
                it.append(lambda: A.wl(("sb", 2)))
            gap(Q(i, tau), *it)
        if not last:
            stamp(A, cfg, 'q')
        for n in range(12):
            i, tau = 2 + n // 2, (n + 1) & 1 if (2 + n // 2) % 2 == 0 else n & 1
            it = []
            if n >= 1:
                it.append(pop(fill))
            if n == 7 and not last:
                it.append(lambda: A.ds(f"ds_write2_b32 v{vQW}, v{AQ}, v{AQ+1} offset0:0 offset1:136", "qw"))
            elif n in (1, 2, 5, 6, 9, 10):
                it.append(pop(kxr))
            if n == 3:
                it.append(lambda: A.wl(("sb", 6)))
            it.append(X(f'k{n}'))
            gap(K(i, tau), *it)
        assert not kxr and not fill and not mfr
        if not last:
            stamp(A, cfg, 'k')
        mf = [lambda t=t, tau=tau: smf(A, AV + 4 * tau, MF + 4 * t, RFF[('V', tau, t)]) for t in range(2, 8) for tau in range(2)]
        pub = [lambda: A.vmem(f"buffer_store_dword v{AK}, v{vL4}, {WS}, s{sKM} offen sc1", "km"),
               lambda: A.vmem(f"buffer_store_dword v{AK+1}, v{vL4}, {WS}, s{sKM} offen offset:256 sc1", "km")]
        if cfg.get('nopub') or (kmlate and not last):
            pub = []
        return mf, pub, X, slowlab


    def house():
        A(f"""
        s_mov_b32 s{sT+6}, s{sRL}
        s_add_u32 s{sT+7}, s{sRL}, 0x1000
        s_mov_b32 s{sT+4}, s{sMO}
        s_mov_b32 s{sT+5}, s{sMRs}
        s_mov_b32 s{sT+3}, s{sG}
        s_mov_b32 s{sT+9}, 0
        s_mov_b32 s{sT+10}, 0
        s_mov_b32 s{sT+8}, s{sKM}
        s_mov_b32 s{sT+11}, s{sStep}
        """)

    def house2():
        return f"""
        s_add_u32 s{sStep}, s{sStep}, 1
        s_mov_b32 s{sPR}, s{sP}
        s_mov_b32 s{sPR+1}, s{sP+1}
        s_mov_b32 s{sMRs}, s{sMO}
        s_add_u32 s{sP}, s{sP}, 0x40000
        s_bitset0_b32 s{sP}, 20
        s_add_u32 s{sP+1}, s{sP}, s{sPb}
        s_add_u32 s{sRL}, s{sRL}, 0x40000
        s_bitset0_b32 s{sRL}, 20
        s_add_u32 s{sMO}, s{sMO}, 0x2000
        s_bitset0_b32 s{sMO}, 15
        s_add_u32 s{sG}, s{sG}, 0x2000
        s_bitset0_b32 s{sG}, 15
        s_add_u32 s{sKXo}, s{sKXo}, 0x40000
        s_add_u32 s{sVXb}, s{sVXb}, 0x40000
        s_and_b32 s{sT}, s{sM0K}, 0x2000
        s_sub_u32 s{sVXo}, s{sVXb}, s{sT}
        s_add_u32 s{sPF}, s{sPF}, 0x40000
        s_add_u32 s{sKM}, s{sKM}, 0x40000
        s_xor_b32 s{sM0K}, s{sM0K}, 0x2000
        s_add_u32 s{sT}, s{sStep}, 1
        s_lshr_b32 s{sNeed}, s{sT}, {LJ[0]}
        s_add_u32 s{sT}, s{sStep}, 2
        s_and_b32 s{sT}, s{sT}, {(1 << LJ[0]) - 1}
        s_lshl_b32 s{sT}, s{sT}, 7
        s_add_u32 s{sFLo}, s{sFLc}, s{sT}
        """.strip().split("\n")

    def rload(u, s0):
        A(f"buffer_load_dwordx4 {vr(MF+4*u,4)}, v{vL16}, {WS}, s{s0+u//4} offen offset:{(u%4)*1024} sc1")

    def rround():
        for u in range(8):
            rload(u, sT + 6)
    A(f"{L}:\ns_branch {Lg}_compute")
    A(f".p2align {cfg.get('al', 6)}")
    for _ in range(cfg.get('alo', 0)):
        A("s_nop 0")
    A.label(Lg)
    n0 = len(A.lines)
    MRS = f"v_mov_b32 v{TT+2}, -1\nv_mov_b32 v{TT+3}, -1\nbuffer_store_dwordx2 {vr(TT+2,2)}, v{vRS}, {WS}, s{sT+5} offen{st}"
    if cfg.get('mrlate', 1):
        A(MRS)
    house()
    pre_step(A)
    hop_addr(A)
    hk = A.lines[n0:]
    del A.lines[n0:]
    hs = max(2, min(len(hk), cfg.get('hsplit', len(hk))))
    A.lines += hk[:hs]
    A.nop(dA)
    stamp(A, cfg, 'r0')
    rround()
    stamp(A, cfg, 'ri')
    A.lines += hk[hs:]
    nr = cfg.get('nr', 4)
    if nr < 0:
        A(f"s_branch {Lg}_red1\n{Lg}_red:") if hk[hs:] or True else None
        rround()
        A.label(Lg + "_red1")
        for u in range(8):
            A(f"s_waitcnt vmcnt({7 - u})")
            A(f"v_mfma_f32_16x16x32_bf16 {vr(TT,4)}, {vr(vSEL,4)}, {vr(MF+4*u,4)}, {'0' if u==0 else vr(TT,4)}")
    else:
        A.label(Lg + "_red")
        for u in range(nr):
            rload(u, sT + 6)
        for u in range(8):
            A(f"s_waitcnt vmcnt({7 - u + min(8, nr + u)})")
            A(f"v_mfma_f32_16x16x32_bf16 {vr(TT,4)}, {vr(vSEL,4)}, {vr(MF+4*u,4)}, {'0' if u==0 else vr(TT,4)}")
            if nr + u < 8:
                rload(nr + u, sT + 6)
    stamp(A, cfg, 'rm')
    A(f"""
    s_add_u32 s{sT+9}, s{sT+9}, 1
    s_cmp_gt_u32 s{sT+9}, 64
    s_cbranch_scc1 {Lg}_nan
    s_nop 4
    v_cmp_u_f32 vcc, v{TT}, v{TT}
    v_cvt_pk_bf16_f32 v{TT}, v{TT}, v{TT+1}
    v_cvt_pk_bf16_f32 v{TT+1}, v{TT+2}, v{TT+3}
    s_cbranch_vccnz {Lg}_red
    {Lg}_ok:
    buffer_store_dwordx2 {vr(TT,2)}, v{vRS}, {WS}, s{sT+4} offen{st}
    """)
    stamp(A, cfg, 'r1')
    A(f"""
    {'' if cfg.get('mrlate', 1) else MRS}
    {Lg}_bar:
    s_waitcnt lgkmcnt(0)
    s_barrier
    """)
    stamp(A, cfg, 6)
    G = MF

    def ground():
        A(f"buffer_load_dwordx4 {vr(G,4)}, v{vL16}, {WS}, s{sT+3} offen sc1")
        A(f"buffer_load_dwordx4 {vr(G+4,4)}, v{vL16}, {WS}, s{sT+3} offen offset:1024 sc1")
    if True:
        mA, mB = 54, 52
        h2 = [l.strip() for l in house2()] + [f"s_mov_b64 s[{mA}:{mA+1}], -1", f"s_mov_b64 s[{mB}:{mB+1}], -1", f"v_lshrrev_b32 v{TT+2}, 2, v{vL16}"]
        depth = cfg.get('gdepth', 3)
        spw = cfg.get('spw', 0)
        W0 = f"ds_write_b128 v{GW}, {vr(G,4)} offset:{L_MEM}"
        W1 = f"ds_write_b128 v{GW}, {vr(G+4,4)} offset:{L_MEM+1024}"
        n1, n2 = cfg.get('h2a', 26), cfg.get('h2b', 4)
        A("\n".join(h2[:n1]))
        ground()
        A("\n".join(h2[n1:n1+n2]))
        if depth == 3:
            ground()
        A("\n".join(h2[n1+n2:]))
        A(f"""
        {Lg}_poll:
        s_mov_b64 exec, s[{mA}:{mA+1}]
        buffer_load_dwordx4 {vr(G,4)}, v{vL16}, {WS}, s{sT+3} offen sc1
        s_mov_b64 exec, s[{mB}:{mB+1}]
        buffer_load_dwordx4 {vr(G+4,4)}, v{vL16}, {WS}, s{sT+3} offen offset:1024 sc1
        s_mov_b64 exec, -1
        s_add_u32 s{sT+10}, s{sT+10}, 1
        s_cmp_gt_u32 s{sT+10}, 0x400000
        s_cbranch_scc1 L_end
        {Lg}_chk:
        s_waitcnt vmcnt({2*depth-1})
        v_max3_u32 v{TT}, v{G}, v{G+1}, v{G+2}
        v_max_u32 v{TT}, v{TT}, v{G+3}
        {W0 if spw else ''}
        s_waitcnt vmcnt({2*depth-2})
        v_max3_u32 v{TT+1}, v{G+4}, v{G+5}, v{G+6}
        v_max_u32 v{TT+1}, v{TT+1}, v{G+7}
        {W1 if spw else ''}
        v_cmp_eq_u32 s[{mA}:{mA+1}], -1, v{TT}
        v_cmp_eq_u32 s[{mB}:{mB+1}], -1, v{TT+1}
        s_or_b64 vcc, s[{mA}:{mA+1}], s[{mB}:{mB+1}]
        s_cbranch_scc1 {Lg}_poll
        {'' if spw else W0}
        {'' if spw else W1}
        """)
    A(f"""
    v_readfirstlane_b32 s{sF0}, v{vFL}
    """)
    stamp(A, cfg, 7)
    if cfg.get('diag'):
        A("s_waitcnt lgkmcnt(0)")
        for k in range(len(cfg['diag'])):
            A(f"v_writelane_b32 v{TT+3}, s{12+2*k}, {k}")
        A(f"v_writelane_b32 v{TT+3}, s{sT+9}, 30")
        A(f"v_writelane_b32 v{TT+3}, s{sT+10}, 31")
        A(f"""
        s_lshl_b32 s{sT}, s{sStep}, 7
        s_lshl_b32 s{sT+1}, s{S_ID}, 2
        s_add_u32 s{sT+1}, s{sT+1}, s{S_W}
        s_lshl_b32 s{sT+1}, s{sT+1}, 13
        s_add_u32 s{sT}, s{sT}, s{sT+1}
        s_add_u32 s{sT}, s{sT}, {DIAG - 128:#x}
        v_lshrrev_b32 v{TT}, 2, v{vL16}
        s_mov_b32 exec_hi, 0
        buffer_store_dword v{TT+3}, v{TT}, {WS}, s{sT} offen
        s_mov_b64 exec, -1
        """)
    A(f"""
    {Lg}_compute:
    s_cmp_eq_u32 s{sStep}, 63
    s_cbranch_scc1 {Lg}_last
    """)
    A.lg = ["gw", "gw"]
    A.vm = ["poll"] * 4
    stamp(A, cfg, 0)
    mf, pub, X, slowlab = qkv_phases(False)
    pop(mf)()
    pop(mf)()
    A("\n".join(pairfold(AK)))
    A.ds(f"ds_write2_b32 v{vQW}, v{AK}, v{AK+1} offset0:64 offset1:200", "kw")
    stamp(A, cfg, 'kw')
    nv1, nv2 = cfg.get('nv1', 5), cfg.get('nv2', 5)
    assert nv1 + nv2 == 10
    for i in range(nv1):
        gap(pop(mf), pop(pub), X(f'w{i}'), (lambda: A.wv('poll')) if i == 0 else None)
    stamp(A, cfg, 'v1')
    A.wl()
    A("s_barrier")
    stamp(A, cfg, 1)
    qr = [lambda u=u: A.ds(f"ds_read_b128 {vr(AQ+4*u,4)}, v{vTQ} offset:{u*64}", ("qf", u)) for u in range(4)]
    kr = [lambda u=u: A.ds(f"ds_read_b128 {vr(KX+4*u,4)}, v{vTK} offset:{u*64}", ("kf", u)) for u in range(4)]
    pop(qr)()
    pop(qr)()
    S0, S1, SM = MF, MF + 4, MF + 8
    O0, O1, SU = MF + 12, MF + 16, MF + 20
    zero = [f"v_mov_b64 {vr(r,2)}, 0" for r in range(O0, O0 + 8, 2)]
    for i in range(nv2):
        gap(pop(mf), pop(qr), X(f'x{i}'), pop(zero) if i >= 1 else None, (lambda: A.wl(("qf", 1))) if i == nv2 - 1 else None)
    assert not qr and not mf
    stamp(A, cfg, 'v2')

    def xs(u, a):
        c = "0" if u == 0 else vr(S0 + 4 * a, 4)
        return lambda: A(f"v_mfma_f32_16x16x32_bf16 {vr(S0+4*a,4)}, {vr(KX+8*u+4*a,4)}, {vr(AQ+4*u,4)}, {c}")

    def ms(u):
        c = "0" if u == 0 else vr(SM, 4)
        return lambda: A(f"v_mfma_f32_16x16x32_bf16 {vr(SM,4)}, {vr(KX+4*u,4)}, {vr(AQ+4*u,4)}, {c}")
    vc = []
    for tau in range(2):
        x = AV + 4 * tau
        vc += fold(x) + [f"v_cvt_pk_bf16_f32 v{x+1}, v{x}, v{x+2}", f"v_cvt_pk_bf16_f32 v{x}, v{x}, v{x+2}"]
    gap(xs(0, 0), pop(kr), pop(zero))
    gap(xs(0, 1), pop(kr), f"v_xor_b32 v{vKX}, 0x2000, v{vKX}")
    gap(xs(1, 0), pop(kr), pop(vc))
    gap(xs(1, 1), pop(kr), lambda: A.wl(("qf", 3)))
    gap(xs(2, 0), pop(vc), pop(vc))
    gap(xs(2, 1), pop(vc), pop(vc))
    gap(xs(3, 0), pop(vc), pop(vc))
    gap(xs(3, 1), lambda: A.wl(("kf", 3)), pop(vc))
    assert not zero and not vc
    stamp(A, cfg, 'sx')
    wl_ = ldsf(('O', 0, 0), KX + 16, "wo0") + ldsf(('O', 0, 1), KX + 24, "wo0")
    wl2 = ldsf(('O', 2, 0), KX, "wo2") + ldsf(('O', 2, 1), KX + 8, "wo2") + ldsf(('O', 4, 0), AK, "wo4")
    m_, t_ = TT, TT + 1
    OD = f"s[{sODD}:{sODD+1}]"
    gap(ms(0), pop(wl_))
    gap(ms(1), pop(wl_), f"v_max3_f32 v{m_}, v{S0}, v{S0+1}, v{S0+2}")
    gap(ms(2), pop(wl_), f"v_max3_f32 v{t_}, v{S0+3}, v{S1}, v{S1+1}")
    gap(ms(3), pop(wl_), f"v_max3_f32 v{m_}, v{m_}, v{S1+2}, v{S1+3}")
    stamp(A, cfg, 2)
    sm = f"""
    v_max_f32 v{m_}, v{m_}, v{t_}
    v_cndmask_b32 v{S0}, v{S0}, v{S0+2}, {OD}
    v_cndmask_b32 v{S0+1}, v{S0+1}, v{S0+3}, {OD}
    v_cndmask_b32 v{S1}, v{S1}, v{S1+2}, {OD}
    v_cndmask_b32 v{S1+1}, v{S1+1}, v{S1+3}, {OD}
    W
    v_max3_f32 v{m_}, v{m_}, v{SM}, v{SM+1}
    v_max3_f32 v{m_}, v{m_}, v{SM+2}, v{SM+3}
    v_mov_b32 v{t_}, v{m_}
    v_cndmask_b32 v{SM}, v{SM}, v{SM+2}, {OD}
    v_cndmask_b32 v{SM+1}, v{SM+1}, v{SM+3}, {OD}
    v_permlane32_swap_b32 v{m_}, v{t_}
    v_max_f32 v{m_}, v{m_}, v{t_}
    v_mov_b32 v{t_}, v{m_}
    W
    V
    v_permlane16_swap_b32 v{m_}, v{t_}
    v_max_f32 v{m_}, v{m_}, v{t_}
    v_mul_f32 v{m_}, s{sC}, v{m_}
    v_fma_f32 v{S0}, v{S0}, s{sC}, -v{m_}
    v_fma_f32 v{S0+1}, v{S0+1}, s{sC}, -v{m_}
    v_fma_f32 v{S1}, v{S1}, s{sC}, -v{m_}
    v_fma_f32 v{S1+1}, v{S1+1}, s{sC}, -v{m_}
    v_fma_f32 v{SM}, v{SM}, s{sC}, -v{m_}
    v_fma_f32 v{SM+1}, v{SM+1}, s{sC}, -v{m_}
    v_exp_f32 v{SM}, v{SM}
    v_exp_f32 v{SM+1}, v{SM+1}
    w
    v_exp_f32 v{S0}, v{S0}
    v_exp_f32 v{S0+1}, v{S0+1}
    w
    v_exp_f32 v{S1}, v{S1}
    v_exp_f32 v{S1+1}, v{S1+1}
    v_cvt_pk_bf16_f32 v{S0+2}, v{SM}, v{SM+1}
    v_cvt_pk_bf16_f32 v{TT}, v{S0}, v{S0+1}
    v_cvt_pk_bf16_f32 v{TT+2}, v{S1}, v{S1+1}
    v_cndmask_b32 v{TT+1}, 0, v{S0+2}, s[{sEVL}:{sEVL+1}]
    v_cndmask_b32 v{TT+3}, 0, v{S0+2}, s[{sODL}:{sODL+1}]
    v_mov_b64 {vr(VB+4,2)}, {vr(VB+2,2)}
    v_mov_b64 {vr(VB+2,2)}, {vr(AV,2)}
    """
    nW, nP, nO = cfg.get('nW', 0), cfg.get('nP', 2), cfg.get('nO', 0)
    for ln in sm.strip().split("\n"):
        ln = ln.strip()
        if ln == "W":
            if nW > 0:
                pop(wl2)()
                nW -= 1
            else:
                A("s_nop 0")
        elif ln == "w":
            if nW > 0:
                pop(wl2)()
                nW -= 1
        elif ln == "V":
            A.wv("vx")
            if not A.lines[-1].startswith("s_waitcnt"):
                A("s_nop 0")
        else:
            A(ln)
    P = TT
    stamp(A, cfg, 3)
    WA = MF
    A(f"v_mfma_f32_16x16x32_bf16 {vr(SU,4)}, {vr(P,4)}, {vr(vONE,4)}, 0")
    A(f"v_mov_b64 {vr(VB+12,2)}, {vr(VB+10,2)}\nv_mov_b64 {vr(VB+10,2)}, {vr(AV+4,2)}")
    gap(lambda: smf(A, O0, P, Reg('v', VB)), pop(wl2) if nP > 0 else None, f"v_mov_b64 {vr(WA,2)}, 0")
    gap(lambda: smf(A, O1, P, Reg('v', VB + 8)), pop(wl2) if nP > 1 else None)
    A("\n".join(fold(SU)))
    A(f"v_rcp_f32 v{SU}, v{SU}\nv_rcp_f32 v{SU+2}, v{SU+2}")
    A("\n".join(fold(O0)))
    A(f"v_mul_f32 v{O0}, v{O0}, v{SU}\nv_mul_f32 v{O0+2}, v{O0+2}, v{SU+2}")
    A("\n".join(fold(O1)))
    A(f"v_mul_f32 v{O1}, v{O1}, v{SU}\nv_mul_f32 v{O1+2}, v{O1+2}, v{SU+2}")
    A(f"v_cvt_pk_bf16_f32 v{TT}, v{O0}, v{O1}\nv_cvt_pk_bf16_f32 v{TT+1}, v{O0+2}, v{O1+2}")
    A.ds(f"ds_write2_b32 v{vOW}, v{TT}, v{TT+1} offset0:0 offset1:80", "ow")
    stamp(A, cfg, 'ow')
    nz = cfg.get('nz', 12)
    zw = [f"v_mov_b64 {vr(r,2)}, 0" for r in range(WA + 2, WA + 32, 2)]
    for _ in range(nz):
        A(pop(zw))
    for _ in range(nO):
        if wl2:
            pop(wl2)()
    A.wl("ow")
    A("s_barrier")
    stamp(A, cfg, 4)
    OA = AQ
    for t in range(2):
        A.ds(f"ds_read_b128 {vr(OA+4*t,4)}, v{vTO} offset:{t*128}", ("of", t))
    wol = wl2 + ldsf(('O', 4, 1), AV, "wo4") + ldsf(('O', 6, 0), KX + 16, "wo6") + ldsf(('O', 6, 1), KX + 24, "wo6")
    npre = cfg.get('npre', 2)
    for _ in range(npre):
        pop(wol)()
    for f in zw:
        A(f)
    loc = {('O', 0, 0): Reg('v', KX + 16), ('O', 0, 1): Reg('v', KX + 24), ('O', 2, 0): Reg('v', KX), ('O', 2, 1): Reg('v', KX + 8),
           ('O', 4, 0): Reg('v', AK), ('O', 4, 1): Reg('v', AV), ('O', 6, 0): Reg('v', KX + 16), ('O', 6, 1): Reg('v', KX + 24)}
    seq = [(j, t) for j in range(8) for t in range(2)]
    tails = []
    for j in range(8):
        x = WA + 4 * j
        d = WA + 16 * (j // 4) + (j % 4)
        it = fold(x) + [f"v_cvt_pk_bf16_f32 v{d}, v{x}, v{x+2}"]
        b = j // 4
        px2 = cfg.get('px2', 0)
        if (px2 == 1 or (px2 == 2 and b == 1)) and j % 2 == 1:
            hh = (j % 4) // 2
            it.append(lambda b=b, hh=hh: A.vmem(f"buffer_store_dwordx2 {vr(WA+16*b+2*hh,2)}, v{vPS}, {WS}, s{sP+b} offen offset:{8*hh}{st}", "ps"))
        elif j % 4 == 3:
            it.append(lambda b=b: A.vmem(f"buffer_store_dwordx4 {vr(WA+16*b,4)}, v{vPS}, {WS}, s{sP+b} offen{st}", "ps"))
        tails.append((2 * j + 3, it))
    pend = []
    A.wl(("of", 1))
    for i, (j, t) in enumerate(seq):
        key = ('O', j, t)
        while tails and tails[0][0] <= i:
            pend += tails.pop(0)[1]
        it = []
        if wol and (len(wol) > 4 or i >= 1):
            it.append(pop(wol))
        if i == 3:
            it.append(lambda: A.wl("wo2"))
        if i == 7:
            it.append(lambda: A.wl("wo4"))
        if i == 11:
            it.append(lambda: A.wl("wo6"))
        smf(A, WA + 4 * j, OA + 4 * t, loc.get(key) or RFF[key])
        for f in it:
            emit(A, f)
        n = 2 if (i & 1) else 1
        while pend and (n > 0 or not isvalu(pend[0])):
            f = pend.pop(0)
            emit(A, f)
            n -= 1
        stamp(A, cfg, f'w{i}')
    n = 2
    for f in pend:
        emit(A, f); n += 1
    A.nop(max(0, 8 - n))
    for f in tails.pop(0)[1]:
        emit(A, f)
    assert not tails
    stamp(A, cfg, 5)
    A(f"s_cmp_lg_u32 s{S_W}, 0\ns_cbranch_scc1 {Lg}_other\ns_branch {Lg}")
    A.label(Lg + "_last")
    if cfg.get('tot'):
        A(f"""
        s_memtime s[16:17]
        s_memrealtime s[18:19]
        s_waitcnt lgkmcnt(0)
        s_sub_u32 s16, s16, s12
        s_sub_u32 s18, s18, s14
        v_mov_b32 v{TT}, s16
        v_mov_b32 v{TT+1}, s18
        s_lshl_b32 s16, s{S_ID}, 3
        s_add_u32 s16, s16, 0x11c000
        buffer_store_dwordx2 {vr(TT,2)}, v{vZ}, {WS}, s16 offen
        """)
        if cfg.get('dbgt'):
            A(f"""
            s_sub_u32 s14, s14, s100
            v_mov_b32 v{TT+3}, s14
            v_mov_b32 v{TT+2}, 36
            s_mov_b64 exec, 1
            global_atomic_umax v{TT+2}, v{TT+3}, s[{S_DBG}:{S_DBG+1}]
            global_atomic_umax v{TT+2}, v{TT+1}, s[{S_DBG}:{S_DBG+1}] offset:4
            global_atomic_umax v{TT+2}, v{TT}, s[{S_DBG}:{S_DBG+1}] offset:8
            s_mov_b64 exec, -1
            v_lshrrev_b32 v{TT+2}, 2, v{vL16}
            """)
    A.lg = ["gw", "gw"]
    A.vm = ["poll"] * 4
    mf, pub, side, _ = qkv_phases(True)
    A(f"v_lshrrev_b32 v{vL4}, 2, v{vL16}")
    weave(A, mf, pairfold(AK) + pub, per=1, lead=2)
    A.nop(8)
    A("\n".join(v_convert()))
    for f in v_publish(sKM):
        emit(A, f)
    A(f"""
    v_mov_b32 v{TT}, 64
    s_waitcnt vmcnt(0)
    s_barrier
    buffer_store_dword v{TT}, v{vZ+1}, {WS}, s{sProg} offen sc1
    s_waitcnt vmcnt(0)
    s_branch L_end
    """)
    A.label(Lg + "_other")
    house()
    pre_step(A)
    hop_addr(A)
    A(f"s_branch {Lg}_bar")
    A(f"""
    {slowlab}:
    s_add_u32 s{sT}, s{sStep}, 1
    s_and_b32 s{sT}, s{sT}, {(1 << LJ[0]) - 1}
    s_lshl_b32 s{sT}, s{sT}, 7
    s_add_u32 s{sT}, s{sT}, s{sFLc}
    {slowlab}_l:
    {GUARD}
    buffer_load_dword v{vFL}, v{vZ}, {WS}, s{sT} offen sc1
    s_waitcnt vmcnt(0)
    v_readfirstlane_b32 s{sF0}, v{vFL}
    s_cmp_le_u32 s{sF0}, s{sNeed}
    s_cbranch_scc1 {slowlab}_l
    s_branch {slowlab}_ret
    {Lg}_nan:
    {GUARD}
    s_mov_b32 s{sT+2}, {SENT_P:#x}
    s_mov_b64 s[{sT}:{sT+1}], 0
    s_waitcnt vmcnt(0)
    """)
    for i in range(32):
        A(f"v_cmp_eq_u32 vcc, s{sT+2}, v{MF+i}\ns_or_b64 s[{sT}:{sT+1}], s[{sT}:{sT+1}], vcc")
    A(f"""
    s_cmp_eq_u64 s[{sT}:{sT+1}], 0
    s_cbranch_scc1 {Lg}_acc
    """)
    rround()
    A(f"s_branch {Lg}_red\n{Lg}_acc:")
    for u in range(8):
        A(f"v_mfma_f32_16x16x32_bf16 {vr(TT,4)}, {vr(vSEL,4)}, {vr(MF+4*u,4)}, {'0' if u==0 else vr(TT,4)}")
    A(f"""
    s_nop 7
    v_cvt_pk_bf16_f32 v{TT}, v{TT}, v{TT+1}
    v_cvt_pk_bf16_f32 v{TT+1}, v{TT+2}, v{TT+3}
    v_min_u32 v{TT}, -2, v{TT}
    v_min_u32 v{TT+1}, -2, v{TT+1}
    s_branch {Lg}_ok
    """)


def chain(A, cfg):
    LJ[0] = cfg.get('lj', 2)
    chain_startup(A, cfg)
    A(f"s_mov_b32 s{sT+8}, s{sKM}\ns_mov_b32 s{sT+11}, 0\ns_mov_b32 s{sT+5}, {MRING:#x}")
    A(f"s_cmp_lt_u32 s{sT+7}, 32\ns_cbranch_scc1 Lchain_slow")
    if cfg.get('tot'):
        A("s_memtime s[12:13]\ns_memrealtime s[14:15]\ns_waitcnt lgkmcnt(0)")
    if cfg.get('forceslow'):
        A("s_branch Lchain_slow")
    chain_loop(A, cfg, 'fast')
    chain_loop(A, cfg, 'slow')
```

```python
from common import *

L_KX = 0x0000
L_MEM = 0x4000
L_Q = 0x6000
L_O = 0x7200
L_W = 0x8000

vL16, vIDX, vQW, vTQ, vTK, vTO, vKX, vWL, vPS, vOW, vRS, vFL = range(12)
vONE = 12
vSEL = 16
MF = 20
AQ, AK, AV = 52, 60, 68
KX = 76
VB = 108
TT = 124
vZ = VB + 6

sODL = 10
sStep = 60
sP = 61
sPF = 63
sVXb = 64
sPR = 65
sRL, sFLc, sMO, sMRs, sG, sKXo, sVXo, sKM, sFLo, sM0K = 69, 70, 71, 72, 73, 74, 75, 76, 77, 78
sProg = 79
sODD = 80
sEVL = 82
sC = 84
sF0 = 85
sW11 = 86
sNeed = 87
sPb = 68
sT = 88
SENT_P = 0x7F817F81
LJ = [2]

LDSF = {('Q', 1, 0): 0, ('Q', 1, 2): 1, ('Q', 1, 4): 2, ('Q', 1, 6): 3,
        ('K', 1, 0): 4, ('K', 1, 2): 5, ('K', 1, 4): 6, ('K', 1, 6): 7,
        ('O', 0, 0): 8, ('O', 0, 1): 9, ('O', 2, 0): 10, ('O', 2, 1): 11,
        ('O', 4, 0): 12, ('O', 4, 1): 13, ('O', 6, 0): 14, ('O', 6, 1): 15}
RFF = {}
_slots = [Reg('a', 8 * i) for i in range(32)] + [Reg('v', 128 + 8 * i) for i in range(16)]
for m in 'QKV':
    for tau in range(2):
        for t in range(8):
            if (m, tau, t) not in LDSF:
                RFF[(m, tau, t)] = _slots.pop(0)
for j in range(8):
    for t in range(2):
        if ('O', j, t) not in LDSF:
            RFF[('O', j, t)] = _slots.pop(0)
assert not _slots
WS = f"s[{S_WS}:{S_WS+3}]"
import common


def smf(A, acc, a, b):
    A(f"v_smfmac_f32_16x16x64_bf16 {vr(acc,4)}, {vr(a,4)}, {b.r(0,8)}, v{vIDX}")


def lds_frag_load(A, key, dst, tag):
    f = LDSF[key]
    A.ds(f"ds_read_b128 {vr(dst,4)}, v{vWL} offset:{f*2048}", tag)
    A.ds(f"ds_read_b128 {vr(dst+4,4)}, v{vWL} offset:{f*2048+1024}", tag)


def cstamp(A, cfg, k):
    if cfg.get('cdiag'):
        A(f"s_memrealtime s[96:97]\ns_waitcnt lgkmcnt(0)\n" + (f"s_mov_b32 s{71+k}, s96" if k <= 6 else f"v_writelane_b32 v{TT}, s96, {k}") + ("".join(f"\nv_writelane_b32 v{TT}, s{71+j}, {j}" for j in range(1, 7)) if k == 6 else ""))


def perwave(A, fn):
    end = A.uid("Lwe")
    for w in range(4):
        nx = A.uid("Lwn")
        if w < 3:
            A(f"s_cmp_lg_u32 s{S_W}, {w}\ns_cbranch_scc1 {nx}")
        fn(w)
        if w < 3:
            A(f"s_branch {end}\n{nx}:")
    A.label(end)


def chain_startup(A, cfg):
    A.c("===== chain startup =====")
    A(f"""
    v_and_b32 v1, 63, v0              ; lane
    v_and_b32 v2, 15, v1              ; n
    v_lshrrev_b32 v3, 4, v1           ; g
    v_lshrrev_b32 v4, 1, v3           ; g>>1
    v_and_b32 v5, 1, v3               ; g&1
    v_lshrrev_b32 v6, 2, v2           ; r = n>>2
    v_and_b32 v7, 3, v2               ; c = n&3
    v_lshrrev_b32 v9, 3, v2
    v_lshl_add_u32 v9, v9, 1, v4       ; jl
    v_and_b32 v10, 7, v2
    v_lshl_add_u32 v8, v5, 3, v10
    v_lshlrev_b32 v8, 4, v8
    v_lshl_add_u32 v8, v9, 13, v8
    s_lshl_b32 s{sT}, s{S_W}, 3
    s_xor_b32 s{sT}, s{sT}, s{S_ID}
    s_xor_b32 s{sT}, s{sT}, 31
    v_xor_b32 v9, s{sT}, v9
    v_lshl_add_u32 v8, v9, 8, v8
    ; vRS = (h>>1)*512 + (h&1)*128 + ((n>>2)&1)*256 + (2(n>>3) + (g&1))*32 + (n&3)*8
    s_lshr_b32 s{sT}, s{S_ID}, 1
    s_lshl_b32 s{sT}, s{sT}, 9
    s_and_b32 s{sT+1}, s{S_ID}, 1
    s_lshl_b32 s{sT+1}, s{sT+1}, 7
    s_add_u32 s{sT}, s{sT}, s{sT+1}
    v_lshrrev_b32 v9, 3, v2
    v_lshl_add_u32 v10, v9, 1, v5
    v_lshlrev_b32 v10, 5, v10
    v_lshl_add_u32 v10, v7, 3, v10
    v_and_b32 v9, 1, v6
    v_lshl_add_u32 v10, v9, 8, v10
    v_add_u32 v10, s{sT}, v10
    """)
    A(f"""
    v_lshlrev_b32 v9, 1, v3
    v_xor_b32 v9, v2, v9
    v_lshlrev_b32 v9, 4, v9
    s_lshl_b32 s{sT}, s{S_W}, 2
    v_add_u32 v13, s{sT}, v3          ; 4w+g
    v_lshl_add_u32 v11, v13, 13, v9   ; vDmaA
    v_lshl_add_u32 v12, v13, 10, v9   ; vDmaB
    v_and_b32 v9, 1, v6               ; r&1
    v_lshrrev_b32 v13, 1, v6          ; r>>1
    v_lshl_add_u32 v14, v13, 1, v5    ; 2(r>>1)+(g&1)
    v_lshl_add_u32 v15, v9, 2, v14    ; phi
    v_lshl_add_u32 v14, v4, 2, v14
    v_lshl_add_u32 v14, v9, 4, v14    ; row
    v_lshlrev_b32 v14, 8, v14
    v_lshl_add_u32 v14, v15, 5, v14
    s_lshl_b32 s{sT}, s{S_W}, 6
    v_xor_b32 v14, s{sT}, v14
    v_lshrrev_b32 v15, 1, v7
    v_lshlrev_b32 v15, 5, v15
    v_xor_b32 v1, v15, v14
    v_and_b32 v15, 1, v7
    v_lshl_add_u32 v2, v15, 3, v1
    v_lshl_add_u32 v14, v7, 3, v14
    v_lshlrev_b32 v15, 1, v5
    v_lshl_add_u32 v1, v13, 2, v15
    v_lshl_add_u32 v1, v4, 3, v1
    v_lshl_add_u32 v1, v9, 4, v1      ; row
    v_lshl_add_u32 v15, v9, 2, v15    ; phi
    v_lshlrev_b32 v1, 8, v1
    v_lshl_add_u32 v1, v7, 3, v1
    v_lshl_add_u32 v13, v15, 5, v1
    v_xor_b32 v5, 128, v11
    v_xor_b32 v6, 128, v12
    """)
    chunks = [('O', t, c) for t in range(2) for c in range(4)]
    chunks += [(m, t, None) for m in 'QK' for t in (2, 4, 6)]
    chunks += [('V', t, None) for t in range(8)]
    chunks += [(m, t, None) for m in 'QK' for t in (1, 3, 5, 7)]
    chunks += [('Q', 0, None), ('K', 0, None)]
    slot = lambda ci: 2 + (ci % 8) if ci < 30 else (ci - 30)
    A(f"""
    s_lshl_b32 s{sT+2}, s{S_ID}, 8        ; h*256
    s_lshl_b32 s{sT+3}, s{S_ID}, 17       ; h*128*1024
    s_lshl_b32 s{sT+4}, s{S_W}, 10        ; w*4*256
    """)

    def issue(ci):
        m, t, c = chunks[ci]
        srd = {'Q': S_WQ, 'K': S_WK, 'V': S_WV, 'O': S_WO}[m]
        for i in range(4):
            A(f"s_add_u32 m0, s{sT+4}, {slot(ci)*16384 + i*4096:#x}")
            if m == 'O':
                A(f"s_add_u32 s{sT+1}, s{sT+3}, {(64*t+16*i)*1024 + c*256:#x}")
                va = 6 if i & 1 else 12
            else:
                A(f"s_add_u32 s{sT+1}, s{sT+2}, {(64*t+16*i)*8192:#x}")
                va = 5 if i & 1 else 11
            A.vmem(f"buffer_load_dwordx4 v{va}, s[{srd}:{srd+3}], s{sT+1} offen{' nt' if cfg.get('wnt') else ''} lds", ("ch", ci))

    held = {}
    hfree = [16 + 8 * i for i in range(14)]
    PD = cfg.get('pd', 0)

    def rowpf(ci, now):
        if not PD or ci >= 32 or chunks[ci][0] == 'O':
            return
        m, t, c = chunks[ci]
        srd = {'Q': S_WQ, 'K': S_WK, 'V': S_WV}[m]
        A(f"""
        v_and_b32 v9, 63, v0
        v_lshlrev_b32 v9, 6, v9
        s_lshl_b32 s{sT}, s{S_ID}, 14
        s_lshl_b32 s{sT+1}, s{S_W}, 12
        s_add_u32 s{sT}, s{sT}, s{sT+1}
        s_add_u32 s{sT}, s{sT}, {t << 19:#x}
        """)
        A.vmem(f"buffer_load_dword v{7 if now < 12 else 4}, v9, s[{srd}:{srd+3}], s{sT} offen", "rpf")
    WD = cfg.get('wd', 8)
    for ci in list(range(WD)) + ([30, 31] if WD == 8 else []):
        issue(ci)
    cstamp(A, cfg, 1)
    PK = lambda w: RFF[('K', 0, 2 * w)]
    PQ = lambda w: RFF[('Q', 0, 2 * w)]
    A(f"""
    v_and_b32 v9, 63, v0
    v_bfe_u32 v15, v9, 1, 3
    v_lshlrev_b32 v15, 10, v15
    v_lshrrev_b32 v1, 4, v9
    v_lshl_add_u32 v15, v1, 3, v15
    v_and_b32 v1, 1, v9
    v_lshl_add_u32 v15, v1, 2, v15
    s_lshl_b32 s{sT}, s{S_W}, 8
    """)
    perwave(A, lambda w: A("\n".join(f"buffer_load_dword {PK(w).r(4*u+tl)}, v15, s[{S_MEM0}:{S_MEM0+3}], s{sT} offen offset:{u*128+tl*32}"
                                     for u in range(2) for tl in range(4))))
    A.vm += ["m0"] * 8
    A(f"s_mov_b32 s{sT+5}, 0")
    for ci in range(32):
        m, t, c = chunks[ci]
        if ci == 3:
            common.zero_load(A, 3)
            A.vm.append("zl")
        if ci == 11:
            A.wv("zl")
            lab = A.uid("Lz")
            A(f"v_cmp_ne_u32 vcc, 1, v3\ns_cbranch_vccnz {lab}\ns_mov_b32 s{sT+5}, 1")
            common.announce(A, 3)
            A.label(lab)
        if ci == 14:
            A("v_and_b32 v4, 7, v0\nv_lshlrev_b32 v4, 2, v4")
            A.vmem(f"buffer_load_dword v3, v4, {WS}, 0 offen offset:{F_LN} sc1", "l0")
        if ci == 22:
            A.wv("l0")
            lab = A.uid("Lpr")
            A(f"""
            v_cmp_ne_u32 vcc, 0x01010101, v3
            s_cbranch_vccnz {lab}
            s_cmp_eq_u32 s{sT+5}, 0
            s_cbranch_scc1 {lab}
            s_cmp_lg_u32 s{S_T}, 0
            s_cbranch_scc1 {lab}
            v_and_b32 v4, 63, v0
            v_lshlrev_b32 v4, 7, v4
            s_lshl_b32 s{sT}, s{S_ID}, 13
            s_lshl_b32 s{sT+1}, s{S_W}, 18
            s_add_u32 s{sT+1}, s{sT+1}, s{sT}
            s_add_u32 s{sT+1}, s{sT+1}, {PRING:#x}
            buffer_load_dword v3, v4, {WS}, s{sT+1} offen sc1
            s_lshl_b32 s{sT+1}, s{S_W}, 13
            s_add_u32 s{sT+1}, s{sT+1}, {MRING:#x}
            buffer_load_dword v3, v4, {WS}, s{sT+1} offen sc1
            {lab}:
            """)
        if ci == cfg.get('f0at', 26):
            A(f"""
            s_lshl_b32 s{sFLc}, s{S_ID}, 9
            s_add_u32 s{sFLc}, s{sFLc}, {F_P2:#x}
            v_and_b32 v1, 1, v0
            v_lshlrev_b32 v1, 7, v1
            """)
            A.vmem(f"buffer_load_dword v1, v1, {WS}, s{sFLc} offen sc1", "f0")
        if ci == 31:
            A.wv("f0")
            lab = A.uid("Lpf")
            A(f"""
            v_cmp_eq_u32 vcc, 0, v1
            s_cbranch_vccnz {lab}
            s_cmp_eq_u32 s{sT+5}, 0
            s_cbranch_scc1 {lab}
            s_mov_b32 s{sT+5}, 2
            v_and_b32 v1, 63, v0
            v_lshlrev_b32 v1, 7, v1
            s_lshl_b32 s{sT}, s{S_ID}, 13
            s_and_b32 s{sT+1}, s{S_W}, 1
            s_lshl_b32 s{sT+1}, s{sT+1}, 18
            s_add_u32 s{sT}, s{sT}, s{sT+1}
            s_lshr_b32 s{sT+1}, s{S_W}, 1
            s_lshl_b32 s{sT+1}, s{sT+1}, 24
            s_add_u32 s{sT}, s{sT}, s{sT+1}
            s_add_u32 s{sT}, s{sT}, {WS_KX:#x}
            buffer_load_dword v{VB+8}, v1, {WS}, s{sT} offen
            {lab}:
            """)
        if ci == 24:
            perwave(A, lambda w: common.table_load(A, PQ(w).r(0, 2), 9))
            A.vm.append("tl")
        if ci in (1, 10, 20, 30):
            cstamp(A, cfg, {1: 2, 10: 3, 20: 4, 30: 5}[ci])
        if ci == 22:
            A(f"""
            v_and_b32 v9, 63, v0
            v_lshlrev_b32 v9, 4, v9
            s_lshl_b32 s{sT+1}, s{S_W}, 15
            s_add_u32 s{sT+1}, s{sT+1}, {L_W:#x}
            v_add_u32 v7, s{sT+1}, v9          ; vWL
            """)
        if ci in (24, 26, 28, 30):
            lab = A.uid("Lhw")
            A(f"s_cmp_lg_u32 s{S_W}, { {24: 3, 26: 0, 28: 1, 30: 2}[ci] }\ns_cbranch_scc1 {lab}")
            wv_ = {24: 3, 26: 0, 28: 1, 30: 2}[ci]
            for key, r in held.items():
                f = LDSF[key] if key[0] == 'O' else LDSF[(key[0], 1, key[2] ^ (2 * wv_))]
                A(f"ds_write_b128 v7, {vr(r,4)} offset:{f*2048}")
                A(f"ds_write_b128 v7, {vr(r+4,4)} offset:{f*2048+1024}")
            A(f"s_waitcnt lgkmcnt(0)\n{lab}:")
        if ci == 30:
            A.wv("tl")
            perwave(A, lambda w: A("\n".join([f"v_accvgpr_read_b32 v{40+i}, {PK(w).r(i)}" for i in range(8)] +
                                              [f"v_accvgpr_read_b32 v{48+i}, {PQ(w).r(i)}" for i in range(2)])))
        A.wv(("ch", ci))
        A("s_barrier")
        sb = slot(ci) * 16384
        hi = sb & ~0x7fff
        lo = sb - hi
        if m == 'O':
            lab = A.uid("Lskipo")
            A(f"s_cmp_lg_u32 s{S_W}, {c}")
            A(f"s_cbranch_scc1 {lab}")
            for j in range(8):
                key = ('O', j, t)
                if key in LDSF:
                    if key not in held:
                        held[key] = hfree.pop(0)
                    dst = Reg('v', held[key])
                else:
                    dst = RFF[key]
                A(f"v_xor_b32 v9, {j*32}, v13")
                A(f"v_add_u32 v9, {hi:#x}, v9")
                A(f"v_xor_b32 v15, 32, v9")
                for k, (ad, off) in enumerate([(9, 0), (15, 256), (9, 8192), (15, 8192 + 256)]):
                    A.ds(f"ds_read_b64_tr_b16 {dst.r(2*k,2)}, v{ad} offset:{lo+off}", "tr")
                A.wl()
            A.label(lab)
        else:
            lds1 = m != 'V' and t % 2 == 0
            if lds1 and ci < 30:
                held[(m, 1, t)] = hfree.pop(0)
            for tau in range(2):
                ad = 9 if tau == 0 else 15
                if m == 'V':
                    A(f"v_xor_b32 v{ad}, {tau*32}, v14")
                    A(f"v_add_u32 v{ad}, {hi:#x}, v{ad}")
                else:
                    A(f"v_add_u32 v{ad}, {hi + tau*16:#x}, v2")
            end = A.uid("Lwe")
            for wv_ in range(4):
                nx = A.uid("Lwn")
                if wv_ < 3:
                    A(f"s_cmp_lg_u32 s{S_W}, {wv_}\ns_cbranch_scc1 {nx}")
                for tau in range(2):
                    if tau == 1 and lds1:
                        dst = Reg('v', held[(m, 1, t)] if ci < 30 else 16)
                    else:
                        dst = RFF[(m, tau, t ^ (2 * wv_))]
                    for k, off in enumerate([0, 8192, 2048, 8192 + 2048]):
                        A(f"ds_read_b64_tr_b16 {dst.r(2*k,2)}, v{9 if tau == 0 else 15} offset:{lo+off}")
                A("s_waitcnt lgkmcnt(0)")
                if lds1 and ci >= 30:
                    f = LDSF[(m, 1, t ^ (2 * wv_))]
                    A(f"ds_write_b128 v7, {vr(16,4)} offset:{f*2048}\nds_write_b128 v7, {vr(20,4)} offset:{f*2048+1024}\ns_waitcnt lgkmcnt(0)")
                if wv_ < 3:
                    A(f"s_branch {end}\n{nx}:")
            A.label(end)
        A("s_barrier")
        rowpf(ci + PD, ci)
        nxt = ci + WD
        if nxt < (30 if WD == 8 else 32):
            issue(nxt)
    assert not hfree
    cstamp(A, cfg, 6)
    A.c("chain address registers")
    A(f"""
    v_and_b32 v20, 63, v0             ; lane
    v_and_b32 v21, 15, v20            ; n
    v_lshrrev_b32 v22, 4, v20         ; g
    v_lshrrev_b32 v23, 1, v22         ; g>>1
    v_and_b32 v24, 1, v22             ; g&1
    v_lshrrev_b32 v25, 2, v21         ; r
    v_and_b32 v26, 3, v21             ; c
    v_lshlrev_b32 v{vL16}, 4, v20
    v_mov_b32 v{vIDX}, 0x4444
    v_mov_b32 v27, 0xeeee
    s_mov_b32 s{sODD}, 0xaaaaaaaa
    s_mov_b32 s{sODD+1}, 0xaaaaaaaa
    s_mov_b32 s{sEVL}, 0x55555555
    s_mov_b32 s{sEVL+1}, 0
    s_mov_b32 s{sODL}, 0xaaaaaaaa
    s_mov_b32 s{sODL+1}, 0
    s_mov_b32 s{sC}, {f32bits(SM_C):#x}
    s_mov_b32 s{sT+11}, {L_Q:#x}
    s_mov_b32 s{sT+10}, {L_O:#x}
    v_cndmask_b32 v{vIDX}, v{vIDX}, v27, s[{sODD}:{sODD+1}]
    s_lshl_b32 s{sT}, s{S_W}, 6
    v_lshlrev_b32 v27, 2, v21
    v_add_u32 v27, s{sT}, v27
    v_mul_u32_u24 v28, 1088, v22
    v_add3_u32 v{vQW}, v27, v28, s{sT+11}
    v_mul_u32_u24 v28, 640, v22
    v_add3_u32 v{vOW}, v27, v28, s{sT+10}
    v_lshrrev_b32 v27, 1, v21
    v_mul_u32_u24 v28, 544, v27
    v_lshl_add_u32 v28, v22, 4, v28
    v_add_u32 v{vTQ}, {L_Q:#x}, v28
    v_mul_u32_u24 v28, 320, v27
    v_lshl_add_u32 v28, v22, 5, v28
    v_and_b32 v29, 1, v21
    v_lshl_add_u32 v28, v29, 4, v28
    v_add_u32 v{vTO}, {L_O:#x}, v28
    v_and_b32 v27, 7, v21
    v_mul_u32_u24 v28, 544, v27
    v_lshl_add_u32 v28, v22, 4, v28
    v_add_u32 v{vTK}, {L_Q + 256:#x}, v28
    v_lshlrev_b32 v27, 9, v22
    v_lshl_add_u32 v{vKX}, v21, 4, v27
    v_and_b32 v29, 1, v25
    v_mov_b32 v30, 0x3f80
    v_mov_b32 v31, 0x3f800000
    v_cmp_eq_u32 vcc, 1, v29
    s_nop 1
    v_cndmask_b32 v30, v30, v31, vcc
    """)
    for d in range(4):
        A(f"v_cmp_eq_u32 vcc, {d}, v26\ns_nop 1\nv_cndmask_b32 v{vSEL+d}, 0, v30, vcc")
    for z in (VB + 6, VB + 7, VB + 14, VB + 15):
        A(f"v_mov_b32 v{z}, 0")
    if cfg.get('rsmask', 1):
        A(f"v_bfrev_b32 v30, 1\nv_cmp_lt_u32 vcc, 31, v20\ns_nop 1\nv_cndmask_b32 v{vRS}, v{vRS}, v30, vcc")
    A(f"v_bfrev_b32 v30, 1\nv_cmp_ne_u32 vcc, 0, v20\ns_nop 1\nv_cndmask_b32 v{vZ}, v{vZ}, v30, vcc")
    for z in range(4):
        A(f"v_mov_b32 v{vONE+z}, 0x3f803f80")
    lab = A.uid("Lci")
    A(f"s_cmp_lg_u32 s{sT+5}, 0\ns_cbranch_scc1 {lab}_z")
    common.wait_zero(A, 48)
    A(f"v_mov_b32 v48, 0\n{lab}_z:")
    common.validate(A, 48, preloaded=True)
    cstamp(A, cfg, 7)
    A(f"""
    s_mov_b32 s{sT+7}, s3
    v_mov_b32 v32, 0
    s_cmp_eq_u32 s{S_T}, 0
    s_cbranch_scc1 {lab}_r
    v_lshrrev_b32 v33, 2, v{vL16}
    s_mov_b32 s{sT+5}, 0
    {lab}_p2:
    {GUARD}
    buffer_load_dword v34, v33, {WS}, 0 offen sc1
    s_waitcnt vmcnt(0)
    v_cmp_ne_u32 vcc, 0x01010101, v34
    s_cbranch_vccnz {lab}_p2
    v_and_b32 v33, 28, v33
    {lab}_p3:
    {GUARD}
    buffer_load_dword v34, v33, {WS}, 0 offen offset:{F_LN+32} sc1
    s_waitcnt vmcnt(0)
    v_cmp_ne_u32 vcc, 0x01010101, v34
    s_cbranch_vccnz {lab}_p3
    {lab}_r:
    """)
    cstamp(A, cfg, 8)
    lab = A.uid("Lf0")
    A(f"""
    s_mov_b32 s{sF0}, 1
    s_cmp_eq_u32 s{sT+5}, 2
    s_cbranch_scc1 {lab}_ok
    {lab}:
    {GUARD}
    buffer_load_dword v{vFL}, v32, {WS}, s{sFLc} offen sc1
    buffer_load_dword v34, v32, {WS}, s{sFLc} offen offset:128 sc1
    s_waitcnt vmcnt(0)
    v_min_u32 v{vFL}, v{vFL}, v34
    s_nop 0
    v_readfirstlane_b32 s{sF0}, v{vFL}
    s_cmp_eq_u32 s{sF0}, 0
    s_cbranch_scc1 {lab}
    {lab}_ok:
    s_lshl_b32 s{sT}, s{S_ID}, 13
    s_lshl_b32 s{sT+1}, s{S_W}, 11
    s_add_u32 s{sVXb}, s{sT}, s{sT+1}
    s_add_u32 s{sVXb}, s{sVXb}, {WS_VX:#x}
    s_mov_b32 s{sVXo}, s{sVXb}
    s_add_u32 s{sKXo}, s{sT}, s{sT+1}
    s_add_u32 s{sKXo}, s{sKXo}, {WS_KX:#x}
    s_mov_b32 s{sM0K}, s{sT+1}
    s_lshl_b32 s{sT+2}, s{S_W}, 9
    s_add_u32 s{sKM}, s{sT}, s{sT+2}
    s_add_u32 s{sKM}, s{sKM}, {WS_KVM - 0x40000:#x}
    s_add_u32 s{sPF}, s{sT}, s{sT+1}
    s_add_u32 s{sPF}, s{sPF}, {WS_VX:#x}
    s_mov_b32 m0, s{sM0K}
    s_nop 0
    buffer_load_dwordx4 v{vL16}, {WS}, s{sKXo} offen lds
    buffer_load_dwordx4 v{vL16}, {WS}, s{sKXo} offen offset:1024 lds
    """)
    A(f"""
    s_mov_b32 s{sT}, 0x05040100
    s_mov_b32 s{sT+1}, 0x07060302
    """)
    for u in range(2):
        b = 40 + 4 * u
        A(f"""
        v_perm_b32 v{MF+4*u}, v{b+1}, v{b}, s{sT}
        v_perm_b32 v{MF+4*u+1}, v{b+3}, v{b+2}, s{sT}
        v_perm_b32 v{MF+4*u+2}, v{b+1}, v{b}, s{sT+1}
        v_perm_b32 v{MF+4*u+3}, v{b+3}, v{b+2}, s{sT+1}
        """)
    A(f"""
    s_mov_b32 s{sStep}, 0
    s_lshl_b32 s{sProg}, s{S_ID}, 7
    s_add_u32 s{sProg}, s{sProg}, {F_PROG:#x}
    v_bfrev_b32 v{TT}, 1
    s_cmp_eq_u32 s{S_W}, 1
    s_cselect_b64 vcc, -1, 0
    s_nop 1
    v_cndmask_b32 v{vZ+1}, v{TT}, v{vZ}, vcc
    """)
    A.vm = []
    A.lg = []
    step_offsets(A)
    pre_step(A)
    hop_addr(A)
    A(f"v_lshrrev_b32 v{TT+2}, 2, v{vL16}")
    A(f"ds_write_b128 v{GW}, {vr(MF,4)} offset:{L_MEM}\nds_write_b128 v{GW}, {vr(MF+4,4)} offset:{L_MEM+1024}")
    A("s_waitcnt vmcnt(0) lgkmcnt(0)")
    A.lg = []
    cstamp(A, cfg, 9)
    if cfg.get('cdiag'):
        A(f"v_writelane_b32 v{TT}, s100, 0")
        if cfg.get('dbgs'):
            A(f"""
            v_subrev_u32 v{TT}, s100, v{TT}
            v_readlane_b32 s96, v{TT}, 9
            s_nop 3
            v_writelane_b32 v{TT}, s96, 7
            v_lshrrev_b32 v{TT+1}, 2, v{vL16}
            v_add_u32 v{TT+1}, 28, v{TT+1}
            s_mov_b64 exec, 0xfe
            global_atomic_umax v{TT+1}, v{TT}, s[{S_DBG}:{S_DBG+1}]
            s_mov_b64 exec, -1
            """)
        A(f"s_lshl_b32 s96, s{S_ID}, 8\ns_add_u32 s96, s96, 0x118000\nv_lshrrev_b32 v{TT+1}, 2, v{vL16}\nbuffer_store_dword v{TT}, v{TT+1}, {WS}, s96 offen")


def step_offsets(A):
    A(f"""
    s_and_b32 s{sT}, s{sStep}, 3
    s_lshl_b32 s{sT+1}, s{sT}, 18
    s_add_u32 s{sT+1}, s{sT+1}, {PRING:#x}
    s_lshl_b32 s{sT+2}, s{S_W}, 16
    s_add_u32 s{sP}, s{sT+1}, s{sT+2}
    s_bitcmp1_b32 s{S_ID}, 2
    s_movk_i32 s{sPb}, 0x7c00
    s_cselect_b32 s{sPb}, 0x8400, s{sPb}
    s_add_u32 s{sP+1}, s{sP}, s{sPb}
    s_lshl_b32 s{sT+2}, s{S_ID}, 13
    s_add_u32 s{sRL}, s{sT+1}, s{sT+2}
    s_add_u32 s{sT+1}, s{sStep}, 3
    s_and_b32 s{sT+1}, s{sT+1}, 3
    s_lshl_b32 s{sT+1}, s{sT+1}, 18
    s_lshl_b32 s{sT+2}, s{S_W}, 16
    s_add_u32 s{sT+1}, s{sT+1}, s{sT+2}
    s_add_u32 s{sPR}, s{sT+1}, {PRING:#x}
    s_add_u32 s{sPR+1}, s{sPR}, s{sPb}
    s_lshl_b32 s{sMRs}, s{sT}, 13
    s_add_u32 s{sMRs}, s{sMRs}, {MRING:#x}
    s_add_u32 s{sT+1}, s{sStep}, 1
    s_and_b32 s{sT+1}, s{sT+1}, 3
    s_lshl_b32 s{sT+1}, s{sT+1}, 13
    s_add_u32 s{sMO}, s{sT+1}, {MRING:#x}
    s_lshl_b32 s{sT+1}, s{S_W}, 11
    s_add_u32 s{sG}, s{sMO}, s{sT+1}
    s_add_u32 s{sKXo}, s{sKXo}, 0x40000
    s_add_u32 s{sPF}, s{sPF}, 0x40000
    s_add_u32 s{sKM}, s{sKM}, 0x40000
    s_xor_b32 s{sM0K}, s{sM0K}, 0x2000
    s_add_u32 s{sFLo}, s{sFLc}, {128 * (2 & ((1 << LJ[0]) - 1))}
    s_mov_b32 s{sNeed}, 0
    s_lshl_b32 s{sW11}, s{S_W}, 11
    """)


def pre_step(A):
    for t in range(4):
        lds_frag_load(A, ('Q', 1, 2 * t), KX + 8 * t, ("sb", t))
    for r in range(AQ, AQ + 24, 2):
        A(f"v_mov_b64 {vr(r,2)}, 0")


GW = VB + 3
vM = [None, VB, VB + 1, VB + 4]


def hop_addr(A):
    A(f"v_add_u32 v{GW}, s{sW11}, v{vL16}")
    for j in range(1, 4):
        A(f"v_xor_b32 v{vM[j]}, {j << 11:#x}, v{GW}")


def emit(A, f):
    f() if callable(f) else A(f)


def weave(A, mf, fill, per=1, lead=0):
    fill = list(fill)
    for i, m in enumerate(mf):
        m()
        if i >= lead:
            for _ in range(per):
                if fill:
                    emit(A, fill.pop(0))
    for f in fill:
        emit(A, f)


def stamp(A, cfg, name):
    d = cfg.get('diag', ())
    if name in d:
        k = list(d).index(name)
        A(f"{'s_memrealtime' if cfg.get('abs') else 's_memtime'} s[{12+2*k}:{13+2*k}]")


def fold(x):
    return [f"v_add_f32 v{x}, v{x}, v{x+1}", f"v_add_f32 v{x+2}, v{x+2}, v{x+3}"]


def chain_loop(A, cfg, mode):
    st = " sc1" if mode == 'slow' else ""
    L = f"Lchain_{mode}"
    dA, dB, dB2 = cfg.get('dA', 0), cfg.get('dB', 24), cfg.get('dB2', 12)
    noside = cfg.get('noside', 0)
    A.c(f"===== chain loop ({mode}) =====")
    Lg = A.uid("Lhop")

    def isvalu(f):
        return isinstance(f, str) and f.startswith("v_")

    def gap(m, *items):
        m()
        its = [f for f in items if f is not None]
        for f in its:
            if not isvalu(f):
                emit(A, f)
        for f in its:
            if isvalu(f):
                A(f)

    def pop(lst):
        return lst.pop(0) if lst else None

    def ldsf(key, dst, tag):
        f = LDSF[key]
        return [lambda: A.ds(f"ds_read_b128 {vr(dst,4)}, v{vWL} offset:{f*2048}", tag),
                lambda: A.ds(f"ds_read_b128 {vr(dst+4,4)}, v{vWL} offset:{f*2048+1024}", tag)]

    def v_convert():
        ins = []
        for tau in range(2):
            x, b = AV + 4 * tau, VB + 8 * tau
            ins += fold(x) + [f"v_cvt_pk_bf16_f32 v{b+2}, v{x}, v{x+2}", f"v_cvt_pk_bf16_f32 v{b+3}, v{x}, v{x+2}"]
        return ins

    vL4 = TT + 2

    def v_publish(so):
        if cfg.get('nopub'):
            return []
        return [lambda: A.vmem(f"buffer_store_dword v{VB+2}, v{vL4}, {WS}, s{so} offen offset:2048 sc1", "vm"),
                lambda: A.vmem(f"buffer_store_dword v{VB+10}, v{vL4}, {WS}, s{so} offen offset:2304 sc1", "vm")]

    def pairfold(x):
        return fold(x) + fold(x + 4) + [f"v_cvt_pk_bf16_f32 v{x}, v{x}, v{x+4}", f"v_cvt_pk_bf16_f32 v{x+1}, v{x+2}, v{x+6}"]

    def qkv_phases(last):
        slowlab = A.uid("Lflagslow")

        def Q(i, tau):
            b = Reg('v', KX + 4 * i) if (tau and i % 2 == 0) else RFF[('Q', tau, i)]
            return (lambda: A("s_nop 0")) if last else (lambda: smf(A, AQ + 4 * tau, MF + 4 * i, b))

        def K(i, tau):
            b = Reg('v', KX + 4 * i) if (tau and i % 2 == 0) else RFF[('K', tau, i)]
            return lambda: smf(A, AK + 4 * tau, MF + 4 * i, b)
        mfr = [lambda i=i: A.ds(f"ds_read_b128 {vr(MF+4*i,4)}, v{vM[i//2]} offset:{L_MEM+(i&1)*1024}", ("mf", i)) for i in range(2, 8)]
        kl = {i: ldsf(('K', 1, i), KX + 4 * i, ("sb", i)) for i in (0, 2, 4, 6)}
        rst = [lambda b=b: A.vmem(f"buffer_store_dwordx4 {vr(TT,4)}, v{vPS}, {WS}, s{sPR+b} offen{st}", "rst") for b in range(2)]
        if last or cfg.get('rhop'):
            rst = [None, None]
        C0, C1 = TT + 3, TT + 1
        ops = {'r0': rst[0], 'r1': rst[1],
               'pg': lambda: A.vmem(f"buffer_store_dword v{TT}, v{vZ+1}, {WS}, s{sProg} offen sc1", "prog")}
        if not cfg.get('nopub'):
            ops['m0'] = lambda: A.vmem(f"buffer_store_dword v{C0}, v{vL4}, {WS}, s{sT+8} offen offset:2048 sc1", "vm")
            ops['m1'] = lambda: A.vmem(f"buffer_store_dword v{C1}, v{vL4}, {WS}, s{sT+8} offen offset:2304 sc1", "vm")
        if not last and not noside:
            ops.update({
                'v0': lambda: A.vmem(f"buffer_load_dwordx4 {vr(VB,4)}, v{vKX}, {WS}, s{sVXo} offen{cfg.get('fv','')}", "vx"),
                'v1': lambda: A.vmem(f"buffer_load_dwordx4 {vr(VB+8,4)}, v{vKX}, {WS}, s{sVXo} offen offset:256{cfg.get('fv','')}", "vx"),
                'k0': lambda: A.vmem(f"buffer_load_dwordx4 v{vL16}, {WS}, s{sKXo} offen{cfg.get('fk','')} lds", "kx"),
                'k1': lambda: A.vmem(f"buffer_load_dwordx4 v{vL16}, {WS}, s{sKXo} offen offset:1024{cfg.get('fk','')} lds", "kx"),
                'pa': f"v_lshlrev_b32 v{VB+5}, 1, v{vL16}",
                'pf': lambda: A.vmem(f"buffer_load_dword v{vFL}, v{VB+5}, {WS}, s{sPF} offen{cfg.get('fp','')}", "pf"),
                'fl': lambda: A.vmem(f"buffer_load_dword v{vFL}, v{vZ}, {WS}, s{sFLo} offen sc1", "fl")})
        plan = cfg.get('plan', {'g0': 'm0', 'g1': 'm1', 'g4': 'n0', 'g5': 'n1', 'g6': 'pv', 'g8': 'pg', 'q0': 's0', 'q1': 's1', 'q2': 's2', 'q3': 'v0',
                                'q4': 's3', 'q6': 'v1', 'q8': 'pa', 'q9': 'r0', 'k0': 'pf', 'k4': 'r1', 'k8': 'k0', 'k11': 'fl', 'w1': 'k1'})
        used = set()

        def X(name):
            o = plan.get(name)
            used.add(name)
            return ops.get(o)
        kmlate = not cfg.get('nopub')
        V = lambda i, tau: (lambda: smf(A, AV + 4 * tau, MF + 4 * i, RFF[('V', tau, i)]))
        if kmlate:
            ops['n0'] = lambda: (A.wl("kr"), A.vmem(f"buffer_store_dword v{TT}, v{vL4}, {WS}, s{sT+8} offen sc1", "km"))
            ops['n1'] = lambda: A.vmem(f"buffer_store_dword v{TT+1}, v{vL4}, {WS}, s{sT+8} offen offset:256 sc1", "km")
        C0, C1 = VB + 2, VB + 10
        ops['pv'] = f"v_mov_b32 v{TT+3}, s{sT+11}"
        ops['pg'] = lambda: A.vmem(f"buffer_store_dword v{TT+3}, v{vZ+1}, {WS}, s{sProg} offen sc1", "prog")
        if not last and not cfg.get('rhop'):
            for i in range(4):
                ops[f's{i}'] = f"v_mov_b32 v{TT+i}, {SENT_P:#x}"
        own = [Q(0, 1), Q(0, 0), Q(1, 0), Q(1, 1), K(1, 0), K(1, 1), V(0, 0), V(0, 1), V(1, 0), V(1, 1), K(0, 0), K(0, 1)]
        npre = cfg.get('npre0', 7)
        for g, m in enumerate(own):
            it = [X(f'g{g}')]
            if g == 0:
                it.insert(0, lambda: A.ds(f"ds_read2_b32 {vr(TT,2)}, v{vQW} offset0:64 offset1:200", "kr"))
            if g in (1, 2):
                it.insert(0, kl[0][g - 1])
            if g == 3 and not last:
                it.append(f"s_cmp_le_u32 s{sF0}, s{sNeed}\ns_cbranch_scc1 {slowlab}\n{slowlab}_ret:")
            if g == 4:
                it.append(f"s_mov_b32 m0, s{sM0K}")
            if g >= npre:
                it.insert(0, pop(mfr))
            if g == 10:
                it.append(lambda: A.wl(("sb", 0)))
            gap(m, *it)
            if g == npre - 1:
                if not last:
                    stamp(A, cfg, 'b0')
                A.wl("gw")
                A("s_barrier")
                if not last:
                    stamp(A, cfg, 'b1')
                pop(mfr)()
        A.wl(("mf", 2))
        if not last:
            stamp(A, cfg, 'mf')
        kxr, fill = [], []
        if not last:
            fill = pairfold(AQ)
            kxr = [lambda t=t, a=a: A.ds(f"ds_read_b128 {vr(KX+8*t+4*a,4)}, v{vKX} offset:{t*2048+a*256}", "kxf")
                   for t in range(4) for a in range(2)]
        ds = {0: pop(mfr), 1: pop(mfr), 2: kl[2][0], 3: kl[2][1], 4: pop(kxr), 5: pop(kxr), 6: kl[4][0], 7: kl[4][1], 10: kl[6][0], 11: kl[6][1]}
        wt = {1: ("mf", 4), 5: ("mf", 7)}
        for n in range(12):
            i, tau = 2 + n // 2, (n + 1) & 1 if (2 + n // 2) % 2 == 0 else n & 1
            it = [ds.get(n), X(f'q{n}')]
            if n in wt:
                it.append(lambda n=n: A.wl(wt[n]))
            if n == 11:
                it.append(lambda: A.wl(("sb", 2)))
            gap(Q(i, tau), *it)
        if not last:
            stamp(A, cfg, 'q')
        for n in range(12):
            i, tau = 2 + n // 2, (n + 1) & 1 if (2 + n // 2) % 2 == 0 else n & 1
            it = []
            if n >= 1:
                it.append(pop(fill))
            if n == 7 and not last:
                it.append(lambda: A.ds(f"ds_write2_b32 v{vQW}, v{AQ}, v{AQ+1} offset0:0 offset1:136", "qw"))
            elif n in (1, 2, 5, 6, 9, 10):
                it.append(pop(kxr))
            if n == 3:
                it.append(lambda: A.wl(("sb", 6)))
            it.append(X(f'k{n}'))
            gap(K(i, tau), *it)
        assert not kxr and not fill and not mfr
        if not last:
            stamp(A, cfg, 'k')
        mf = [lambda t=t, tau=tau: smf(A, AV + 4 * tau, MF + 4 * t, RFF[('V', tau, t)]) for t in range(2, 8) for tau in range(2)]
        pub = [lambda: A.vmem(f"buffer_store_dword v{AK}, v{vL4}, {WS}, s{sKM} offen sc1", "km"),
               lambda: A.vmem(f"buffer_store_dword v{AK+1}, v{vL4}, {WS}, s{sKM} offen offset:256 sc1", "km")]
        if cfg.get('nopub') or (kmlate and not last):
            pub = []
        return mf, pub, X, slowlab


    def house():
        A(f"""
        s_mov_b32 s{sT+6}, s{sRL}
        s_add_u32 s{sT+7}, s{sRL}, 0x1000
        s_mov_b32 s{sT+4}, s{sMO}
        s_mov_b32 s{sT+5}, s{sMRs}
        s_mov_b32 s{sT+3}, s{sG}
        s_mov_b32 s{sT+9}, 0
        s_mov_b32 s{sT+10}, 0
        s_mov_b32 s{sT+8}, s{sKM}
        s_mov_b32 s{sT+11}, s{sStep}
        """)

    def house2():
        return f"""
        s_add_u32 s{sStep}, s{sStep}, 1
        s_mov_b32 s{sPR}, s{sP}
        s_mov_b32 s{sPR+1}, s{sP+1}
        s_mov_b32 s{sMRs}, s{sMO}
        s_add_u32 s{sP}, s{sP}, 0x40000
        s_bitset0_b32 s{sP}, 20
        s_add_u32 s{sP+1}, s{sP}, s{sPb}
        s_add_u32 s{sRL}, s{sRL}, 0x40000
        s_bitset0_b32 s{sRL}, 20
        s_add_u32 s{sMO}, s{sMO}, 0x2000
        s_bitset0_b32 s{sMO}, 15
        s_add_u32 s{sG}, s{sG}, 0x2000
        s_bitset0_b32 s{sG}, 15
        s_add_u32 s{sKXo}, s{sKXo}, 0x40000
        s_add_u32 s{sVXb}, s{sVXb}, 0x40000
        s_and_b32 s{sT}, s{sM0K}, 0x2000
        s_sub_u32 s{sVXo}, s{sVXb}, s{sT}
        s_add_u32 s{sPF}, s{sPF}, 0x40000
        s_add_u32 s{sKM}, s{sKM}, 0x40000
        s_xor_b32 s{sM0K}, s{sM0K}, 0x2000
        s_add_u32 s{sT}, s{sStep}, 1
        s_lshr_b32 s{sNeed}, s{sT}, {LJ[0]}
        s_add_u32 s{sT}, s{sStep}, 2
        s_and_b32 s{sT}, s{sT}, {(1 << LJ[0]) - 1}
        s_lshl_b32 s{sT}, s{sT}, 7
        s_add_u32 s{sFLo}, s{sFLc}, s{sT}
        """.strip().split("\n")

    def rload(u, s0):
        A(f"buffer_load_dwordx4 {vr(MF+4*u,4)}, v{vL16}, {WS}, s{s0+u//4} offen offset:{(u%4)*1024} sc1")

    def rround():
        for u in range(8):
            rload(u, sT + 6)
    A(f"{L}:\ns_branch {Lg}_compute")
    A(f".p2align {cfg.get('al', 6)}")
    for _ in range(cfg.get('alo', 0)):
        A("s_nop 0")
    A.label(Lg)
    n0 = len(A.lines)
    MRS = f"v_mov_b32 v{TT+2}, -1\nv_mov_b32 v{TT+3}, -1\nbuffer_store_dwordx2 {vr(TT+2,2)}, v{vRS}, {WS}, s{sT+5} offen{st}"
    if cfg.get('mrlate', 1):
        A(MRS)
    house()
    pre_step(A)
    hop_addr(A)
    hk = A.lines[n0:]
    del A.lines[n0:]
    hs = max(2, min(len(hk), cfg.get('hsplit', len(hk))))
    A.lines += hk[:hs]
    A.nop(dA)
    stamp(A, cfg, 'r0')
    rround()
    stamp(A, cfg, 'ri')
    A.lines += hk[hs:]
    nr = cfg.get('nr', 4)
    if nr < 0:
        A(f"s_branch {Lg}_red1\n{Lg}_red:") if hk[hs:] or True else None
        rround()
        A.label(Lg + "_red1")
        for u in range(8):
            A(f"s_waitcnt vmcnt({7 - u})")
            A(f"v_mfma_f32_16x16x32_bf16 {vr(TT,4)}, {vr(vSEL,4)}, {vr(MF+4*u,4)}, {'0' if u==0 else vr(TT,4)}")
    else:
        A.label(Lg + "_red")
        for u in range(nr):
            rload(u, sT + 6)
        for u in range(8):
            A(f"s_waitcnt vmcnt({7 - u + min(8, nr + u)})")
            A(f"v_mfma_f32_16x16x32_bf16 {vr(TT,4)}, {vr(vSEL,4)}, {vr(MF+4*u,4)}, {'0' if u==0 else vr(TT,4)}")
            if nr + u < 8:
                rload(nr + u, sT + 6)
    stamp(A, cfg, 'rm')
    A(f"""
    s_add_u32 s{sT+9}, s{sT+9}, 1
    s_cmp_gt_u32 s{sT+9}, 64
    s_cbranch_scc1 {Lg}_nan
    s_nop 4
    v_cmp_u_f32 vcc, v{TT}, v{TT}
    v_cvt_pk_bf16_f32 v{TT}, v{TT}, v{TT+1}
    v_cvt_pk_bf16_f32 v{TT+1}, v{TT+2}, v{TT+3}
    s_cbranch_vccnz {Lg}_red
    {Lg}_ok:
    buffer_store_dwordx2 {vr(TT,2)}, v{vRS}, {WS}, s{sT+4} offen{st}
    """)
    stamp(A, cfg, 'r1')
    A(f"""
    {'' if cfg.get('mrlate', 1) else MRS}
    {Lg}_bar:
    s_waitcnt lgkmcnt(0)
    s_barrier
    """)
    stamp(A, cfg, 6)
    G = MF

    def ground():
        A(f"buffer_load_dwordx4 {vr(G,4)}, v{vL16}, {WS}, s{sT+3} offen sc1")
        A(f"buffer_load_dwordx4 {vr(G+4,4)}, v{vL16}, {WS}, s{sT+3} offen offset:1024 sc1")
    if True:
        mA, mB = 54, 52
        h2 = [l.strip() for l in house2()] + [f"s_mov_b64 s[{mA}:{mA+1}], -1", f"s_mov_b64 s[{mB}:{mB+1}], -1", f"v_lshrrev_b32 v{TT+2}, 2, v{vL16}"]
        depth = cfg.get('gdepth', 3)
        spw = cfg.get('spw', 0)
        W0 = f"ds_write_b128 v{GW}, {vr(G,4)} offset:{L_MEM}"
        W1 = f"ds_write_b128 v{GW}, {vr(G+4,4)} offset:{L_MEM+1024}"
        n1, n2 = cfg.get('h2a', 26), cfg.get('h2b', 4)
        A("\n".join(h2[:n1]))
        ground()
        A("\n".join(h2[n1:n1+n2]))
        if depth == 3:
            ground()
        A("\n".join(h2[n1+n2:]))
        A(f"""
        {Lg}_poll:
        s_mov_b64 exec, s[{mA}:{mA+1}]
        buffer_load_dwordx4 {vr(G,4)}, v{vL16}, {WS}, s{sT+3} offen sc1
        s_mov_b64 exec, s[{mB}:{mB+1}]
        buffer_load_dwordx4 {vr(G+4,4)}, v{vL16}, {WS}, s{sT+3} offen offset:1024 sc1
        s_mov_b64 exec, -1
        s_add_u32 s{sT+10}, s{sT+10}, 1
        s_cmp_gt_u32 s{sT+10}, 0x400000
        s_cbranch_scc1 L_end
        {Lg}_chk:
        s_waitcnt vmcnt({2*depth-1})
        v_max3_u32 v{TT}, v{G}, v{G+1}, v{G+2}
        v_max_u32 v{TT}, v{TT}, v{G+3}
        {W0 if spw else ''}
        s_waitcnt vmcnt({2*depth-2})
        v_max3_u32 v{TT+1}, v{G+4}, v{G+5}, v{G+6}
        v_max_u32 v{TT+1}, v{TT+1}, v{G+7}
        {W1 if spw else ''}
        v_cmp_eq_u32 s[{mA}:{mA+1}], -1, v{TT}
        v_cmp_eq_u32 s[{mB}:{mB+1}], -1, v{TT+1}
        s_or_b64 vcc, s[{mA}:{mA+1}], s[{mB}:{mB+1}]
        s_cbranch_scc1 {Lg}_poll
        {'' if spw else W0}
        {'' if spw else W1}
        """)
    A(f"""
    v_readfirstlane_b32 s{sF0}, v{vFL}
    """)
    stamp(A, cfg, 7)
    if cfg.get('diag'):
        A("s_waitcnt lgkmcnt(0)")
        for k in range(len(cfg['diag'])):
            A(f"v_writelane_b32 v{TT+3}, s{12+2*k}, {k}")
        A(f"v_writelane_b32 v{TT+3}, s{sT+9}, 30")
        A(f"v_writelane_b32 v{TT+3}, s{sT+10}, 31")
        A(f"""
        s_lshl_b32 s{sT}, s{sStep}, 7
        s_lshl_b32 s{sT+1}, s{S_ID}, 2
        s_add_u32 s{sT+1}, s{sT+1}, s{S_W}
        s_lshl_b32 s{sT+1}, s{sT+1}, 13
        s_add_u32 s{sT}, s{sT}, s{sT+1}
        s_add_u32 s{sT}, s{sT}, {DIAG - 128:#x}
        v_lshrrev_b32 v{TT}, 2, v{vL16}
        s_mov_b32 exec_hi, 0
        buffer_store_dword v{TT+3}, v{TT}, {WS}, s{sT} offen
        s_mov_b64 exec, -1
        """)
    A(f"""
    {Lg}_compute:
    s_cmp_eq_u32 s{sStep}, 63
    s_cbranch_scc1 {Lg}_last
    """)
    A.lg = ["gw", "gw"]
    A.vm = ["poll"] * 4
    stamp(A, cfg, 0)
    mf, pub, X, slowlab = qkv_phases(False)
    pop(mf)()
    pop(mf)()
    A("\n".join(pairfold(AK)))
    A.ds(f"ds_write2_b32 v{vQW}, v{AK}, v{AK+1} offset0:64 offset1:200", "kw")
    stamp(A, cfg, 'kw')
    nv1, nv2 = cfg.get('nv1', 5), cfg.get('nv2', 5)
    assert nv1 + nv2 == 10
    for i in range(nv1):
        gap(pop(mf), pop(pub), X(f'w{i}'), (lambda: A.wv('poll')) if i == 0 else None)
    stamp(A, cfg, 'v1')
    A.wl()
    A("s_barrier")
    stamp(A, cfg, 1)
    qr = [lambda u=u: A.ds(f"ds_read_b128 {vr(AQ+4*u,4)}, v{vTQ} offset:{u*64}", ("qf", u)) for u in range(4)]
    kr = [lambda u=u: A.ds(f"ds_read_b128 {vr(KX+4*u,4)}, v{vTK} offset:{u*64}", ("kf", u)) for u in range(4)]
    pop(qr)()
    pop(qr)()
    S0, S1, SM = MF, MF + 4, MF + 8
    O0, O1, SU = MF + 12, MF + 16, MF + 20
    zero = [f"v_mov_b64 {vr(r,2)}, 0" for r in range(O0, O0 + 8, 2)]
    for i in range(nv2):
        gap(pop(mf), pop(qr), X(f'x{i}'), pop(zero) if i >= 1 else None, (lambda: A.wl(("qf", 1))) if i == nv2 - 1 else None)
    assert not qr and not mf
    stamp(A, cfg, 'v2')

    def xs(u, a):
        c = "0" if u == 0 else vr(S0 + 4 * a, 4)
        return lambda: A(f"v_mfma_f32_16x16x32_bf16 {vr(S0+4*a,4)}, {vr(KX+8*u+4*a,4)}, {vr(AQ+4*u,4)}, {c}")

    def ms(u):
        c = "0" if u == 0 else vr(SM, 4)
        return lambda: A(f"v_mfma_f32_16x16x32_bf16 {vr(SM,4)}, {vr(KX+4*u,4)}, {vr(AQ+4*u,4)}, {c}")
    vc = []
    for tau in range(2):
        x = AV + 4 * tau
        vc += fold(x) + [f"v_cvt_pk_bf16_f32 v{x+1}, v{x}, v{x+2}", f"v_cvt_pk_bf16_f32 v{x}, v{x}, v{x+2}"]
    gap(xs(0, 0), pop(kr), pop(zero))
    gap(xs(0, 1), pop(kr), f"v_xor_b32 v{vKX}, 0x2000, v{vKX}")
    gap(xs(1, 0), pop(kr), pop(vc))
    gap(xs(1, 1), pop(kr), lambda: A.wl(("qf", 3)))
    gap(xs(2, 0), pop(vc), pop(vc))
    gap(xs(2, 1), pop(vc), pop(vc))
    gap(xs(3, 0), pop(vc), pop(vc))
    gap(xs(3, 1), lambda: A.wl(("kf", 3)), pop(vc))
    assert not zero and not vc
    stamp(A, cfg, 'sx')
    wl_ = ldsf(('O', 0, 0), KX + 16, "wo0") + ldsf(('O', 0, 1), KX + 24, "wo0")
    wl2 = ldsf(('O', 2, 0), KX, "wo2") + ldsf(('O', 2, 1), KX + 8, "wo2") + ldsf(('O', 4, 0), AK, "wo4")
    m_, t_ = TT, TT + 1
    OD = f"s[{sODD}:{sODD+1}]"
    gap(ms(0), pop(wl_))
    gap(ms(1), pop(wl_), f"v_max3_f32 v{m_}, v{S0}, v{S0+1}, v{S0+2}")
    gap(ms(2), pop(wl_), f"v_max3_f32 v{t_}, v{S0+3}, v{S1}, v{S1+1}")
    gap(ms(3), pop(wl_), f"v_max3_f32 v{m_}, v{m_}, v{S1+2}, v{S1+3}")
    stamp(A, cfg, 2)
    sm = f"""
    v_max_f32 v{m_}, v{m_}, v{t_}
    v_cndmask_b32 v{S0}, v{S0}, v{S0+2}, {OD}
    v_cndmask_b32 v{S0+1}, v{S0+1}, v{S0+3}, {OD}
    v_cndmask_b32 v{S1}, v{S1}, v{S1+2}, {OD}
    v_cndmask_b32 v{S1+1}, v{S1+1}, v{S1+3}, {OD}
    W
    v_max3_f32 v{m_}, v{m_}, v{SM}, v{SM+1}
    v_max3_f32 v{m_}, v{m_}, v{SM+2}, v{SM+3}
    v_mov_b32 v{t_}, v{m_}
    v_cndmask_b32 v{SM}, v{SM}, v{SM+2}, {OD}
    v_cndmask_b32 v{SM+1}, v{SM+1}, v{SM+3}, {OD}
    v_permlane32_swap_b32 v{m_}, v{t_}
    v_max_f32 v{m_}, v{m_}, v{t_}
    v_mov_b32 v{t_}, v{m_}
    W
    V
    v_permlane16_swap_b32 v{m_}, v{t_}
    v_max_f32 v{m_}, v{m_}, v{t_}
    v_mul_f32 v{m_}, s{sC}, v{m_}
    v_fma_f32 v{S0}, v{S0}, s{sC}, -v{m_}
    v_fma_f32 v{S0+1}, v{S0+1}, s{sC}, -v{m_}
    v_fma_f32 v{S1}, v{S1}, s{sC}, -v{m_}
    v_fma_f32 v{S1+1}, v{S1+1}, s{sC}, -v{m_}
    v_fma_f32 v{SM}, v{SM}, s{sC}, -v{m_}
    v_fma_f32 v{SM+1}, v{SM+1}, s{sC}, -v{m_}
    v_exp_f32 v{SM}, v{SM}
    v_exp_f32 v{SM+1}, v{SM+1}
    w
    v_exp_f32 v{S0}, v{S0}
    v_exp_f32 v{S0+1}, v{S0+1}
    w
    v_exp_f32 v{S1}, v{S1}
    v_exp_f32 v{S1+1}, v{S1+1}
    v_cvt_pk_bf16_f32 v{S0+2}, v{SM}, v{SM+1}
    v_cvt_pk_bf16_f32 v{TT}, v{S0}, v{S0+1}
    v_cvt_pk_bf16_f32 v{TT+2}, v{S1}, v{S1+1}
    v_cndmask_b32 v{TT+1}, 0, v{S0+2}, s[{sEVL}:{sEVL+1}]
    v_cndmask_b32 v{TT+3}, 0, v{S0+2}, s[{sODL}:{sODL+1}]
    v_mov_b64 {vr(VB+4,2)}, {vr(VB+2,2)}
    v_mov_b64 {vr(VB+2,2)}, {vr(AV,2)}
    """
    nW, nP, nO = cfg.get('nW', 0), cfg.get('nP', 2), cfg.get('nO', 0)
    for ln in sm.strip().split("\n"):
        ln = ln.strip()
        if ln == "W":
            if nW > 0:
                pop(wl2)()
                nW -= 1
            else:
                A("s_nop 0")
        elif ln == "w":
            if nW > 0:
                pop(wl2)()
                nW -= 1
        elif ln == "V":
            A.wv("vx")
            if not A.lines[-1].startswith("s_waitcnt"):
                A("s_nop 0")
        else:
            A(ln)
    P = TT
    stamp(A, cfg, 3)
    WA = MF
    A(f"v_mfma_f32_16x16x32_bf16 {vr(SU,4)}, {vr(P,4)}, {vr(vONE,4)}, 0")
    A(f"v_mov_b64 {vr(VB+12,2)}, {vr(VB+10,2)}\nv_mov_b64 {vr(VB+10,2)}, {vr(AV+4,2)}")
    gap(lambda: smf(A, O0, P, Reg('v', VB)), pop(wl2) if nP > 0 else None, f"v_mov_b64 {vr(WA,2)}, 0")
    gap(lambda: smf(A, O1, P, Reg('v', VB + 8)), pop(wl2) if nP > 1 else None)
    A("\n".join(fold(SU)))
    A(f"v_rcp_f32 v{SU}, v{SU}\nv_rcp_f32 v{SU+2}, v{SU+2}")
    A("\n".join(fold(O0)))
    A(f"v_mul_f32 v{O0}, v{O0}, v{SU}\nv_mul_f32 v{O0+2}, v{O0+2}, v{SU+2}")
    A("\n".join(fold(O1)))
    A(f"v_mul_f32 v{O1}, v{O1}, v{SU}\nv_mul_f32 v{O1+2}, v{O1+2}, v{SU+2}")
    A(f"v_cvt_pk_bf16_f32 v{TT}, v{O0}, v{O1}\nv_cvt_pk_bf16_f32 v{TT+1}, v{O0+2}, v{O1+2}")
    A.ds(f"ds_write2_b32 v{vOW}, v{TT}, v{TT+1} offset0:0 offset1:80", "ow")
    stamp(A, cfg, 'ow')
    nz = cfg.get('nz', 12)
    zw = [f"v_mov_b64 {vr(r,2)}, 0" for r in range(WA + 2, WA + 32, 2)]
    for _ in range(nz):
        A(pop(zw))
    for _ in range(nO):
        if wl2:
            pop(wl2)()
    A.wl("ow")
    A("s_barrier")
    stamp(A, cfg, 4)
    OA = AQ
    for t in range(2):
        A.ds(f"ds_read_b128 {vr(OA+4*t,4)}, v{vTO} offset:{t*128}", ("of", t))
    wol = wl2 + ldsf(('O', 4, 1), AV, "wo4") + ldsf(('O', 6, 0), KX + 16, "wo6") + ldsf(('O', 6, 1), KX + 24, "wo6")
    npre = cfg.get('npre', 2)
    for _ in range(npre):
        pop(wol)()
    for f in zw:
        A(f)
    loc = {('O', 0, 0): Reg('v', KX + 16), ('O', 0, 1): Reg('v', KX + 24), ('O', 2, 0): Reg('v', KX), ('O', 2, 1): Reg('v', KX + 8),
           ('O', 4, 0): Reg('v', AK), ('O', 4, 1): Reg('v', AV), ('O', 6, 0): Reg('v', KX + 16), ('O', 6, 1): Reg('v', KX + 24)}
    seq = [(j, t) for j in range(8) for t in range(2)]
    tails = []
    for j in range(8):
        x = WA + 4 * j
        d = WA + 16 * (j // 4) + (j % 4)
        it = fold(x) + [f"v_cvt_pk_bf16_f32 v{d}, v{x}, v{x+2}"]
        b = j // 4
        px2 = cfg.get('px2', 0)
        if (px2 == 1 or (px2 == 2 and b == 1)) and j % 2 == 1:
            hh = (j % 4) // 2
            it.append(lambda b=b, hh=hh: A.vmem(f"buffer_store_dwordx2 {vr(WA+16*b+2*hh,2)}, v{vPS}, {WS}, s{sP+b} offen offset:{8*hh}{st}", "ps"))
        elif j % 4 == 3:
            it.append(lambda b=b: A.vmem(f"buffer_store_dwordx4 {vr(WA+16*b,4)}, v{vPS}, {WS}, s{sP+b} offen{st}", "ps"))
        tails.append((2 * j + 3, it))
    pend = []
    A.wl(("of", 1))
    for i, (j, t) in enumerate(seq):
        key = ('O', j, t)
        while tails and tails[0][0] <= i:
            pend += tails.pop(0)[1]
        it = []
        if wol and (len(wol) > 4 or i >= 1):
            it.append(pop(wol))
        if i == 3:
            it.append(lambda: A.wl("wo2"))
        if i == 7:
            it.append(lambda: A.wl("wo4"))
        if i == 11:
            it.append(lambda: A.wl("wo6"))
        smf(A, WA + 4 * j, OA + 4 * t, loc.get(key) or RFF[key])
        for f in it:
            emit(A, f)
        n = 2 if (i & 1) else 1
        while pend and (n > 0 or not isvalu(pend[0])):
            f = pend.pop(0)
            emit(A, f)
            n -= 1
        stamp(A, cfg, f'w{i}')
    n = 2
    for f in pend:
        emit(A, f); n += 1
    A.nop(max(0, 8 - n))
    for f in tails.pop(0)[1]:
        emit(A, f)
    assert not tails
    stamp(A, cfg, 5)
    A(f"s_cmp_lg_u32 s{S_W}, 0\ns_cbranch_scc1 {Lg}_other\ns_branch {Lg}")
    A.label(Lg + "_last")
    if cfg.get('lite'):
        A(f"s_lshl_b32 s16, s{S_ID}, 2\ns_add_u32 s16, s16, s{S_W}\ns_lshl_b32 s16, s16, 8\ns_add_u32 s16, s16, 0x120000\nbuffer_store_dword v{VB+15}, v{TT+2}, {WS}, s16 offen")
    if cfg.get('tot'):
        A(f"""
        s_memtime s[16:17]
        s_memrealtime s[18:19]
        s_waitcnt lgkmcnt(0)
        s_sub_u32 s16, s16, s12
        s_sub_u32 s18, s18, s14
        v_mov_b32 v{TT}, s16
        v_mov_b32 v{TT+1}, s18
        s_lshl_b32 s16, s{S_ID}, 3
        s_add_u32 s16, s16, 0x11c000
        buffer_store_dwordx2 {vr(TT,2)}, v{vZ}, {WS}, s16 offen
        """)
        if cfg.get('dbgt'):
            A(f"""
            s_sub_u32 s14, s14, s100
            v_mov_b32 v{TT+3}, s14
            v_mov_b32 v{TT+2}, 36
            s_mov_b64 exec, 1
            global_atomic_umax v{TT+2}, v{TT+3}, s[{S_DBG}:{S_DBG+1}]
            global_atomic_umax v{TT+2}, v{TT+1}, s[{S_DBG}:{S_DBG+1}] offset:4
            global_atomic_umax v{TT+2}, v{TT}, s[{S_DBG}:{S_DBG+1}] offset:8
            s_mov_b64 exec, -1
            v_lshrrev_b32 v{TT+2}, 2, v{vL16}
            """)
    A.lg = ["gw", "gw"]
    A.vm = ["poll"] * 4
    mf, pub, side, _ = qkv_phases(True)
    A(f"v_lshrrev_b32 v{vL4}, 2, v{vL16}")
    weave(A, mf, pairfold(AK) + pub, per=1, lead=2)
    A.nop(8)
    A("\n".join(v_convert()))
    for f in v_publish(sKM):
        emit(A, f)
    A(f"""
    v_mov_b32 v{TT}, 64
    s_waitcnt vmcnt(0)
    s_barrier
    buffer_store_dword v{TT}, v{vZ+1}, {WS}, s{sProg} offen sc1
    s_waitcnt vmcnt(0)
    s_branch L_end
    """)
    A.label(Lg + "_other")
    house()
    pre_step(A)
    hop_addr(A)
    if cfg.get('lite'):
        A(f"s_memrealtime s[12:13]\ns_waitcnt lgkmcnt(0)\ns_sub_u32 s12, s12, s100\ns_and_b32 s12, s12, 0x3fff\ns_mov_b32 m0, s{sStep}\nv_writelane_b32 v{VB+15}, s12, m0")
    A(f"s_branch {Lg}_bar")
    A(f"""
    {slowlab}:
    s_add_u32 s{sT}, s{sStep}, 1
    s_and_b32 s{sT}, s{sT}, {(1 << LJ[0]) - 1}
    s_lshl_b32 s{sT}, s{sT}, 7
    s_add_u32 s{sT}, s{sT}, s{sFLc}
    {slowlab}_l:
    {GUARD}
    buffer_load_dword v{vFL}, v{vZ}, {WS}, s{sT} offen sc1
    s_waitcnt vmcnt(0)
    v_readfirstlane_b32 s{sF0}, v{vFL}
    s_cmp_le_u32 s{sF0}, s{sNeed}
    s_cbranch_scc1 {slowlab}_l
    s_branch {slowlab}_ret
    {Lg}_nan:
    {GUARD}
    s_mov_b32 s{sT+2}, {SENT_P:#x}
    s_mov_b64 s[{sT}:{sT+1}], 0
    s_waitcnt vmcnt(0)
    """)
    for i in range(32):
        A(f"v_cmp_eq_u32 vcc, s{sT+2}, v{MF+i}\ns_or_b64 s[{sT}:{sT+1}], s[{sT}:{sT+1}], vcc")
    A(f"""
    s_cmp_eq_u64 s[{sT}:{sT+1}], 0
    s_cbranch_scc1 {Lg}_acc
    """)
    rround()
    A(f"s_branch {Lg}_red\n{Lg}_acc:")
    for u in range(8):
        A(f"v_mfma_f32_16x16x32_bf16 {vr(TT,4)}, {vr(vSEL,4)}, {vr(MF+4*u,4)}, {'0' if u==0 else vr(TT,4)}")
    A(f"""
    s_nop 7
    v_cvt_pk_bf16_f32 v{TT}, v{TT}, v{TT+1}
    v_cvt_pk_bf16_f32 v{TT+1}, v{TT+2}, v{TT+3}
    v_min_u32 v{TT}, -2, v{TT}
    v_min_u32 v{TT+1}, -2, v{TT+1}
    s_branch {Lg}_ok
    """)


def chain(A, cfg):
    LJ[0] = cfg.get('lj', 2)
    chain_startup(A, cfg)
    A(f"s_mov_b32 s{sT+8}, s{sKM}\ns_mov_b32 s{sT+11}, 0\ns_mov_b32 s{sT+5}, {MRING:#x}")
    A(f"s_cmp_lt_u32 s{sT+7}, 32\ns_cbranch_scc1 Lchain_slow")
    if cfg.get('tot'):
        A("s_memtime s[12:13]\ns_memrealtime s[14:15]\ns_waitcnt lgkmcnt(0)")
    if cfg.get('forceslow'):
        A("s_branch Lchain_slow")
    chain_loop(A, cfg, 'fast')
    chain_loop(A, cfg, 'slow')
```

```python
from common import *
import math
from worker import wstamp, wait_ln, vSolo, vZero, vOne, vL16, WS

sT = 76
vLane = 1


def emit(A, f):
    f() if callable(f) else A(f)


def poll_all(A, uid, vaddr, soff, want, atleast=None, sleep=8):
    A(f"""
    s_cmp_lg_u32 s{S_W}, 0
    s_cbranch_scc1 {uid}_x
    {uid}:
    {GUARD}
    buffer_load_dword v112, v{vaddr}, {WS}, s{soff} offen sc1
    s_waitcnt vmcnt(0)
    {f'v_cmp_ne_u32 vcc, {want}, v112' if atleast is None else f'v_cmp_gt_u32 vcc, v{atleast}, v112'}
    s_cbranch_vccz {uid}_x
    s_sleep {sleep}
    s_branch {uid}
    {uid}_x:
    s_barrier
    """)


def lane_parts(A, t):
    A(f"""
    v_and_b32 v{t}, 15, v{vLane}
    v_lshrrev_b32 v{t+1}, 4, v{vLane}
    v_lshrrev_b32 v{t+2}, 2, v{t}
    v_and_b32 v{t+3}, 3, v{t}
    v_lshrrev_b32 v{t+4}, 5, v{vLane}
    v_and_b32 v{t+5}, 31, v{vLane}
    """)


def rnd_bf16(A, regs, tmp):
    for i in range(0, len(regs), 2):
        a, b = regs[i], regs[i + 1]
        A(f"v_cvt_pk_bf16_f32 v{tmp}, v{a}, v{b}\nv_lshlrev_b32 v{a}, 16, v{tmp}\nv_and_b32 v{b}, 0xffff0000, v{tmp}")


def p3(A, cfg):
    A.c("===== worker P3: U = gelu(h^T w1 + b1), 64x64 tile, K split over the waves =====")
    vH, vW, vTr = 4, 5, 6
    FB, ACC = 16, 48
    sHo, sWo, sM = 60, 61, 62
    wait_ln(A, "L_p3_h", off=128)
    lane_parts(A, 120)
    A(f"""
    v_lshrrev_b32 v112, 3, v{vLane}
    v_and_b32 v113, 7, v{vLane}
    v_and_b32 v114, 2, v112
    v_lshlrev_b32 v114, 1, v114
    v_xor_b32 v113, v113, v114
    v_lshlrev_b32 v113, 4, v113
    v_lshl_add_u32 v{vH}, v112, 10, v113
    v_mul_u32_u24 v{vW}, 3584, v112
    v_add_u32 v{vW}, v{vW}, v113
    v_lshl_add_u32 v112, v124, 3, v122
    v_lshlrev_b32 v112, 7, v112
    v_and_b32 v113, 2, v122
    v_lshl_add_u32 v112, v113, 5, v112
    v_and_b32 v113, 1, v121
    v_lshl_add_u32 v112, v113, 5, v112
    v_lshl_add_u32 v112, v123, 3, v112
    s_lshl_b32 s{sM}, s{S_W}, 15
    v_add_u32 v{vTr}, s{sM}, v112
    v_xor_b32 v{vTr+1}, 64, v{vTr}
    s_and_b32 s{sT}, s{S_ID}, 7                ; dt
    s_lshr_b32 s{sT+1}, s{S_ID}, 3             ; ft
    s_lshl_b32 s{sHo}, s{S_W}, 19
    s_lshl_b32 s{sT+2}, s{sT}, 7
    s_add_u32 s{sHo}, s{sHo}, s{sT+2}
    s_add_u32 s{sHo}, s{sHo}, {WS_H:#x}
    s_mul_i32 s{sWo}, s{S_W}, {512*3584}
    s_lshl_b32 s{sT+2}, s{sT+1}, 7
    s_add_u32 s{sWo}, s{sWo}, s{sT+2}
    """)

    def dma(c):
        out = []
        for part in range(2):
            for i in range(4):
                def f(part=part, i=i):
                    A(f"s_add_u32 m0, s{sM}, {(c&3)*8192 + part*4096 + i*1024:#x}")
                    if part == 0:
                        A(f"s_add_u32 s{sT+8}, s{sHo}, {(32*c+8*i)*1024:#x}")
                        A.vmem(f"buffer_load_dwordx4 v{vH}, {WS}, s{sT+8} offen lds", ("c", c))
                    else:
                        A(f"s_add_u32 s{sT+8}, s{sWo}, {(32*c+8*i)*3584:#x}")
                        A.vmem(f"buffer_load_dwordx4 v{vW}, s[{S_W1}:{S_W1+3}], s{sT+8} offen lds", ("c", c))
                out.append(f)
        return out

    def reads(n):
        c, kk = n // 2, n & 1
        out = []
        for part in (1, 0):
            for tl in range(2):
                for hh in range(2):
                    d = FB + 16 * (n & 1) + 8 * part + 4 * tl + 2 * hh
                    off = (c & 3) * 8192 + part * 4096 + kk * 2048 + hh * 512
                    out.append(lambda d=d, tl=tl, off=off: A.ds(f"ds_read_b64_tr_b16 {vr(d,2)}, v{vTr+tl} offset:{off}", ("f", n)))
        return out
    A.vm, A.lg = [], []
    for c in range(4):
        for f in dma(c):
            f()
    A(f"""
    s_lshr_b32 s{sT+3}, s{S_W}, 1              ; tf
    s_lshl_b32 s{sT+4}, s{sT+1}, 7
    s_lshl_b32 s{sT+5}, s{sT+3}, 6
    s_add_u32 s{sT+4}, s{sT+4}, s{sT+5}
    v_lshlrev_b32 v112, 3, v124
    """)
    for rho in range(4):
        A.vmem(f"buffer_load_dwordx2 {vr(128+2*rho,2)}, v112, s[{S_B1}:{S_B1+3}], s{sT+4} offen offset:{rho*16}", "b1")
    A.wv(("c", 0))
    for f in reads(0):
        f()
    for n in range(32):
        c, kk = n // 2, n & 1
        rd, dm = [], []
        if n + 1 < 32:
            if kk == 1:
                A.wv(("c", c + 1))
            rd = reads(n + 1)
        A.wl(("f", n))
        if kk == 0 and c >= 1 and c + 3 < 16:
            dm = dma(c + 3)
        b = FB + 16 * (n & 1)
        for tf in range(2):
            for td in range(2):
                acc = ACC + 16 * (2 * tf + td)
                A(f"v_mfma_f32_32x32x16_bf16 {vr(acc,16)}, {vr(b+8+4*tf,4)}, {vr(b+4*td,4)}, {'0' if n == 0 else vr(acc,16)}")
                for _ in range(2):
                    if rd:
                        rd.pop(0)()
                for _ in range(2):
                    if dm:
                        dm.pop(0)()
    A.nop(12)
    A(f"v_add_u32 v112, s{sM}, v{vL16}")
    for tl in range(4):
        for q in range(4):
            A(f"ds_write_b128 v112, {vr(ACC+16*tl+4*q,4)} offset:{tl*4096+q*1024}")
    A(f"""
    s_lshl_b32 s{sT+5}, s{S_W}, 12
    v_add_u32 v112, s{sT+5}, v{vL16}
    v_add_u32 v113, 0x10000, v112
    s_waitcnt lgkmcnt(0)
    s_barrier
    """)
    for wv in range(4):
        for q in range(4):
            A(f"ds_read_b128 {vr(ACC+16*wv+4*q,4)}, v{112 + wv//2} offset:{(wv&1)*32768+q*1024}")
    A("s_waitcnt vmcnt(0) lgkmcnt(0)")
    X = ACC
    for r in range(16):
        A(f"v_add_f32 v{X+r}, v{X+r}, v{X+16+r}\nv_add_f32 v{X+32+r}, v{X+32+r}, v{X+48+r}")
    for r in range(16):
        A(f"v_add_f32 v{X+r}, v{X+r}, v{X+32+r}")
    rnd_bf16(A, [X + r for r in range(16)], 112)
    for r in range(16):
        src = 128 + r // 2
        A(f"v_lshlrev_b32 v112, 16, v{src}" if r % 2 == 0 else f"v_and_b32 v112, 0xffff0000, v{src}")
        A(f"v_add_f32 v{X+r}, v{X+r}, v112")
    rnd_bf16(A, [X + r for r in range(16)], 112)
    k2 = -2.0 * math.sqrt(2.0 / math.pi) * math.log2(math.e)
    A(f"s_mov_b32 s{sT+6}, {f32bits(k2):#x}\ns_mov_b32 s{sT+7}, {f32bits(k2*0.044715):#x}\nv_mov_b32 v113, s{sT+6}")
    for r in range(16):
        t = X + 16 + r
        A(f"v_mul_f32 v{t}, v{X+r}, v{X+r}\nv_fma_f32 v{t}, v{t}, s{sT+7}, v113\nv_mul_f32 v{t}, v{t}, v{X+r}")
    for r in range(16):
        A(f"v_exp_f32 v{X+16+r}, v{X+16+r}")
    for r in range(16):
        A(f"v_add_f32 v{X+16+r}, 1.0, v{X+16+r}")
    for r in range(16):
        A(f"v_rcp_f32 v{X+16+r}, v{X+16+r}")
    for r in range(16):
        A(f"v_mul_f32 v{X+r}, v{X+r}, v{X+16+r}")
    for i in range(8):
        A(f"v_cvt_pk_bf16_f32 v{X+32+i}, v{X+2*i}, v{X+2*i+1}")
    A(f"""
    s_lshl1_add_u32 s{sT+4}, s{sT+1}, s{sT+3}
    s_lshl_b32 s{sT+4}, s{sT+4}, 15
    s_and_b32 s{sT+5}, s{S_W}, 1
    s_lshl1_add_u32 s{sT+5}, s{sT}, s{sT+5}
    s_lshl_b32 s{sT+5}, s{sT+5}, 10
    s_add_u32 s{sT+4}, s{sT+4}, s{sT+5}
    s_add_u32 s{sT+4}, s{sT+4}, {WS_U:#x}
    s_add_u32 s{sT+5}, s{sT+4}, 0x4000
    buffer_store_dwordx4 {vr(X+32,4)}, v{vL16}, {WS}, s{sT+4} offen sc1
    buffer_store_dwordx4 {vr(X+36,4)}, v{vL16}, {WS}, s{sT+5} offen sc1
    s_lshl_b32 s{sT+4}, s{S_ID}, 2
    s_add_u32 s{sT+4}, s{sT+4}, {F_U:#x}
    s_waitcnt vmcnt(0)
    s_barrier
    buffer_store_dword v{vOne}, v{vSolo}, {WS}, s{sT+4} offen sc1
    """)
    A.vm, A.lg = [], []


def tr256_addr(A, dst, rowsh, base_s, t=120):
    A(f"""
    v_lshl_add_u32 v112, v{t+4}, {rowsh}, v{t+2}
    v_lshlrev_b32 v112, 8, v112
    v_lshl_add_u32 v112, v{t+2}, 6, v112
    v_and_b32 v113, 1, v{t+1}
    v_lshl_add_u32 v112, v113, 5, v112
    v_lshl_add_u32 v112, v{t+3}, 3, v112
    v_add_u32 v{dst}, s{base_s}, v112
    v_xor_b32 v{dst+1}, 64, v{dst}
    v_xor_b32 v{dst+2}, 128, v{dst}
    v_xor_b32 v{dst+3}, 192, v{dst}
    """)


def dma256_addr(A, dst, rowshift, t=120):
    A(f"""
    v_lshlrev_b32 v112, 2, v{t+1}
    v_xor_b32 v112, v{t}, v112
    v_lshlrev_b32 v112, 4, v112
    v_lshl_add_u32 v{dst}, v{t+1}, {rowshift}, v112
    """)


def p4(A, cfg):
    A.c("===== worker P4: base = x + (U w2 + b2)^T, 128x64 tile, K split over the waves =====")
    vW, vTr = 4, 12
    FB, UF, ACC = 16, 48, 128
    sG, sWo, sUo, sM = 60, 61, 62, 63
    A(f"""
    s_lshl_b32 s{sT}, s{S_ID}, 2
    s_mul_i32 s{sG}, s{sT}, 9363
    s_lshr_b32 s{sG}, s{sG}, 16                ; g = 4*rank/7
    s_mul_i32 s{sT+1}, s{sG}, 7
    s_sub_u32 s{sT}, s{sT}, s{sT+1}
    s_cmp_ge_u32 s{sT}, 4
    s_cbranch_scc1 L_p4_done
    s_lshr_b32 s{sT+10}, s{sG}, 3              ; sb
    s_and_b32 s{sT+11}, s{sG}, 7               ; db
    s_lshl_b32 s{sM}, s{S_W}, 15
    s_mul_i32 s{sWo}, s{S_W}, {448*4096}
    s_lshl_b32 s{sT}, s{sT+10}, 8
    s_add_u32 s{sWo}, s{sWo}, s{sT}
    s_mul_i32 s{sUo}, s{S_W}, {28*16384}
    s_lshl_b32 s{sT}, s{sT+11}, 11
    s_add_u32 s{sUo}, s{sUo}, s{sT}
    s_add_u32 s{sUo}, s{sUo}, {WS_U:#x}
    """)
    dma256_addr(A, vW, 12)
    tr256_addr(A, vTr, 2, sM)

    def dma(c):
        out = []
        for i in range(8):
            def f(i=i):
                A(f"s_add_u32 m0, s{sM}, {(c&3)*8192 + i*1024:#x}")
                A(f"s_add_u32 s{sT+8}, s{sWo}, {(32*c+4*i)*4096:#x}")
                A.vmem(f"buffer_load_dwordx4 v{vW}, s[{S_W2}:{S_W2+3}], s{sT+8} offen lds", ("c", c))
            out.append(f)
        return out

    def uload(c):
        out = []
        for kk in range(2):
            n = 2 * c + kk
            def f(n=n):
                A(f"s_add_u32 s{sT+8}, s{sUo}, {n*16384:#x}")
                for td in range(2):
                    A.vmem(f"buffer_load_dwordx4 {vr(UF+8*(n&7)+4*td,4)}, v{vL16}, {WS}, s{sT+8} offen offset:{td*1024}", ("c", c))
            out.append(f)
        return out

    def reads(n):
        c, kk = n // 2, n & 1
        out = []
        for ts in range(4):
            for hh in range(2):
                d = FB + 16 * (n & 1) + 4 * ts + 2 * hh
                off = (c & 3) * 8192 + kk * 4096 + hh * 2048
                out.append(lambda d=d, ts=ts, off=off: A.ds(f"ds_read_b64_tr_b16 {vr(d,2)}, v{vTr+ts} offset:{off}", ("f", n)))
        return out
    A.vm, A.lg = [], []
    for c in range(4):
        for f in dma(c):
            f()
    A(f"""
    v_min_u32 v113, 27, v{vLane}
    v_lshlrev_b32 v113, 5, v113
    s_lshl_b32 s{sT}, s{sT+11}, 2
    s_add_u32 s{sT}, s{sT}, {F_U:#x}
    """)
    poll_all(A, "L_p4_u", 113, sT, 1)
    A.vm = [("c", c) for c in range(4) for _ in range(8)]
    for c in range(4):
        for f in uload(c):
            f()
    A(f"""
    s_lshl_b32 s{sT}, s{sT+10}, 2
    s_add_u32 s{sT+9}, s{sT}, s{S_W}           ; stile
    s_lshl_b32 s{sT}, s{sT+9}, 15
    s_lshl_b32 s{sT+1}, s{sT+11}, 7
    s_add_u32 s{sT}, s{sT}, s{sT+1}
    v_lshlrev_b32 v112, 10, v125
    v_lshl_add_u32 v112, v124, 3, v112
    s_lshl_b32 s{sT+1}, s{sT+9}, 6
    v_lshlrev_b32 v113, 1, v125
    """)
    for td in range(2):
        for rho in range(4):
            A.vmem(f"buffer_load_dwordx2 {ar(8*td+2*rho,2)}, v112, s[{S_X}:{S_X+3}], s{sT} offen offset:{td*64+rho*16}", "x")
    A.vmem(f"buffer_load_ushort v5, v113, s[{S_B2}:{S_B2+3}], s{sT+1} offen", "x")
    A.wv(("c", 0))
    for f in reads(0):
        f()
    for n in range(28):
        c, kk = n // 2, n & 1
        rd, dm = [], []
        if n + 1 < 28:
            if kk == 1:
                A.wv(("c", c + 1))
            rd = reads(n + 1)
        A.wl(("f", n))
        if kk == 0 and c >= 1 and c + 3 < 14:
            dm = dma(c + 3) + uload(c + 3)
        b = FB + 16 * (n & 1)
        for ts in range(4):
            for td in range(2):
                acc = ACC + 16 * (2 * ts + td)
                A(f"v_mfma_f32_32x32x16_bf16 {vr(acc,16)}, {vr(UF+8*(n&7)+4*td,4)}, {vr(b+4*ts,4)}, {'0' if n == 0 else vr(acc,16)}")
                if rd:
                    rd.pop(0)()
                if dm and not (ts == 0 and td == 0):
                    dm.pop(0)()
                    if len(dm) > 6 - 2 * ts - td:
                        dm.pop(0)()
    A.nop(12)
    A(f"v_add_u32 v112, s{sM}, v{vL16}")
    for tl in range(8):
        for q in range(4):
            A(f"ds_write_b128 v112, {vr(ACC+16*tl+4*q,4)} offset:{tl*4096+q*1024}")
    A(f"""
    s_lshl_b32 s{sT+5}, s{S_W}, 13
    v_add_u32 v112, s{sT+5}, v{vL16}
    v_add_u32 v113, 0x10000, v112
    s_waitcnt lgkmcnt(0)
    s_barrier
    """)
    for wv in range(4):
        for q in range(8):
            A(f"ds_read_b128 {vr(ACC+32*wv+4*q,4)}, v{112 + wv//2} offset:{(wv&1)*32768+q*1024}")
    A("s_waitcnt vmcnt(0) lgkmcnt(0)")
    X = ACC
    for r in range(32):
        A(f"v_add_f32 v{X+r}, v{X+r}, v{X+32+r}\nv_add_f32 v{X+64+r}, v{X+64+r}, v{X+96+r}")
    for r in range(32):
        A(f"v_add_f32 v{X+r}, v{X+r}, v{X+64+r}")
    rnd_bf16(A, [X + r for r in range(32)], 112)
    A("v_lshlrev_b32 v5, 16, v5")
    for r in range(32):
        A(f"v_add_f32 v{X+r}, v{X+r}, v5")
    rnd_bf16(A, [X + r for r in range(32)], 112)
    for i in range(16):
        A(f"""
        v_accvgpr_read_b32 v112, a{i}
        v_lshlrev_b32 v113, 16, v112
        v_and_b32 v112, 0xffff0000, v112
        v_add_f32 v{X+2*i}, v{X+2*i}, v113
        v_add_f32 v{X+2*i+1}, v{X+2*i+1}, v112
        """)
    A(f"""
    s_lshl_b32 s{sT}, s{sT+9}, 16
    s_lshl_b32 s{sT+1}, s{sT+11}, 13
    s_add_u32 s{sT}, s{sT}, s{sT+1}
    s_add_u32 s{sT}, s{sT}, {WS_BASE:#x}
    s_add_u32 s{sT+1}, s{sT}, 0x1000
    """)
    for td in range(2):
        for rho in range(4):
            A(f"buffer_store_dwordx4 {vr(X+16*td+4*rho,4)}, v{vL16}, {WS}, s{sT+td} offen offset:{rho*1024} sc1")
    A(f"""
    s_lshl_b32 s{sT+4}, s{sG}, 2
    s_add_u32 s{sT+4}, s{sT+4}, {F_BASE:#x}
    s_waitcnt vmcnt(0)
    s_barrier
    buffer_store_dword v{vOne}, v{vSolo}, {WS}, s{sT+4} offen sc1
    L_p4_done:
    """)
    A.vm, A.lg = [], []


def p5(A, cfg):
    A.c("===== worker P5: attention of the segment tokens, output projection, head reduction =====")
    sH, sSeg, sM, sPrev, sQo, sSl, sPo, sBuf, sProg, sW10, sSlP = 60, 61, 62, 63, 64, 65, 66, 67, 68, 69, 70
    sMask = 12
    vRd, vKm, vVx, vVm, vPs, vRl, vBs, vOut, vTeam, vCnt = 4, 5, 6, 7, 10, 12, 13, 14, 15, 2
    vSel = 16
    QF, KF, S, SM, P, PM, VF, O, OA, ACC = 20, 52, 84, 100, 116, 124, 128, 144, 208, 144
    NEG = f32bits(-1e9 / (128 ** -0.5))
    A(f"""
    s_and_b32 s{sH}, s{S_ID}, 31               ; head
    s_lshr_b32 s{sSeg}, s{S_ID}, 5
    s_lshl_b32 s{sM}, s{S_W}, 15
    s_lshl_b32 s{sW10}, s{S_W}, 10
    s_lshl_b32 s{sProg}, s{sH}, 7
    s_add_u32 s{sProg}, s{sProg}, {F_PROG:#x}
    s_barrier
    """)
    dma256_addr(A, 4, 10)
    tr256_addr(A, 12, 2, sM)
    A(f"s_lshl_b32 s{sT}, s{sH}, 17\ns_lshl_b32 s{sT+1}, s{S_W}, 8\ns_add_u32 s{sT}, s{sT}, s{sT+1}")
    for i in range(32):
        A(f"s_add_u32 m0, s{sM}, {i*1024:#x}\ns_add_u32 s{sT+8}, s{sT}, {i*4096:#x}")
        A(f"buffer_load_dwordx4 v4, s[{S_WO}:{S_WO+3}], s{sT+8} offen lds")
    A(f"""
    v_and_b32 v113, {(1 << cfg.get('lj', 2)) - 1}, v{vLane}
    v_lshlrev_b32 v113, 7, v113
    s_lshr_b32 s{sT+1}, s{sH}, 1
    s_add_u32 s{sT+1}, s{sT+1}, 32
    s_sub_u32 s{sT+1}, s{sT+1}, s{sH}
    s_lshl_b32 s{sT+1}, s{sT+1}, 9
    v_and_b32 v114, 4, v{vLane}
    v_cmp_ne_u32 vcc, 0, v114
    v_mov_b32 v114, s{sT+1}
    s_nop 0
    v_cndmask_b32 v114, 0, v114, vcc
    v_add_u32 v113, v113, v114
    s_lshl_b32 s{sT+1}, s{sH}, 9
    s_add_u32 s{sT+1}, s{sT+1}, {F_P2:#x}
    """)
    poll_all(A, "L_p5_p2", 113, sT + 1, 64 >> cfg.get('lj', 2))
    A("s_waitcnt vmcnt(0)")
    for dt in range(4):
        for kap in range(8):
            for hh in range(2):
                A(f"ds_read_b64_tr_b16 {ar((dt*8+kap)*4+2*hh,2)}, v{12+dt} offset:{kap*4096+hh*2048}")
        A("s_waitcnt lgkmcnt(0)")
    n_, g_, r_, c_, hf_, el_ = 120, 121, 122, 123, 124, 125
    A(f"""
    s_barrier
    v_mov_b32 v{vRd}, v{vL16}
    v_and_b32 v112, 1, v{vLane}
    v_lshlrev_b32 v112, 8, v112
    v_bfe_u32 v113, v{vLane}, 1, 2
    v_lshl_add_u32 v112, v113, 6, v112
    v_lshl_add_u32 v112, v{hf_}, 4, v112
    v_add_u32 v{vKm}, 24576, v112
    v_lshlrev_b32 v112, 10, v{hf_}
    v_lshl_add_u32 v112, v{el_}, 4, v112
    v_add_u32 v{vVx}, 16384, v112
    v_and_b32 v112, 1, v{g_}
    v_lshlrev_b32 v112, 8, v112
    v_lshl_add_u32 v112, v{hf_}, 7, v112
    v_lshl_add_u32 v112, v{n_}, 2, v112
    v_add_u32 v{vVm}, {24576+2048}, v112
    v_lshlrev_b32 v112, 18, v{hf_}
    v_lshl_add_u32 v{vPs}, v{el_}, 4, v112
    v_lshlrev_b32 v112, 10, v{g_}
    v_lshl_add_u32 v112, v{n_}, 4, v112
    s_lshl_b32 s{sT}, s{S_W}, 8
    v_add_u32 v{vRl}, s{sT}, v112
    s_lshr_b32 s{sT}, s{sH}, 4
    s_lshl_b32 s{sT}, s{sT}, 4
    s_lshr_b32 s{sT+1}, s{sH}, 1
    s_and_b32 s{sT+1}, s{sT+1}, 4
    s_add_u32 s{sT}, s{sT}, s{sT+1}
    v_and_b32 v112, 1, v{r_}
    v_lshl_add_u32 v112, v112, 3, v{c_}
    v_add_u32 v112, s{sT}, v112                ; token
    s_and_b32 s{sT+2}, s{sH}, 7                ; q
    s_lshr_b32 s{sT}, s{S_W}, 1
    s_lshl1_add_u32 s{sT}, s{sT+2}, s{sT}
    s_lshl_b32 s{sT}, s{sT}, 12
    s_and_b32 s{sT+1}, s{S_W}, 1
    s_lshl_b32 s{sT+1}, s{sT+1}, 11
    s_add_u32 s{sT}, s{sT}, s{sT+1}
    v_lshlrev_b32 v113, 9, v{g_}
    v_lshl_add_u32 v113, v112, 4, v113
    v_add_u32 v{vBs}, s{sT}, v113
    s_lshl_b32 s{sT}, s{sT+2}, 7
    s_lshl_b32 s{sT+1}, s{S_W}, 5
    s_add_u32 s{sT}, s{sT}, s{sT+1}
    v_lshlrev_b32 v113, 10, v112
    v_lshl_add_u32 v113, v{g_}, 3, v113
    v_add_u32 v113, s{sT}, v113
    v_bfrev_b32 v114, 1
    v_cmp_lt_u32 vcc, 7, v{n_}
    s_nop 1
    v_cndmask_b32 v{vOut}, v113, v114, vcc
    v_and_b32 v112, 7, v{n_}
    v_lshrrev_b32 v113, 1, v112
    v_and_b32 v112, 1, v112
    v_mov_b32 v114, 0x3f80
    v_mov_b32 v115, 0x3f800000
    v_cmp_eq_u32 vcc, 1, v112
    s_nop 1
    v_cndmask_b32 v114, v114, v115, vcc
    """)
    for d in range(4):
        A(f"v_cmp_eq_u32 vcc, {d}, v113\ns_nop 1\nv_cndmask_b32 v{vSel+d}, 0, v114, vcc")
    A(f"v_lshlrev_b32 v112, 2, v{hf_}\nv_sub_u32 v112, v{el_}, v112")
    for r in range(16):
        A(f"v_cmp_le_i32 s[{sMask+2*r}:{sMask+2*r+1}], {8*(r>>2)+(r&3)}, v112")
    A(f"""
    v_lshlrev_b32 v{vTeam}, 6, v{vLane}
    s_lshl_b32 s{sT}, s{sSeg}, 11
    s_add_u32 s{sT}, s{sT}, {F_PART:#x}
    v_add_u32 v{vTeam}, s{sT}, v{vTeam}
    v_mov_b32 v{vCnt}, 0
    v_mov_b32 v{PM+2}, 0
    v_mov_b32 v{PM+3}, 0
    s_mov_b32 s{sPrev}, -1
    s_lshl_b32 s{sSl}, s{sSeg}, 20
        s_mov_b32 s{sBuf}, 0
    s_lshl_b32 s{sT}, s{sSeg}, 18
    s_lshl_b32 s{sT+1}, s{sH}, 13
    s_add_u32 s{sQo}, s{sT}, s{sT+1}
    s_add_u32 s{sQo}, s{sQo}, s{sW10}
    """)

    def qkv_dma(buf_s, src_s):
        for k, img in enumerate((WS_QX, WS_KX, WS_VX)):
            for i in range(2):
                A(f"s_add_u32 m0, s{buf_s}, {k*8192 + i*4096:#x}\ns_add_u32 s{sT+8}, s{src_s}, {img + i*4096:#x}")
                A(f"buffer_load_dwordx4 v{vL16}, {WS}, s{sT+8} offen lds")
    qkv_dma(sW10, sQo)

    def reduce_prev(uid):
        A(f"""
        s_lshr_b32 s{sT+1}, s{sPrev}, 2
        s_lshl_b32 s{sT+1}, s{sT+1}, 3
        s_and_b32 s{sT+2}, s{sH}, 7
        s_add_u32 s{sT+1}, s{sT+1}, s{sT+2}
        s_lshl_b32 s{sT+1}, s{sT+1}, 2
        s_add_u32 s{sT+1}, s{sT+1}, {F_BASE:#x}
        v_mov_b32 v114, s{sT+1}
        v_cmp_lt_u32 vcc, 31*16, v{vL16}
        s_mov_b32 s{sT+2}, 0
        s_nop 0
        v_cndmask_b32 v113, v{vTeam}, v114, vcc
        v_cndmask_b32 v114, v{vCnt}, v{vOne}, vcc
        """)
        poll_all(A, uid, 113, sT + 2, None, atleast=114, sleep=2)
        wstamp(A, cfg, 29, vtmp=244)
        A(f"""
        s_lshl_b32 s{sT+1}, s{sH}, 15
        s_add_u32 s{sT}, s{sSlP}, s{sT+1}
        s_add_u32 s{sT}, s{sT}, {WS_PART:#x}
        """)
        for u in range(8):
            A(f"buffer_load_dwordx4 {vr(QF+4*u,4)}, v{vRl}, {WS}, s{sT} offen sc1\ns_add_u32 s{sT}, s{sT}, 0x1000")
        A(f"""
        s_lshl_b32 s{sT}, s{sPrev}, 16
        s_add_u32 s{sT}, s{sT}, {WS_BASE:#x}
        buffer_load_dwordx4 {vr(KF,4)}, v{vBs}, {WS}, s{sT} offen sc1
        s_lshl_b32 s{sT}, s{sPrev}, 15
        """)
        for u in range(8):
            A(f"s_waitcnt vmcnt({8-u})")
            A(f"v_mfma_f32_16x16x32_bf16 {vr(KF+4,4)}, {vr(QF+4*u,4)}, {vr(vSel,4)}, {'0' if u == 0 else vr(KF+4,4)}")
        A("s_waitcnt vmcnt(0)\ns_nop 7")
        for r in range(4):
            A(f"v_add_f32 v{KF+r}, v{KF+r}, v{KF+4+r}")
        A(f"""
        v_cvt_pk_bf16_f32 v{KF}, v{KF}, v{KF+1}
        v_cvt_pk_bf16_f32 v{KF+1}, v{KF+2}, v{KF+3}
        buffer_store_dwordx2 {vr(KF,2)}, v{vOut}, s[{S_OUT}:{S_OUT+3}], s{sT} offen
        """)

    A(f"""
    L_p5_loop:
    s_cmp_eq_u32 s{sPrev}, -1
    s_cbranch_scc1 L_p5_nored
    """)
    reduce_prev("L_p5_r1")
    A(f"""
    L_p5_nored:
    s_waitcnt vmcnt(0)
    s_barrier
    """)
    for k in range(8):
        A(f"ds_read_b128 {vr(QF+4*k,4)}, v{vRd} offset:{k*1024}")
        A(f"ds_read_b128 {vr(KF+4*k,4)}, v{vRd} offset:{8192+k*1024}")
    for k in range(8):
        A(f"s_waitcnt lgkmcnt({min(15, 14-2*k)})")
        A(f"v_mfma_f32_32x32x16_bf16 {vr(S,16)}, {vr(KF+4*k,4)}, {vr(QF+4*k,4)}, {'0' if k == 0 else vr(S,16)}")
    PL = (f"v_mov_b32 v112, 0\nbuffer_atomic_or v112, v{vSolo}, {WS}, s{sProg} offen sc0" if cfg.get('apoll') else
          f"buffer_load_dword v112, v{vZero}, {WS}, s{sProg} offen sc1{cfg.get('pfl', '')}")
    A(f"""
    s_cmp_lg_u32 s{S_W}, 0
    s_cbranch_scc1 L_p5_pgx
    L_p5_pg:
    {GUARD}
    {PL}
    s_waitcnt vmcnt(0)
    v_readfirstlane_b32 s{sT}, v112
    s_cmp_gt_u32 s{sT}, s{sSeg}
    s_cbranch_scc1 L_p5_pgx
    s_sub_u32 s{sT}, s{sSeg}, s{sT}
    s_cmp_eq_u32 s{sT}, 0
    s_cbranch_scc1 L_p5_near
    L_p5_far:
    s_sleep {cfg.get('farslp', 40)}
    s_sub_u32 s{sT}, s{sT}, 1
    s_cmp_lg_u32 s{sT}, 0
    s_cbranch_scc1 L_p5_far
    L_p5_near:
    s_sleep {cfg.get('nearslp', 4)}
    s_branch L_p5_pg
    L_p5_pgx:
    s_barrier
    """)
    wstamp(A, cfg, 25, vtmp=244)
    A(f"""
    s_add_u32 s{sT}, s{sBuf}, s{sW10}
    s_add_u32 m0, s{sT}, 24576
    s_add_u32 s{sT+8}, s{sQo}, {WS_KVM:#x}
    buffer_load_dwordx4 v{vL16}, {WS}, s{sT+8} offen sc1 lds
    v_mov_b32 v243, {NEG:#x}
    s_nop 3
    """)
    for r in range(16):
        A(f"v_cndmask_b32 v{S+r}, v243, v{S+r}, s[{sMask+2*r}:{sMask+2*r+1}]")
    m_, t_ = 240, 241
    A(f"v_max3_f32 v{m_}, v{S}, v{S+1}, v{S+2}")
    for r in range(3, 15, 2):
        A(f"v_max3_f32 v{m_}, v{m_}, v{S+r}, v{S+r+1}")
    A(f"v_max_f32 v{m_}, v{m_}, v{S+15}")
    A("s_waitcnt vmcnt(0)\ns_barrier")
    wstamp(A, cfg, 26, vtmp=244)
    for k in range(8):
        A(f"ds_read_b128 {vr(KF+4*k,4)}, v{vKm} offset:{(k>>1)*512+(k&1)*32}")
    A(f"""
    s_xor_b32 s{sBuf}, s{sBuf}, 0x8000
    s_add_u32 s{sT}, s{sBuf}, s{sW10}
    s_add_u32 s{sT+1}, s{sQo}, {7 << 18:#x}
    """)
    qkv_dma(sT, sT + 1)
    for k in range(8):
        A(f"s_waitcnt lgkmcnt({7-k})")
        A(f"v_mfma_f32_32x32x16_bf16 {vr(SM,16)}, {vr(KF+4*k,4)}, {vr(QF+4*k,4)}, {'0' if k == 0 else vr(SM,16)}")
    VX, VM = QF, KF
    for et in range(4):
        for v in range(2):
            A(f"ds_read_b128 {vr(VX+8*et+4*v,4)}, v{vVx} offset:{et*2048+v*512}")
    for et in range(4):
        A(f"ds_read2_b32 {vr(VM+4*et,2)}, v{vVm} offset0:{et*128} offset1:{et*128+16}" if et < 2 else
          f"ds_read2_b32 {vr(VM+4*et,2)}, v242 offset0:{(et-2)*128} offset1:{(et-2)*128+16}")
        if et == 0:
            A(f"v_add_u32 v242, 1024, v{vVm}")
    A(f"""
    s_mov_b32 s{sT}, {f32bits(SM_C):#x}
    s_nop 3
    v_max3_f32 v{m_}, v{m_}, v{SM}, v{SM+1}
    v_max3_f32 v{m_}, v{m_}, v{SM+2}, v{SM+3}
    v_mov_b32 v{t_}, v{m_}
    s_nop 1
    v_permlane32_swap_b32 v{m_}, v{t_}
    v_max_f32 v{m_}, v{m_}, v{t_}
    v_mul_f32 v{m_}, s{sT}, v{m_}
    """)
    vals = [S + r for r in range(16)] + [SM + r for r in range(4)]
    for v in vals:
        A(f"v_fma_f32 v{v}, v{v}, s{sT}, -v{m_}")
    for v in vals:
        A(f"v_exp_f32 v{v}, v{v}")
    A(f"v_add_f32 v{m_}, v{vals[0]}, v{vals[1]}\nv_add_f32 v{t_}, v{vals[2]}, v{vals[3]}")
    for i in range(4, 20, 2):
        A(f"v_add_f32 v{m_}, v{m_}, v{vals[i]}\nv_add_f32 v{t_}, v{t_}, v{vals[i+1]}")
    A(f"""
    v_add_f32 v{m_}, v{m_}, v{t_}
    v_mov_b32 v{t_}, v{m_}
    s_nop 1
    v_permlane32_swap_b32 v{m_}, v{t_}
    v_add_f32 v{m_}, v{m_}, v{t_}
    v_rcp_f32 v{m_}, v{m_}
    s_nop 0
    """)
    for v in vals:
        A(f"v_mul_f32 v{v}, v{v}, v{m_}")
    for i in range(8):
        A(f"v_cvt_pk_bf16_f32 v{P+i}, v{S+2*i}, v{S+2*i+1}")
    A(f"v_cvt_pk_bf16_f32 v{PM}, v{SM}, v{SM+1}\nv_cvt_pk_bf16_f32 v{PM+1}, v{SM+2}, v{SM+3}")
    A("s_waitcnt lgkmcnt(0)")
    for et in range(4):
        A(f"v_mov_b32 v{VM+4*et+2}, 0\nv_mov_b32 v{VM+4*et+3}, 0")
    A("s_nop 1")
    for et in range(4):
        o = O + 16 * et
        A(f"v_mfma_f32_32x32x16_bf16 {vr(o,16)}, {vr(VX+8*et,4)}, {vr(P,4)}, 0")
        A(f"v_mfma_f32_32x32x16_bf16 {vr(o,16)}, {vr(VX+8*et+4,4)}, {vr(P+4,4)}, {vr(o,16)}")
        A(f"v_mfma_f32_32x32x16_bf16 {vr(o,16)}, {vr(VM+4*et,4)}, {vr(PM,4)}, {vr(o,16)}")
        if et >= 1:
            for i in range(8):
                A(f"v_cvt_pk_bf16_f32 v{OA+8*(et-1)+i}, v{o-16+2*i}, v{o-16+2*i+1}")
    A.nop(4)
    for i in range(8):
        A(f"v_cvt_pk_bf16_f32 v{OA+24+i}, v{O+48+2*i}, v{O+48+2*i+1}")
    A(f"""
    s_lshl_b32 s{sT}, s{sH}, 10
    s_add_u32 s{sPo}, s{sSl}, s{sT}
    s_lshl_b32 s{sT}, s{S_W}, 16
    s_add_u32 s{sPo}, s{sPo}, s{sT}
    s_add_u32 s{sPo}, s{sPo}, {WS_PART:#x}
    """)
    SGp = S
    def tail(dt):
        ins = []
        for a in range(2):
            for i in range(4):
                ins.append(f"v_cvt_pk_bf16_f32 v{SGp+8*(dt&1)+4*a+i}, v{ACC+16*dt+8*a+2*i}, v{ACC+16*dt+8*a+2*i+1}")
            ins.append(f"s_add_u32 s{sT+8}, s{sPo}, {(a*16 + (dt>>1))*32768:#x}\n"
                       f"buffer_store_dwordx4 {vr(SGp+8*(dt&1)+4*a,4)}, v{vPs}, {WS}, s{sT+8} offen offset:{(dt&1)*512}")
        return ins
    pend = []
    for dt in range(4):
        for k in range(8):
            A(f"v_mfma_f32_32x32x16_bf16 {vr(ACC+16*dt,16)}, {vr(OA+4*k,4)}, {ar((dt*8+k)*4,4)}, {'0' if k == 0 else vr(ACC+16*dt,16)}")
            if k >= 2:
                for _ in range(2):
                    if pend:
                        A(pend.pop(0))
        pend = tail(dt)
    A.nop(12)
    for f in pend:
        A(f)
    wstamp(A, cfg, 27, vtmp=244)
    A(f"""
    s_lshl_b32 s{sT}, s{S_ID}, 6
    s_add_u32 s{sT}, s{sT}, {F_PART:#x}
    v_add_u32 v{vCnt}, 1, v{vCnt}
    v_xor_b32 v{vRd}, 0x8000, v{vRd}
    v_xor_b32 v{vKm}, 0x8000, v{vKm}
    v_xor_b32 v{vVx}, 0x8000, v{vVx}
    v_xor_b32 v{vVm}, 0x8000, v{vVm}
    s_waitcnt vmcnt(0)
    s_barrier
    s_mov_b32 s{sSlP}, s{sSl}
    s_cmp_lg_u32 s{S_T}, 0
    s_cbranch_scc1 L_p5_slowpub
    buffer_store_dword v{vCnt}, v{vSolo}, {WS}, s{sT} offen
    s_xor_b32 s{sSl}, s{sSl}, 0x800000
    L_p5_pubd:
    """)
    wstamp(A, cfg, 28, vtmp=244)
    A(f"""
    s_mov_b32 s{sPrev}, s{sSeg}
    s_add_u32 s{sSeg}, s{sSeg}, 7
    s_add_u32 s{sQo}, s{sQo}, {7 << 18:#x}
    s_cmp_lt_u32 s{sSeg}, 64
    s_cbranch_scc1 L_p5_loop
    """)
    reduce_prev("L_p5_r2")
    A(f"""
    s_waitcnt vmcnt(0)
    s_branch L_p5_done
    L_p5_slowpub:
    buffer_wbl2 sc1
    s_waitcnt vmcnt(0)
    s_barrier
    buffer_store_dword v{vCnt}, v{vSolo}, {WS}, s{sT} offen sc1
    s_add_u32 s{sSl}, s{sSl}, {7 << 20:#x}
    s_branch L_p5_pubd
    L_p5_done:
    """)


def p345(A, cfg):
    p3(A, cfg)
    wstamp(A, cfg, 14)
    if cfg.get('stop') == 3:
        A("s_waitcnt vmcnt(0)\ns_branch L_end")
        return
    p4(A, cfg)
    wstamp(A, cfg, 15)
    if cfg.get('stop') == 4:
        A("s_waitcnt vmcnt(0)\ns_branch L_end")
        return
    p5(A, cfg)
    wstamp(A, cfg, 24)
```

```python
from common import *

L_KX = 0x0000
L_MEM = 0x4000
L_Q = 0x6000
L_O = 0x7200
L_W = 0x8000

vL16, vIDX, vQW, vTQ, vTK, vTO, vKX, vWL, vPS, vOW, vRS, vFL = range(12)
vONE = 12
vSEL = 16
MF = 20
AQ, AK, AV = 52, 60, 68
KX = 76
VB = 108
TT = 124
vZ = VB + 6

sODL = 10
sStep = 60
sP = 61
sPF = 63
sVXb = 64
sPR = 65
sRL, sFLc, sMO, sMRs, sG, sKXo, sVXo, sKM, sFLo, sM0K = 69, 70, 71, 72, 73, 74, 75, 76, 77, 78
sProg = 79
sODD = 80
sEVL = 82
sC = 84
sF0 = 85
sW11 = 86
sNeed = 87
sPM = 67
sPb = 68
sT = 88
SENT_P = 0x7F817F81
S_WZ = 48
LJ = [2]

LDSF = {('Q', 1, 0): 0, ('Q', 1, 2): 1, ('Q', 1, 4): 2, ('Q', 1, 6): 3,
        ('K', 1, 0): 4, ('K', 1, 2): 5, ('K', 1, 4): 6, ('K', 1, 6): 7,
        ('O', 0, 0): 8, ('O', 0, 1): 9, ('O', 2, 0): 10, ('O', 2, 1): 11,
        ('O', 4, 0): 12, ('O', 4, 1): 13, ('O', 6, 0): 14, ('O', 6, 1): 15}
RFF = {}
_slots = [Reg('a', 8 * i) for i in range(32)] + [Reg('v', 128 + 8 * i) for i in range(16)]
for m in 'QKV':
    for tau in range(2):
        for t in range(8):
            if (m, tau, t) not in LDSF:
                RFF[(m, tau, t)] = _slots.pop(0)
for j in range(8):
    for t in range(2):
        if ('O', j, t) not in LDSF:
            RFF[('O', j, t)] = _slots.pop(0)
assert not _slots
WS = f"s[{S_WS}:{S_WS+3}]"
import common


def smf(A, acc, a, b):
    A(f"v_smfmac_f32_16x16x64_bf16 {vr(acc,4)}, {vr(a,4)}, {b.r(0,8)}, v{vIDX}")


def lds_frag_load(A, key, dst, tag):
    f = LDSF[key]
    A.ds(f"ds_read_b128 {vr(dst,4)}, v{vWL} offset:{f*2048}", tag)
    A.ds(f"ds_read_b128 {vr(dst+4,4)}, v{vWL} offset:{f*2048+1024}", tag)


def cstamp(A, cfg, k):
    if cfg.get('cdiag'):
        A(f"s_memrealtime s[96:97]\ns_waitcnt lgkmcnt(0)\n" + (f"s_mov_b32 s{71+k}, s96" if k <= 6 else f"v_writelane_b32 v{TT}, s96, {k}") + ("".join(f"\nv_writelane_b32 v{TT}, s{71+j}, {j}" for j in range(1, 7)) if k == 6 else ""))


def perwave(A, fn):
    end = A.uid("Lwe")
    for w in range(4):
        nx = A.uid("Lwn")
        if w < 3:
            A(f"s_cmp_lg_u32 s{S_W}, {w}\ns_cbranch_scc1 {nx}")
        fn(w)
        if w < 3:
            A(f"s_branch {end}\n{nx}:")
    A.label(end)


def chain_startup(A, cfg):
    A.c("===== chain startup =====")
    A(f"""
    v_and_b32 v1, 63, v0              ; lane
    v_and_b32 v2, 15, v1              ; n
    v_lshrrev_b32 v3, 4, v1           ; g
    v_lshrrev_b32 v4, 1, v3           ; g>>1
    v_and_b32 v5, 1, v3               ; g&1
    v_lshrrev_b32 v6, 2, v2           ; r = n>>2
    v_and_b32 v7, 3, v2               ; c = n&3
    v_lshrrev_b32 v9, 3, v2
    v_lshl_add_u32 v9, v9, 1, v4       ; jl
    v_and_b32 v10, 7, v2
    v_lshl_add_u32 v8, v5, 3, v10
    v_lshlrev_b32 v8, 4, v8
    v_lshl_add_u32 v8, v9, 13, v8
    s_lshl_b32 s{sT}, s{S_W}, 3
    s_xor_b32 s{sT}, s{sT}, s{S_ID}
    s_xor_b32 s{sT}, s{sT}, 31
    v_xor_b32 v9, s{sT}, v9
    v_lshl_add_u32 v8, v9, 8, v8
    ; vRS = (h>>1)*512 + (h&1)*128 + ((n>>2)&1)*256 + (2(n>>3) + (g&1))*32 + (n&3)*8
    s_lshr_b32 s{sT}, s{S_ID}, 1
    s_lshl_b32 s{sT}, s{sT}, 9
    s_and_b32 s{sT+1}, s{S_ID}, 1
    s_lshl_b32 s{sT+1}, s{sT+1}, 7
    s_add_u32 s{sT}, s{sT}, s{sT+1}
    v_lshrrev_b32 v9, 3, v2
    v_lshl_add_u32 v10, v9, 1, v5
    v_lshlrev_b32 v10, 5, v10
    v_lshl_add_u32 v10, v7, 3, v10
    v_and_b32 v9, 1, v6
    v_lshl_add_u32 v10, v9, 8, v10
    v_add_u32 v10, s{sT}, v10
    """)
    A(f"""
    v_lshlrev_b32 v9, 1, v3
    v_xor_b32 v9, v2, v9
    v_lshlrev_b32 v9, 4, v9
    s_lshl_b32 s{sT}, s{S_W}, 2
    v_add_u32 v13, s{sT}, v3          ; 4w+g
    v_lshl_add_u32 v11, v13, 13, v9   ; vDmaA
    v_lshl_add_u32 v12, v13, 10, v9   ; vDmaB
    v_and_b32 v9, 1, v6               ; r&1
    v_lshrrev_b32 v13, 1, v6          ; r>>1
    v_lshl_add_u32 v14, v13, 1, v5    ; 2(r>>1)+(g&1)
    v_lshl_add_u32 v15, v9, 2, v14    ; phi
    v_lshl_add_u32 v14, v4, 2, v14
    v_lshl_add_u32 v14, v9, 4, v14    ; row
    v_lshlrev_b32 v14, 8, v14
    v_lshl_add_u32 v14, v15, 5, v14
    s_lshl_b32 s{sT}, s{S_W}, 6
    v_xor_b32 v14, s{sT}, v14
    v_lshrrev_b32 v15, 1, v7
    v_lshlrev_b32 v15, 5, v15
    v_xor_b32 v1, v15, v14
    v_and_b32 v15, 1, v7
    v_lshl_add_u32 v2, v15, 3, v1
    v_lshl_add_u32 v14, v7, 3, v14
    v_lshlrev_b32 v15, 1, v5
    v_lshl_add_u32 v1, v13, 2, v15
    v_lshl_add_u32 v1, v4, 3, v1
    v_lshl_add_u32 v1, v9, 4, v1      ; row
    v_lshl_add_u32 v15, v9, 2, v15    ; phi
    v_lshlrev_b32 v1, 8, v1
    v_lshl_add_u32 v1, v7, 3, v1
    v_lshl_add_u32 v13, v15, 5, v1
    v_xor_b32 v5, 128, v11
    v_xor_b32 v6, 128, v12
    """)
    chunks = [('O', t, c) for t in range(2) for c in range(4)]
    chunks += [(m, t, None) for m in 'QK' for t in (2, 4, 6)]
    chunks += [('V', t, None) for t in range(8)]
    chunks += [(m, t, None) for m in 'QK' for t in (1, 3, 5, 7)]
    chunks += [('Q', 0, None), ('K', 0, None)]
    slot = lambda ci: 2 + (ci % 8) if ci < 30 else (ci - 30)
    A(f"""
    s_lshl_b32 s{sT+2}, s{S_ID}, 8        ; h*256
    s_lshl_b32 s{sT+3}, s{S_ID}, 17       ; h*128*1024
    s_lshl_b32 s{sT+4}, s{S_W}, 10        ; w*4*256
    """)

    def issue(ci):
        m, t, c = chunks[ci]
        srd = {'Q': S_WQ, 'K': S_WK, 'V': S_WV, 'O': S_WO}[m]
        for i in range(4):
            A(f"s_add_u32 m0, s{sT+4}, {slot(ci)*16384 + i*4096:#x}")
            if m == 'O':
                A(f"s_add_u32 s{sT+1}, s{sT+3}, {(64*t+16*i)*1024 + c*256:#x}")
                va = 6 if i & 1 else 12
            else:
                A(f"s_add_u32 s{sT+1}, s{sT+2}, {(64*t+16*i)*8192:#x}")
                va = 5 if i & 1 else 11
            A.vmem(f"buffer_load_dwordx4 v{va}, s[{srd}:{srd+3}], s{sT+1} offen{' nt' if cfg.get('wnt') else ''} lds", ("ch", ci))

    held = {}
    hfree = [16 + 8 * i for i in range(14)]
    PD = cfg.get('pd', 0)

    def rowpf(ci, now):
        if not PD or ci >= 32 or chunks[ci][0] == 'O':
            return
        m, t, c = chunks[ci]
        srd = {'Q': S_WQ, 'K': S_WK, 'V': S_WV}[m]
        A(f"""
        v_and_b32 v9, 63, v0
        v_lshlrev_b32 v9, 6, v9
        s_lshl_b32 s{sT}, s{S_ID}, 14
        s_lshl_b32 s{sT+1}, s{S_W}, 12
        s_add_u32 s{sT}, s{sT}, s{sT+1}
        s_add_u32 s{sT}, s{sT}, {t << 19:#x}
        """)
        A.vmem(f"buffer_load_dword v{7 if now < 12 else 4}, v9, s[{srd}:{srd+3}], s{sT} offen", "rpf")
    WD = cfg.get('wd', 8)
    for ci in list(range(WD)) + ([30, 31] if WD == 8 else []):
        issue(ci)
    cstamp(A, cfg, 1)
    PK = lambda w: RFF[('K', 0, 2 * w)]
    PQ = lambda w: RFF[('Q', 0, 2 * w)]
    A(f"""
    v_and_b32 v9, 63, v0
    v_bfe_u32 v15, v9, 1, 3
    v_lshlrev_b32 v15, 10, v15
    v_lshrrev_b32 v1, 4, v9
    v_lshl_add_u32 v15, v1, 3, v15
    v_and_b32 v1, 1, v9
    v_lshl_add_u32 v15, v1, 2, v15
    s_lshl_b32 s{sT}, s{S_W}, 8
    """)
    perwave(A, lambda w: A("\n".join(f"buffer_load_dword {PK(w).r(4*u+tl)}, v15, s[{S_MEM0}:{S_MEM0+3}], s{sT} offen offset:{u*128+tl*32}"
                                     for u in range(2) for tl in range(4))))
    A.vm += ["m0"] * 8
    A(f"s_mov_b32 s{sT+5}, 0")
    for ci in range(32):
        m, t, c = chunks[ci]
        if ci == 3:
            common.zero_load(A, 3)
            A.vm.append("zl")
        if ci == 11:
            A.wv("zl")
            lab = A.uid("Lz")
            A(f"v_cmp_ne_u32 vcc, 1, v3\ns_cbranch_vccnz {lab}\ns_mov_b32 s{sT+5}, 1")
            common.announce(A, 3)
            A.label(lab)
        if ci in cfg.get('help', ()):
            k0 = 24 if ci == cfg['help'][0] else 18
            lab = A.uid("Lhelp")
            A(f"""
            s_and_b32 s{sT}, s{S_ID}, 3
            s_cmp_eq_u32 s{sT}, 1
            s_cbranch_scc1 {lab}
            s_sub_u32 s{sT+1}, s{sT}, 1
            s_max_i32 s{sT+1}, s{sT+1}, 0              ; helper index 0..2
            s_lshr_b32 s60, s{S_W}, 1
            s_lshl1_add_u32 s{sT+1}, s{sT+1}, s60      ; chunk - k0
            """)
            A(f"s_mov_b64 s[60:61], s[{S_WQ}:{S_WQ+1}]\ns_mov_b32 s62, {512*4096*2:#x}\ns_mov_b32 s63, 0x20000\ns_mov_b32 s64, 0")
            for d in range(6):
                m_, t_, _ = chunks[k0 + d]
                srd = {'Q': S_WQ, 'K': S_WK, 'V': S_WV}[m_]
                A(f"s_cmp_eq_u32 s{sT+1}, {d}\ns_cselect_b64 s[60:61], s[{srd}:{srd+1}], s[60:61]\ns_cselect_b32 s64, {t_ << 19:#x}, s64")
            A(f"""
            s_andn2_b32 s{sT}, s{S_ID}, 3
            s_or_b32 s{sT}, s{sT}, 1
            s_lshl_b32 s{sT}, s{sT}, 8
            s_add_u32 s64, s64, s{sT}
            s_and_b32 s{sT}, s{S_W}, 1
            s_lshl_b32 s{sT}, s{sT}, 18
            s_add_u32 s64, s64, s{sT}
            v_and_b32 v9, 63, v0
            v_lshrrev_b32 v15, 1, v9
            v_lshlrev_b32 v15, 13, v15
            v_and_b32 v9, 1, v9
            v_lshl_add_u32 v9, v9, 7, v15
            buffer_load_dword v7, v9, s[60:63], s64 offen
            {lab}:
            """)
        if ci == 14:
            A("v_and_b32 v4, 7, v0\nv_lshlrev_b32 v4, 2, v4")
            A.vmem(f"buffer_load_dword v3, v4, {WS}, 0 offen offset:{F_LN} sc1", "l0")
        if ci == 22:
            A.wv("l0")
            lab = A.uid("Lpr")
            A(f"""
            v_cmp_ne_u32 vcc, 0x01010101, v3
            s_cbranch_vccnz {lab}
            s_cmp_eq_u32 s{sT+5}, 0
            s_cbranch_scc1 {lab}
            s_cmp_lg_u32 s{S_T}, 0
            s_cbranch_scc1 {lab}
            v_and_b32 v4, 63, v0
            v_lshlrev_b32 v4, 7, v4
            s_lshl_b32 s{sT}, s{S_ID}, 13
            s_lshl_b32 s{sT+1}, s{S_W}, 18
            s_add_u32 s{sT+1}, s{sT+1}, s{sT}
            s_add_u32 s{sT+1}, s{sT+1}, {PRING:#x}
            buffer_load_dword v3, v4, {WS}, s{sT+1} offen sc1
            s_lshl_b32 s{sT+1}, s{S_W}, 13
            s_add_u32 s{sT+1}, s{sT+1}, {MRING:#x}
            buffer_load_dword v3, v4, {WS}, s{sT+1} offen sc1
            {lab}:
            """)
        if ci == cfg.get('f0at', 26):
            A(f"""
            s_lshl_b32 s{sFLc}, s{S_ID}, 9
            s_add_u32 s{sFLc}, s{sFLc}, {F_P2:#x}
            v_and_b32 v1, 1, v0
            v_lshlrev_b32 v1, 7, v1
            """)
            A.vmem(f"buffer_load_dword v1, v1, {WS}, s{sFLc} offen sc1", "f0")
        if ci == 31:
            A.wv("f0")
            lab = A.uid("Lpf")
            A(f"""
            v_cmp_eq_u32 vcc, 0, v1
            s_cbranch_vccnz {lab}
            s_cmp_eq_u32 s{sT+5}, 0
            s_cbranch_scc1 {lab}
            s_mov_b32 s{sT+5}, 2
            v_and_b32 v1, 63, v0
            v_lshlrev_b32 v1, 7, v1
            s_lshl_b32 s{sT}, s{S_ID}, 13
            s_and_b32 s{sT+1}, s{S_W}, 1
            s_lshl_b32 s{sT+1}, s{sT+1}, 18
            s_add_u32 s{sT}, s{sT}, s{sT+1}
            s_lshr_b32 s{sT+1}, s{S_W}, 1
            s_lshl_b32 s{sT+1}, s{sT+1}, 24
            s_add_u32 s{sT}, s{sT}, s{sT+1}
            s_add_u32 s{sT}, s{sT}, {WS_KX:#x}
            buffer_load_dword v{VB+8}, v1, {WS}, s{sT} offen
            {lab}:
            """)
        if ci == 24:
            perwave(A, lambda w: common.table_load(A, PQ(w).r(0, 2), 9))
            A.vm.append("tl")
        if ci in (1, 10, 20, 30):
            cstamp(A, cfg, {1: 2, 10: 3, 20: 4, 30: 5}[ci])
        if ci == 22:
            A(f"""
            v_and_b32 v9, 63, v0
            v_lshlrev_b32 v9, 4, v9
            s_lshl_b32 s{sT+1}, s{S_W}, 15
            s_add_u32 s{sT+1}, s{sT+1}, {L_W:#x}
            v_add_u32 v7, s{sT+1}, v9          ; vWL
            """)
        if ci in (24, 26, 28, 30):
            lab = A.uid("Lhw")
            A(f"s_cmp_lg_u32 s{S_W}, { {24: 3, 26: 0, 28: 1, 30: 2}[ci] }\ns_cbranch_scc1 {lab}")
            wv_ = {24: 3, 26: 0, 28: 1, 30: 2}[ci]
            for key, r in held.items():
                f = LDSF[key] if key[0] == 'O' else LDSF[(key[0], 1, key[2] ^ (2 * wv_))]
                A(f"ds_write_b128 v7, {vr(r,4)} offset:{f*2048}")
                A(f"ds_write_b128 v7, {vr(r+4,4)} offset:{f*2048+1024}")
            A(f"s_waitcnt lgkmcnt(0)\n{lab}:")
        if ci == 30:
            A.wv("tl")
            perwave(A, lambda w: A("\n".join([f"v_accvgpr_read_b32 v{40+i}, {PK(w).r(i)}" for i in range(8)] +
                                              [f"v_accvgpr_read_b32 v{48+i}, {PQ(w).r(i)}" for i in range(2)])))
        A.wv(("ch", ci))
        A("s_barrier")
        sb = slot(ci) * 16384
        hi = sb & ~0x7fff
        lo = sb - hi
        if m == 'O':
            lab = A.uid("Lskipo")
            A(f"s_cmp_lg_u32 s{S_W}, {c}")
            A(f"s_cbranch_scc1 {lab}")
            for j in range(8):
                key = ('O', j, t)
                if key in LDSF:
                    if key not in held:
                        held[key] = hfree.pop(0)
                    dst = Reg('v', held[key])
                else:
                    dst = RFF[key]
                A(f"v_xor_b32 v9, {j*32}, v13")
                A(f"v_add_u32 v9, {hi:#x}, v9")
                A(f"v_xor_b32 v15, 32, v9")
                for k, (ad, off) in enumerate([(9, 0), (15, 256), (9, 8192), (15, 8192 + 256)]):
                    A.ds(f"ds_read_b64_tr_b16 {dst.r(2*k,2)}, v{ad} offset:{lo+off}", "tr")
                A.wl()
            A.label(lab)
        else:
            lds1 = m != 'V' and t % 2 == 0
            if lds1 and ci < 30:
                held[(m, 1, t)] = hfree.pop(0)
            for tau in range(2):
                ad = 9 if tau == 0 else 15
                if m == 'V':
                    A(f"v_xor_b32 v{ad}, {tau*32}, v14")
                    A(f"v_add_u32 v{ad}, {hi:#x}, v{ad}")
                else:
                    A(f"v_add_u32 v{ad}, {hi + tau*16:#x}, v2")
            end = A.uid("Lwe")
            for wv_ in range(4):
                nx = A.uid("Lwn")
                if wv_ < 3:
                    A(f"s_cmp_lg_u32 s{S_W}, {wv_}\ns_cbranch_scc1 {nx}")
                for tau in range(2):
                    if tau == 1 and lds1:
                        dst = Reg('v', held[(m, 1, t)] if ci < 30 else 16)
                    else:
                        dst = RFF[(m, tau, t ^ (2 * wv_))]
                    for k, off in enumerate([0, 8192, 2048, 8192 + 2048]):
                        A(f"ds_read_b64_tr_b16 {dst.r(2*k,2)}, v{9 if tau == 0 else 15} offset:{lo+off}")
                A("s_waitcnt lgkmcnt(0)")
                if lds1 and ci >= 30:
                    f = LDSF[(m, 1, t ^ (2 * wv_))]
                    A(f"ds_write_b128 v7, {vr(16,4)} offset:{f*2048}\nds_write_b128 v7, {vr(20,4)} offset:{f*2048+1024}\ns_waitcnt lgkmcnt(0)")
                if wv_ < 3:
                    A(f"s_branch {end}\n{nx}:")
            A.label(end)
        A("s_barrier")
        rowpf(ci + PD, ci)
        nxt = ci + WD
        if nxt < (30 if WD == 8 else 32):
            issue(nxt)
    assert not hfree
    cstamp(A, cfg, 6)
    A.c("chain address registers")
    A(f"""
    v_and_b32 v20, 63, v0             ; lane
    v_and_b32 v21, 15, v20            ; n
    v_lshrrev_b32 v22, 4, v20         ; g
    v_lshrrev_b32 v23, 1, v22         ; g>>1
    v_and_b32 v24, 1, v22             ; g&1
    v_lshrrev_b32 v25, 2, v21         ; r
    v_and_b32 v26, 3, v21             ; c
    v_lshlrev_b32 v{vL16}, 4, v20
    v_mov_b32 v{vIDX}, 0x4444
    v_mov_b32 v27, 0xeeee
    s_mov_b32 s{sODD}, 0xaaaaaaaa
    s_mov_b32 s{sODD+1}, 0xaaaaaaaa
    s_mov_b32 s{sEVL}, 0x55555555
    s_mov_b32 s{sEVL+1}, 0
    s_mov_b32 s{sODL}, 0xaaaaaaaa
    s_mov_b32 s{sODL+1}, 0
    s_mov_b32 s{sC}, {f32bits(SM_C):#x}
    s_mov_b32 s{sT+11}, {L_Q:#x}
    s_mov_b32 s{sT+10}, {L_O:#x}
    v_cndmask_b32 v{vIDX}, v{vIDX}, v27, s[{sODD}:{sODD+1}]
    s_lshl_b32 s{sT}, s{S_W}, 6
    v_lshlrev_b32 v27, 2, v21
    v_add_u32 v27, s{sT}, v27
    v_mul_u32_u24 v28, 1088, v22
    v_add3_u32 v{vQW}, v27, v28, s{sT+11}
    v_mul_u32_u24 v28, 640, v22
    v_add3_u32 v{vOW}, v27, v28, s{sT+10}
    v_lshrrev_b32 v27, 1, v21
    v_mul_u32_u24 v28, 544, v27
    v_lshl_add_u32 v28, v22, 4, v28
    v_add_u32 v{vTQ}, {L_Q:#x}, v28
    v_mul_u32_u24 v28, 320, v27
    v_lshl_add_u32 v28, v22, 5, v28
    v_and_b32 v29, 1, v21
    v_lshl_add_u32 v28, v29, 4, v28
    v_add_u32 v{vTO}, {L_O:#x}, v28
    v_and_b32 v27, 7, v21
    v_mul_u32_u24 v28, 544, v27
    v_lshl_add_u32 v28, v22, 4, v28
    v_add_u32 v{vTK}, {L_Q + 256:#x}, v28
    v_lshlrev_b32 v27, 9, v22
    v_lshl_add_u32 v{vKX}, v21, 4, v27
    v_and_b32 v29, 1, v25
    v_mov_b32 v30, 0x3f80
    v_mov_b32 v31, 0x3f800000
    v_cmp_eq_u32 vcc, 1, v29
    s_nop 1
    v_cndmask_b32 v30, v30, v31, vcc
    """)
    for d in range(4):
        A(f"v_cmp_eq_u32 vcc, {d}, v26\ns_nop 1\nv_cndmask_b32 v{vSEL+d}, 0, v30, vcc")
    for z in (VB + 6, VB + 7, VB + 14, VB + 15):
        A(f"v_mov_b32 v{z}, 0")
    if cfg.get('rsmask', 1):
        A(f"v_bfrev_b32 v30, 1\nv_cmp_lt_u32 vcc, 31, v20\ns_nop 1\nv_cndmask_b32 v{vRS}, v{vRS}, v30, vcc")
    A(f"v_bfrev_b32 v30, 1\nv_cmp_ne_u32 vcc, 0, v20\ns_nop 1\nv_cndmask_b32 v{vZ}, v{vZ}, v30, vcc")
    for z in range(4):
        A(f"v_mov_b32 v{vONE+z}, 0x3f803f80")
    lab = A.uid("Lci")
    A(f"s_cmp_lg_u32 s{sT+5}, 0\ns_cbranch_scc1 {lab}_z")
    common.wait_zero(A, 48)
    A(f"v_mov_b32 v48, 0\n{lab}_z:")
    common.validate(A, 48, preloaded=True)
    cstamp(A, cfg, 7)
    A(f"""
    s_mov_b32 s{sT+7}, s3
    v_mov_b32 v32, 0
    s_cmp_eq_u32 s{S_T}, 0
    s_cbranch_scc1 {lab}_r
    v_lshrrev_b32 v33, 2, v{vL16}
    s_mov_b32 s{sT+5}, 0
    {lab}_p2:
    {GUARD}
    buffer_load_dword v34, v33, {WS}, 0 offen sc1
    s_waitcnt vmcnt(0)
    v_cmp_ne_u32 vcc, 0x01010101, v34
    s_cbranch_vccnz {lab}_p2
    v_and_b32 v33, 28, v33
    {lab}_p3:
    {GUARD}
    buffer_load_dword v34, v33, {WS}, 0 offen offset:{F_LN+32} sc1
    s_waitcnt vmcnt(0)
    v_cmp_ne_u32 vcc, 0x01010101, v34
    s_cbranch_vccnz {lab}_p3
    {lab}_r:
    """)
    cstamp(A, cfg, 8)
    lab = A.uid("Lf0")
    A(f"""
    v_mov_b32 v{vFL}, 1
    s_cmp_eq_u32 s{sT+5}, 2
    s_cbranch_scc1 {lab}_ok
    {lab}:
    {GUARD}
    buffer_load_dword v{vFL}, v32, {WS}, s{sFLc} offen sc1
    buffer_load_dword v34, v32, {WS}, s{sFLc} offen offset:128 sc1
    s_waitcnt vmcnt(0)
    v_min_u32 v{vFL}, v{vFL}, v34
    s_nop 0
    v_readfirstlane_b32 s{sF0}, v{vFL}
    s_cmp_eq_u32 s{sF0}, 0
    s_cbranch_scc1 {lab}
    {lab}_ok:
    s_lshl_b32 s{sT}, s{S_ID}, 13
    s_lshl_b32 s{sT+1}, s{S_W}, 11
    s_add_u32 s{sVXb}, s{sT}, s{sT+1}
    s_add_u32 s{sVXb}, s{sVXb}, {WS_VX:#x}
    s_mov_b32 s{sVXo}, s{sVXb}
    s_add_u32 s{sKXo}, s{sT}, s{sT+1}
    s_add_u32 s{sKXo}, s{sKXo}, {WS_KX:#x}
    s_mov_b32 s{sM0K}, s{sT+1}
    s_lshl_b32 s{sT+2}, s{S_W}, 9
    s_add_u32 s{sKM}, s{sT}, s{sT+2}
    s_add_u32 s{sKM}, s{sKM}, {WS_KVM - 0x40000:#x}
    s_mov_b32 m0, s{sM0K}
    s_nop 0
    buffer_load_dwordx4 v{vL16}, {WS}, s{sKXo} offen lds
    buffer_load_dwordx4 v{vL16}, {WS}, s{sKXo} offen offset:1024 lds
    s_mul_i32 s{sT+1}, s{S_W}, 0xc00
    s_sub_u32 s{sT+1}, s{sT+1}, 0xc00
    s_min_u32 s{sT+1}, s{sT+1}, 0x1400
    s_add_u32 s{sKXo}, s{sT}, s{sT+1}
    s_add_u32 s{sKXo}, s{sKXo}, {WS_KX:#x}
    s_mul_i32 s{sT+2}, s{S_W}, 2752
    s_add_u32 s{sPF}, s{sT}, s{sT+2}
    s_add_u32 s{sPF}, s{sPF}, {WS_VX - 2752:#x}
    s_mov_b32 s{S_WZ}, s{S_WS}
    s_mov_b32 s{S_WZ+1}, s{S_WS+1}
    s_mov_b32 s{S_WZ+3}, 0x20000
    s_cmp_eq_u32 s{S_W}, 0
    s_cselect_b32 s{S_WZ+2}, 0, s{S_WS+2}
    s_cselect_b32 s{sM0K}, 0x30000, s{sT+1}
    s_cselect_b32 s{sPM}, -1, 0
    """)
    A(f"""
    s_mov_b32 s{sT}, 0x05040100
    s_mov_b32 s{sT+1}, 0x07060302
    """)
    for u in range(2):
        b = 40 + 4 * u
        A(f"""
        v_perm_b32 v{MF+4*u}, v{b+1}, v{b}, s{sT}
        v_perm_b32 v{MF+4*u+1}, v{b+3}, v{b+2}, s{sT}
        v_perm_b32 v{MF+4*u+2}, v{b+1}, v{b}, s{sT+1}
        v_perm_b32 v{MF+4*u+3}, v{b+3}, v{b+2}, s{sT+1}
        """)
    A(f"""
    s_mov_b32 s{sStep}, 0
    s_lshl_b32 s{sProg}, s{S_ID}, 7
    s_add_u32 s{sProg}, s{sProg}, {F_PROG:#x}
    v_bfrev_b32 v{TT}, 1
    s_cmp_eq_u32 s{S_W}, 1
    s_cselect_b64 vcc, -1, 0
    s_nop 1
    v_cndmask_b32 v{vZ+1}, v{TT}, v{vZ}, vcc
    """)
    A.vm = []
    A.lg = []
    step_offsets(A)
    pre_step(A)
    hop_addr(A)
    A(f"v_lshrrev_b32 v{TT+2}, 2, v{vL16}")
    A(f"ds_write_b128 v{GW}, {vr(MF,4)} offset:{L_MEM}\nds_write_b128 v{GW}, {vr(MF+4,4)} offset:{L_MEM+1024}")
    A("s_waitcnt vmcnt(0) lgkmcnt(0)")
    A.lg = []
    cstamp(A, cfg, 9)
    if cfg.get('cdiag'):
        A(f"v_writelane_b32 v{TT}, s100, 0")
        if cfg.get('dbgs'):
            A(f"""
            v_subrev_u32 v{TT}, s100, v{TT}
            v_readlane_b32 s96, v{TT}, 9
            s_nop 3
            v_writelane_b32 v{TT}, s96, 7
            v_lshrrev_b32 v{TT+1}, 2, v{vL16}
            v_add_u32 v{TT+1}, 28, v{TT+1}
            s_mov_b64 exec, 0xfe
            global_atomic_umax v{TT+1}, v{TT}, s[{S_DBG}:{S_DBG+1}]
            s_mov_b64 exec, -1
            """)
        A(f"s_lshl_b32 s96, s{S_ID}, 8\ns_add_u32 s96, s96, 0x118000\nv_lshrrev_b32 v{TT+1}, 2, v{vL16}\nbuffer_store_dword v{TT}, v{TT+1}, {WS}, s96 offen")


def step_offsets(A):
    A(f"""
    s_and_b32 s{sT}, s{sStep}, 3
    s_lshl_b32 s{sT+1}, s{sT}, 18
    s_add_u32 s{sT+1}, s{sT+1}, {PRING:#x}
    s_lshl_b32 s{sT+2}, s{S_W}, 16
    s_add_u32 s{sP}, s{sT+1}, s{sT+2}
    s_bitcmp1_b32 s{S_ID}, 2
    s_movk_i32 s{sPb}, 0x7c00
    s_cselect_b32 s{sPb}, 0x8400, s{sPb}
    s_add_u32 s{sP+1}, s{sP}, s{sPb}
    s_lshl_b32 s{sT+2}, s{S_ID}, 13
    s_add_u32 s{sRL}, s{sT+1}, s{sT+2}
    s_add_u32 s{sT+1}, s{sStep}, 3
    s_and_b32 s{sT+1}, s{sT+1}, 3
    s_lshl_b32 s{sT+1}, s{sT+1}, 18
    s_lshl_b32 s{sT+2}, s{S_W}, 16
    s_add_u32 s{sT+1}, s{sT+1}, s{sT+2}
    s_add_u32 s{sPR}, s{sT+1}, {PRING:#x}
    s_add_u32 s{sPR+1}, s{sPR}, s{sPb}
    s_lshl_b32 s{sMRs}, s{sT}, 13
    s_add_u32 s{sMRs}, s{sMRs}, {MRING:#x}
    s_add_u32 s{sT+1}, s{sStep}, 1
    s_and_b32 s{sT+1}, s{sT+1}, 3
    s_lshl_b32 s{sT+1}, s{sT+1}, 13
    s_add_u32 s{sMO}, s{sT+1}, {MRING:#x}
    s_lshl_b32 s{sT+1}, s{S_W}, 11
    s_add_u32 s{sG}, s{sMO}, s{sT+1}
    s_add_u32 s{sKXo}, s{sKXo}, 0x40000
    s_add_u32 s{sPF}, s{sPF}, 0x40000
    s_add_u32 s{sKM}, s{sKM}, 0x40000
    s_xor_b32 s{sM0K}, s{sM0K}, 0x2000
    s_add_u32 s{sFLo}, s{sFLc}, {128 * (2 & ((1 << LJ[0]) - 1))}
    s_mov_b32 s{sNeed}, 0
    s_lshl_b32 s{sW11}, s{S_W}, 11
    """)


def pre_step(A):
    for t in range(4):
        lds_frag_load(A, ('Q', 1, 2 * t), KX + 8 * t, ("sb", t))
    for r in range(AQ, AQ + 24, 2):
        A(f"v_mov_b64 {vr(r,2)}, 0")


GW = VB + 3
vM = [None, VB, VB + 1, VB + 4]


def hop_addr(A):
    A(f"v_add_u32 v{GW}, s{sW11}, v{vL16}")
    for j in range(1, 4):
        A(f"v_xor_b32 v{vM[j]}, {j << 11:#x}, v{GW}")


def emit(A, f):
    f() if callable(f) else A(f)


def weave(A, mf, fill, per=1, lead=0):
    fill = list(fill)
    for i, m in enumerate(mf):
        m()
        if i >= lead:
            for _ in range(per):
                if fill:
                    emit(A, fill.pop(0))
    for f in fill:
        emit(A, f)


def stamp(A, cfg, name):
    d = cfg.get('diag', ())
    if name in d:
        k = list(d).index(name)
        A(f"{'s_memrealtime' if cfg.get('abs') else 's_memtime'} s[{12+2*k}:{13+2*k}]")


def fold(x):
    return [f"v_add_f32 v{x}, v{x}, v{x+1}", f"v_add_f32 v{x+2}, v{x+2}, v{x+3}"]


def chain_loop(A, cfg, mode):
    st = " sc1" if mode == 'slow' else ""
    L = f"Lchain_{mode}"
    dA, dB, dB2 = cfg.get('dA', 0), cfg.get('dB', 24), cfg.get('dB2', 12)
    noside = cfg.get('noside', 0)
    A.c(f"===== chain loop ({mode}) =====")
    Lg = A.uid("Lhop")

    def isvalu(f):
        return isinstance(f, str) and f.startswith("v_")

    def gap(m, *items):
        m()
        its = [f for f in items if f is not None]
        for f in its:
            if not isvalu(f):
                emit(A, f)
        for f in its:
            if isvalu(f):
                A(f)

    def pop(lst):
        return lst.pop(0) if lst else None

    def ldsf(key, dst, tag):
        f = LDSF[key]
        return [lambda: A.ds(f"ds_read_b128 {vr(dst,4)}, v{vWL} offset:{f*2048}", tag),
                lambda: A.ds(f"ds_read_b128 {vr(dst+4,4)}, v{vWL} offset:{f*2048+1024}", tag)]

    def v_convert():
        ins = []
        for tau in range(2):
            x, b = AV + 4 * tau, VB + 8 * tau
            ins += fold(x) + [f"v_cvt_pk_bf16_f32 v{b+2}, v{x}, v{x+2}", f"v_cvt_pk_bf16_f32 v{b+3}, v{x}, v{x+2}"]
        return ins

    vL4 = TT + 2

    def v_publish(so):
        if cfg.get('nopub'):
            return []
        return [lambda: A.vmem(f"buffer_store_dword v{VB+2}, v{vL4}, {WS}, s{so} offen offset:2048 sc1", "vm"),
                lambda: A.vmem(f"buffer_store_dword v{VB+10}, v{vL4}, {WS}, s{so} offen offset:2304 sc1", "vm")]

    def pairfold(x):
        return fold(x) + fold(x + 4) + [f"v_cvt_pk_bf16_f32 v{x}, v{x}, v{x+4}", f"v_cvt_pk_bf16_f32 v{x+1}, v{x+2}, v{x+6}"]

    def qkv_phases(last):
        slowlab = A.uid("Lflagslow")

        def Q(i, tau):
            b = Reg('v', KX + 4 * i) if (tau and i % 2 == 0) else RFF[('Q', tau, i)]
            return (lambda: A("s_nop 0")) if last else (lambda: smf(A, AQ + 4 * tau, MF + 4 * i, b))

        def K(i, tau):
            b = Reg('v', KX + 4 * i) if (tau and i % 2 == 0) else RFF[('K', tau, i)]
            return lambda: smf(A, AK + 4 * tau, MF + 4 * i, b)
        mfr = [lambda i=i: A.ds(f"ds_read_b128 {vr(MF+4*i,4)}, v{vM[i//2]} offset:{L_MEM+(i&1)*1024}", ("mf", i)) for i in range(2, 8)]
        kl = {i: ldsf(('K', 1, i), KX + 4 * i, ("sb", i)) for i in (0, 2, 4, 6)}
        rst = [lambda b=b: A.vmem(f"buffer_store_dwordx4 {vr(TT,4)}, v{vPS}, {WS}, s{sPR+b} offen{st}", "rst") for b in range(2)]
        if last or cfg.get('rhop'):
            rst = [None, None]
        C0, C1 = TT + 3, TT + 1
        ops = {'r0': rst[0], 'r1': rst[1],
               'pg': lambda: A.vmem(f"buffer_store_dword v{TT}, v{vZ+1}, {WS}, s{sProg} offen sc1", "prog")}
        if not cfg.get('nopub'):
            ops['m0'] = lambda: A.vmem(f"buffer_store_dword v{C0}, v{vL4}, {WS}, s{sT+8} offen offset:2048 sc1", "vm")
            ops['m1'] = lambda: A.vmem(f"buffer_store_dword v{C1}, v{vL4}, {WS}, s{sT+8} offen offset:2304 sc1", "vm")
        if not last and not noside:
            ops.update({
                'v0': lambda: A.vmem(f"buffer_load_dwordx4 {vr(VB,4)}, v{vKX}, {WS}, s{sVXo} offen{cfg.get('fv','')}", "vx"),
                'v1': lambda: A.vmem(f"buffer_load_dwordx4 {vr(VB+8,4)}, v{vKX}, {WS}, s{sVXo} offen offset:256{cfg.get('fv','')}", "vx"),
                'k2': lambda: A.vmem(f"buffer_load_dwordx4 v{vL16}, s[{S_WZ}:{S_WZ+3}], s{sKXo} offen offset:2048 lds", "kx"),
                'k0': lambda: A.vmem(f"buffer_load_dwordx4 v{vL16}, s[{S_WZ}:{S_WZ+3}], s{sKXo} offen{cfg.get('fk','')} lds", "kx"),
                'k1': lambda: A.vmem(f"buffer_load_dwordx4 v{vL16}, s[{S_WZ}:{S_WZ+3}], s{sKXo} offen offset:1024{cfg.get('fk','')} lds", "kx"),
                'pa': f"v_mul_u32_u24 v{VB+5}, 11, v{TT+2}",
                'pf': lambda: A.vmem(f"buffer_load_dword v{vFL}, v{VB+5}, s[{S_WZ}:{S_WZ+3}], s{sPF} offen{cfg.get('fp','')}", "pf"),
                'fl': lambda: A.vmem(f"buffer_load_dword v{vFL}, v{vZ}, s[{S_WZ}:{S_WZ+3}], s{sFLo} offen sc1", "fl")})
        plan = cfg.get('plan', {'g0': 'm0', 'g1': 'm1', 'g4': 'n0', 'g5': 'n1', 'g6': 'pv', 'g8': 'pg', 'q0': 's0', 'q1': 's1', 'q2': 's2', 'q3': 'v0',
                                'q4': 's3', 'q6': 'v1', 'g7': 'pa', 'q9': 'r0', 'k0': 'pf', 'k4': 'r1', 'k8': 'k0', 'k11': 'fl', 'w0': 'k1', 'w3': 'k2'})
        used = set()

        def X(name):
            o = plan.get(name)
            used.add(name)
            return ops.get(o)
        kmlate = not cfg.get('nopub')
        V = lambda i, tau: (lambda: smf(A, AV + 4 * tau, MF + 4 * i, RFF[('V', tau, i)]))
        if kmlate:
            ops['n0'] = lambda: (A.wl("kr"), A.vmem(f"buffer_store_dword v{TT}, v{vL4}, {WS}, s{sT+8} offen sc1", "km"))
            ops['n1'] = lambda: A.vmem(f"buffer_store_dword v{TT+1}, v{vL4}, {WS}, s{sT+8} offen offset:256 sc1", "km")
        C0, C1 = VB + 2, VB + 10
        ops['pv'] = f"v_mov_b32 v{TT+3}, s{sT+11}"
        ops['pg'] = lambda: A.vmem(f"buffer_store_dword v{TT+3}, v{vZ+1}, {WS}, s{sProg} offen sc1", "prog")
        if not last and not cfg.get('rhop'):
            for i in range(4):
                ops[f's{i}'] = f"v_mov_b32 v{TT+i}, {SENT_P:#x}"
        own = [Q(0, 1), Q(0, 0), Q(1, 0), Q(1, 1), K(1, 0), K(1, 1), V(0, 0), V(0, 1), V(1, 0), V(1, 1), K(0, 0), K(0, 1)]
        npre = cfg.get('npre0', 7)
        for g, m in enumerate(own):
            it = [X(f'g{g}')]
            if g == 0:
                it.insert(0, lambda: A.ds(f"ds_read2_b32 {vr(TT,2)}, v{vQW} offset0:64 offset1:200", "kr"))
            if g in (1, 2):
                it.insert(0, kl[0][g - 1])
            if g == 2 and not last:
                it.append(f"v_readfirstlane_b32 s{sF0}, v{vFL}")
            if g == 3 and not last:
                it.append(f"s_or_b32 s{sF0}, s{sF0}, s{sPM}\ns_cmp_le_u32 s{sF0}, s{sNeed}\ns_cbranch_scc1 {slowlab}\n{slowlab}_ret:")
            if g == 4:
                it.append(f"s_mov_b32 m0, s{sM0K}")
            if g >= npre:
                it.insert(0, pop(mfr))
            if g == 10:
                it.append(lambda: A.wl(("sb", 0)))
            gap(m, *it)
            if g == npre - 1:
                if not last:
                    stamp(A, cfg, 'b0')
                A.wl("gw")
                A("s_barrier")
                if not last:
                    stamp(A, cfg, 'b1')
                pop(mfr)()
        A.wl(("mf", 2))
        if not last:
            stamp(A, cfg, 'mf')
        kxr, fill = [], []
        if not last:
            fill = pairfold(AQ)
            kxr = [lambda t=t, a=a: A.ds(f"ds_read_b128 {vr(KX+8*t+4*a,4)}, v{vKX} offset:{t*2048+a*256}", "kxf")
                   for t in range(4) for a in range(2)]
        ds = {0: pop(mfr), 1: pop(mfr), 2: kl[2][0], 3: kl[2][1], 4: pop(kxr), 5: pop(kxr), 6: kl[4][0], 7: kl[4][1], 10: kl[6][0], 11: kl[6][1]}
        wt = {1: ("mf", 4), 5: ("mf", 7)}
        for n in range(12):
            i, tau = 2 + n // 2, (n + 1) & 1 if (2 + n // 2) % 2 == 0 else n & 1
            it = [ds.get(n), X(f'q{n}')]
            if n in wt:
                it.append(lambda n=n: A.wl(wt[n]))
            if n == 11:
                it.append(lambda: A.wl(("sb", 2)))
            gap(Q(i, tau), *it)
        if not last:
            stamp(A, cfg, 'q')
        for n in range(12):
            i, tau = 2 + n // 2, (n + 1) & 1 if (2 + n // 2) % 2 == 0 else n & 1
            it = []
            if n >= 1:
                it.append(pop(fill))
            if n == 7 and not last:
                it.append(lambda: A.ds(f"ds_write2_b32 v{vQW}, v{AQ}, v{AQ+1} offset0:0 offset1:136", "qw"))
            elif n in (1, 2, 5, 6, 9, 10):
                it.append(pop(kxr))
            if n == 3:
                it.append(lambda: A.wl(("sb", 6)))
            it.append(X(f'k{n}'))
            gap(K(i, tau), *it)
        assert not kxr and not fill and not mfr
        if not last:
            stamp(A, cfg, 'k')
        mf = [lambda t=t, tau=tau: smf(A, AV + 4 * tau, MF + 4 * t, RFF[('V', tau, t)]) for t in range(2, 8) for tau in range(2)]
        pub = [lambda: A.vmem(f"buffer_store_dword v{AK}, v{vL4}, {WS}, s{sKM} offen sc1", "km"),
               lambda: A.vmem(f"buffer_store_dword v{AK+1}, v{vL4}, {WS}, s{sKM} offen offset:256 sc1", "km")]
        if cfg.get('nopub') or (kmlate and not last):
            pub = []
        return mf, pub, X, slowlab


    def house():
        A(f"""
        s_mov_b32 s{sT+6}, s{sRL}
        s_add_u32 s{sT+7}, s{sRL}, 0x1000
        s_mov_b32 s{sT+4}, s{sMO}
        s_mov_b32 s{sT+5}, s{sMRs}
        s_mov_b32 s{sT+3}, s{sG}
        s_mov_b32 s{sT+9}, 0
        s_mov_b32 s{sT+10}, 0
        s_mov_b32 s{sT+8}, s{sKM}
        s_mov_b32 s{sT+11}, s{sStep}
        """)

    def house2():
        return f"""
        s_add_u32 s{sStep}, s{sStep}, 1
        s_mov_b32 s{sPR}, s{sP}
        s_mov_b32 s{sPR+1}, s{sP+1}
        s_mov_b32 s{sMRs}, s{sMO}
        s_add_u32 s{sP}, s{sP}, 0x40000
        s_bitset0_b32 s{sP}, 20
        s_add_u32 s{sP+1}, s{sP}, s{sPb}
        s_add_u32 s{sRL}, s{sRL}, 0x40000
        s_bitset0_b32 s{sRL}, 20
        s_add_u32 s{sMO}, s{sMO}, 0x2000
        s_bitset0_b32 s{sMO}, 15
        s_add_u32 s{sG}, s{sG}, 0x2000
        s_bitset0_b32 s{sG}, 15
        s_add_u32 s{sKXo}, s{sKXo}, 0x40000
        s_add_u32 s{sVXb}, s{sVXb}, 0x40000
        s_and_b32 s{sT}, s{sM0K}, 0x2000
        s_sub_u32 s{sVXo}, s{sVXb}, s{sT}
        s_add_u32 s{sPF}, s{sPF}, 0x40000
        s_add_u32 s{sKM}, s{sKM}, 0x40000
        s_xor_b32 s{sM0K}, s{sM0K}, 0x2000
        s_add_u32 s{sT}, s{sStep}, 1
        s_lshr_b32 s{sNeed}, s{sT}, {LJ[0]}
        s_add_u32 s{sT}, s{sStep}, 2
        s_and_b32 s{sT}, s{sT}, {(1 << LJ[0]) - 1}
        s_lshl_b32 s{sT}, s{sT}, 7
        s_add_u32 s{sFLo}, s{sFLc}, s{sT}
        """.strip().split("\n")

    def rload(u, s0):
        A(f"buffer_load_dwordx4 {vr(MF+4*u,4)}, v{vL16}, {WS}, s{s0+u//4} offen offset:{(u%4)*1024} {cfg.get('fr','sc1')}")

    def rround():
        for u in range(8):
            rload(u, sT + 6)
    A(f"{L}:\ns_branch {Lg}_compute")
    A(f".p2align {cfg.get('al', 6)}")
    for _ in range(cfg.get('alo', 0)):
        A("s_nop 0")
    A.label(Lg)
    n0 = len(A.lines)
    MRS = f"v_mov_b32 v{TT+2}, -1\nv_mov_b32 v{TT+3}, -1\nbuffer_store_dwordx2 {vr(TT+2,2)}, v{vRS}, {WS}, s{sT+5} offen{st}"
    if cfg.get('mrlate', 1):
        A(MRS)
    house()
    pre_step(A)
    hop_addr(A)
    hk = A.lines[n0:]
    del A.lines[n0:]
    hs = max(2, min(len(hk), cfg.get('hsplit', len(hk))))
    A.lines += hk[:hs]
    A.nop(dA)
    stamp(A, cfg, 'r0')
    rround()
    stamp(A, cfg, 'ri')
    A.lines += hk[hs:]
    nr = cfg.get('nr', 4)
    if nr < 0:
        A(f"s_branch {Lg}_red1\n{Lg}_red:") if hk[hs:] or True else None
        rround()
        A.label(Lg + "_red1")
        for u in range(8):
            A(f"s_waitcnt vmcnt({7 - u})")
            A(f"v_mfma_f32_16x16x32_bf16 {vr(TT,4)}, {vr(vSEL,4)}, {vr(MF+4*u,4)}, {'0' if u==0 else vr(TT,4)}")
    else:
        A.label(Lg + "_red")
        for u in range(nr):
            rload(u, sT + 6)
        for u in range(8):
            A(f"s_waitcnt vmcnt({7 - u + min(8, nr + u)})")
            A(f"v_mfma_f32_16x16x32_bf16 {vr(TT,4)}, {vr(vSEL,4)}, {vr(MF+4*u,4)}, {'0' if u==0 else vr(TT,4)}")
            if nr + u < 8:
                rload(nr + u, sT + 6)
    stamp(A, cfg, 'rm')
    A(f"""
    s_add_u32 s{sT+9}, s{sT+9}, 1
    s_cmp_gt_u32 s{sT+9}, 64
    s_cbranch_scc1 {Lg}_nan
    s_nop 4
    v_cmp_u_f32 vcc, v{TT}, v{TT}
    v_cvt_pk_bf16_f32 v{TT}, v{TT}, v{TT+1}
    v_cvt_pk_bf16_f32 v{TT+1}, v{TT+2}, v{TT+3}
    s_cbranch_vccnz {Lg}_red
    {Lg}_ok:
    buffer_store_dwordx2 {vr(TT,2)}, v{vRS}, {WS}, s{sT+4} offen{st}{cfg.get('fm','')}
    """)
    stamp(A, cfg, 'r1')
    A(f"""
    {'' if cfg.get('mrlate', 1) else MRS}
    {Lg}_bar:
    s_waitcnt lgkmcnt(0)
    s_barrier
    """)
    stamp(A, cfg, 6)
    G = MF

    def ground():
        A(f"buffer_load_dwordx4 {vr(G,4)}, v{vL16}, {WS}, s{sT+3} offen sc1")
        A(f"buffer_load_dwordx4 {vr(G+4,4)}, v{vL16}, {WS}, s{sT+3} offen offset:1024 sc1")
    if True:
        mA, mB = 54, 52
        h2 = [l.strip() for l in house2()] + [f"s_mov_b64 s[{mA}:{mA+1}], -1", f"s_mov_b64 s[{mB}:{mB+1}], -1", f"v_lshrrev_b32 v{TT+2}, 2, v{vL16}"]
        depth = cfg.get('gdepth', 3)
        spw = cfg.get('spw', 0)
        W0 = f"ds_write_b128 v{GW}, {vr(G,4)} offset:{L_MEM}"
        W1 = f"ds_write_b128 v{GW}, {vr(G+4,4)} offset:{L_MEM+1024}"
        n1, n2 = cfg.get('h2a', 26), cfg.get('h2b', 4)
        A("\n".join(h2[:n1]))
        ground()
        A("\n".join(h2[n1:n1+n2]))
        if depth == 3:
            ground()
        A("\n".join(h2[n1+n2:]))
        A(f"""
        {Lg}_poll:
        s_mov_b64 exec, s[{mA}:{mA+1}]
        buffer_load_dwordx4 {vr(G,4)}, v{vL16}, {WS}, s{sT+3} offen sc1
        s_mov_b64 exec, s[{mB}:{mB+1}]
        buffer_load_dwordx4 {vr(G+4,4)}, v{vL16}, {WS}, s{sT+3} offen offset:1024 sc1
        s_mov_b64 exec, -1
        s_add_u32 s{sT+10}, s{sT+10}, 1
        s_cmp_gt_u32 s{sT+10}, 0x400000
        s_cbranch_scc1 L_end
        {Lg}_chk:
        s_waitcnt vmcnt({2*depth-1})
        v_max3_u32 v{TT}, v{G}, v{G+1}, v{G+2}
        v_max_u32 v{TT}, v{TT}, v{G+3}
        {W0 if spw else ''}
        s_waitcnt vmcnt({2*depth-2})
        v_max3_u32 v{TT+1}, v{G+4}, v{G+5}, v{G+6}
        v_max_u32 v{TT+1}, v{TT+1}, v{G+7}
        {W1 if spw else ''}
        v_cmp_eq_u32 s[{mA}:{mA+1}], -1, v{TT}
        v_cmp_eq_u32 s[{mB}:{mB+1}], -1, v{TT+1}
        s_or_b64 vcc, s[{mA}:{mA+1}], s[{mB}:{mB+1}]
        s_cbranch_scc1 {Lg}_poll
        {'' if spw else W0}
        s_cmp_eq_u32 s{sStep}, 63
        {'' if spw else W1}
        """)
    stamp(A, cfg, 7)
    if cfg.get('diag'):
        A("s_waitcnt lgkmcnt(0)")
        for k in range(len(cfg['diag'])):
            A(f"v_writelane_b32 v{TT+3}, s{12+2*k}, {k}")
        A(f"v_writelane_b32 v{TT+3}, s{sT+9}, 30")
        A(f"v_writelane_b32 v{TT+3}, s{sT+10}, 31")
        A(f"""
        s_lshl_b32 s{sT}, s{sStep}, 7
        s_lshl_b32 s{sT+1}, s{S_ID}, 2
        s_add_u32 s{sT+1}, s{sT+1}, s{S_W}
        s_lshl_b32 s{sT+1}, s{sT+1}, 13
        s_add_u32 s{sT}, s{sT}, s{sT+1}
        s_add_u32 s{sT}, s{sT}, {DIAG - 128:#x}
        v_lshrrev_b32 v{TT}, 2, v{vL16}
        s_mov_b32 exec_hi, 0
        buffer_store_dword v{TT+3}, v{TT}, {WS}, s{sT} offen
        s_mov_b64 exec, -1
        """)
    A(f"""
    {'s_cmp_eq_u32 s%d, 63' % sStep if cfg.get('diag') else ''}
    s_cbranch_scc1 {Lg}_last
    {Lg}_compute:
    """)
    A.lg = ["gw", "gw"]
    A.vm = ["poll"] * 4
    stamp(A, cfg, 0)
    mf, pub, X, slowlab = qkv_phases(False)
    kf = pairfold(AK)
    if cfg.get('kfv', 1) == 0:
        pop(mf)()
        pop(mf)()
    else:
        gap(pop(mf), pop(kf))
        gap(pop(mf), pop(kf))
    A("\n".join(kf))
    A.ds(f"ds_write2_b32 v{vQW}, v{AK}, v{AK+1} offset0:64 offset1:200", "kw")
    stamp(A, cfg, 'kw')
    nv1, nv2 = cfg.get('nv1', 5), cfg.get('nv2', 5)
    assert nv1 + nv2 == 10
    for i in range(nv1):
        gap(pop(mf), pop(pub), X(f'w{i}'), (lambda: A.wv('poll')) if i == 0 else None)
    stamp(A, cfg, 'v1')
    A.wl()
    A("s_barrier")
    stamp(A, cfg, 1)
    qr = [lambda u=u: A.ds(f"ds_read_b128 {vr(AQ+4*u,4)}, v{vTQ} offset:{u*64}", ("qf", u)) for u in range(4)]
    kr = [lambda u=u: A.ds(f"ds_read_b128 {vr(KX+4*u,4)}, v{vTK} offset:{u*64}", ("kf", u)) for u in range(4)]
    pop(qr)()
    pop(qr)()
    S0, S1, SM = MF, MF + 4, MF + 8
    O0, O1, SU = MF + 12, MF + 16, MF + 20
    zero = [f"v_mov_b64 {vr(r,2)}, 0" for r in range(O0, O0 + 8, 2)]
    for i in range(nv2):
        gap(pop(mf), pop(qr), X(f'x{i}'), pop(zero) if i >= 1 else None, (lambda: A.wl(("qf", 1))) if i == nv2 - 1 else None)
    assert not qr and not mf
    stamp(A, cfg, 'v2')

    def xs(u, a):
        c = "0" if u == 0 else vr(S0 + 4 * a, 4)
        return lambda: A(f"v_mfma_f32_16x16x32_bf16 {vr(S0+4*a,4)}, {vr(KX+8*u+4*a,4)}, {vr(AQ+4*u,4)}, {c}")

    def ms(u):
        c = "0" if u == 0 else vr(SM, 4)
        return lambda: A(f"v_mfma_f32_16x16x32_bf16 {vr(SM,4)}, {vr(KX+4*u,4)}, {vr(AQ+4*u,4)}, {c}")
    vc = []
    for tau in range(2):
        x = AV + 4 * tau
        vc += fold(x) + [f"v_cvt_pk_bf16_f32 v{x+1}, v{x}, v{x+2}", f"v_cvt_pk_bf16_f32 v{x}, v{x}, v{x+2}"]
    gap(xs(0, 0), pop(kr), pop(zero))
    gap(xs(0, 1), pop(kr), f"v_xor_b32 v{vKX}, 0x2000, v{vKX}")
    gap(xs(1, 0), pop(kr), pop(vc))
    gap(xs(1, 1), pop(kr), lambda: A.wl(("qf", 3)))
    gap(xs(2, 0), pop(vc), pop(vc))
    gap(xs(2, 1), pop(vc), pop(vc))
    gap(xs(3, 0), pop(vc), pop(vc))
    gap(xs(3, 1), lambda: A.wl(("kf", 3)), pop(vc))
    assert not zero and not vc
    stamp(A, cfg, 'sx')
    wl_ = ldsf(('O', 0, 0), KX + 16, "wo0") + ldsf(('O', 0, 1), KX + 24, "wo0")
    wl2 = ldsf(('O', 2, 0), KX, "wo2") + ldsf(('O', 2, 1), KX + 8, "wo2") + ldsf(('O', 4, 0), AK, "wo4")
    m_, t_ = TT, TT + 1
    OD = f"s[{sODD}:{sODD+1}]"
    gap(ms(0), pop(wl_))
    gap(ms(1), pop(wl_), f"v_max3_f32 v{m_}, v{S0}, v{S0+1}, v{S0+2}")
    gap(ms(2), pop(wl_), f"v_max3_f32 v{t_}, v{S0+3}, v{S1}, v{S1+1}")
    gap(ms(3), pop(wl_), f"v_max3_f32 v{m_}, v{m_}, v{S1+2}, v{S1+3}")
    stamp(A, cfg, 2)
    sm = f"""
    v_max_f32 v{m_}, v{m_}, v{t_}
    v_cndmask_b32 v{S0}, v{S0}, v{S0+2}, {OD}
    v_cndmask_b32 v{S0+1}, v{S0+1}, v{S0+3}, {OD}
    v_cndmask_b32 v{S1}, v{S1}, v{S1+2}, {OD}
    v_cndmask_b32 v{S1+1}, v{S1+1}, v{S1+3}, {OD}
    W
    v_max3_f32 v{m_}, v{m_}, v{SM}, v{SM+1}
    v_max3_f32 v{m_}, v{m_}, v{SM+2}, v{SM+3}
    v_mov_b32 v{t_}, v{m_}
    v_cndmask_b32 v{SM}, v{SM}, v{SM+2}, {OD}
    v_cndmask_b32 v{SM+1}, v{SM+1}, v{SM+3}, {OD}
    v_permlane32_swap_b32 v{m_}, v{t_}
    v_max_f32 v{m_}, v{m_}, v{t_}
    v_mov_b32 v{t_}, v{m_}
    W
    V
    v_permlane16_swap_b32 v{m_}, v{t_}
    v_max_f32 v{m_}, v{m_}, v{t_}
    v_mul_f32 v{m_}, s{sC}, v{m_}
    v_fma_f32 v{S0}, v{S0}, s{sC}, -v{m_}
    v_fma_f32 v{S0+1}, v{S0+1}, s{sC}, -v{m_}
    v_fma_f32 v{S1}, v{S1}, s{sC}, -v{m_}
    v_fma_f32 v{S1+1}, v{S1+1}, s{sC}, -v{m_}
    v_fma_f32 v{SM}, v{SM}, s{sC}, -v{m_}
    v_fma_f32 v{SM+1}, v{SM+1}, s{sC}, -v{m_}
    v_exp_f32 v{SM}, v{SM}
    v_exp_f32 v{SM+1}, v{SM+1}
    w
    v_exp_f32 v{S0}, v{S0}
    v_exp_f32 v{S0+1}, v{S0+1}
    w
    v_exp_f32 v{S1}, v{S1}
    v_exp_f32 v{S1+1}, v{S1+1}
    v_cvt_pk_bf16_f32 v{S0+2}, v{SM}, v{SM+1}
    v_cvt_pk_bf16_f32 v{TT}, v{S0}, v{S0+1}
    v_cvt_pk_bf16_f32 v{TT+2}, v{S1}, v{S1+1}
    v_cndmask_b32 v{TT+1}, 0, v{S0+2}, s[{sEVL}:{sEVL+1}]
    v_cndmask_b32 v{TT+3}, 0, v{S0+2}, s[{sODL}:{sODL+1}]
    v_mov_b64 {vr(VB+4,2)}, {vr(VB+2,2)}
    v_mov_b64 {vr(VB+2,2)}, {vr(AV,2)}
    """
    nW, nP, nO = cfg.get('nW', 0), cfg.get('nP', 2), cfg.get('nO', 0)
    for ln in sm.strip().split("\n"):
        ln = ln.strip()
        if ln == "W":
            if nW > 0:
                pop(wl2)()
                nW -= 1
            else:
                A("s_nop 0")
        elif ln == "w":
            if nW > 0:
                pop(wl2)()
                nW -= 1
        elif ln == "V":
            A.wv("vx")
            if not A.lines[-1].startswith("s_waitcnt"):
                A("s_nop 0")
        else:
            A(ln)
    P = TT
    stamp(A, cfg, 3)
    WA = MF
    A(f"v_mfma_f32_16x16x32_bf16 {vr(SU,4)}, {vr(P,4)}, {vr(vONE,4)}, 0")
    A(f"v_mov_b64 {vr(VB+12,2)}, {vr(VB+10,2)}\nv_mov_b64 {vr(VB+10,2)}, {vr(AV+4,2)}")
    gap(lambda: smf(A, O0, P, Reg('v', VB)), pop(wl2) if nP > 0 else None, f"v_mov_b64 {vr(WA,2)}, 0")
    gap(lambda: smf(A, O1, P, Reg('v', VB + 8)), pop(wl2) if nP > 1 else None)
    A("\n".join(fold(SU)))
    A(f"v_rcp_f32 v{SU}, v{SU}\nv_rcp_f32 v{SU+2}, v{SU+2}")
    A("\n".join(fold(O0)))
    A(f"v_mul_f32 v{O0}, v{O0}, v{SU}\nv_mul_f32 v{O0+2}, v{O0+2}, v{SU+2}")
    A("\n".join(fold(O1)))
    A(f"v_mul_f32 v{O1}, v{O1}, v{SU}\nv_mul_f32 v{O1+2}, v{O1+2}, v{SU+2}")
    A(f"v_cvt_pk_bf16_f32 v{TT}, v{O0}, v{O1}\nv_cvt_pk_bf16_f32 v{TT+1}, v{O0+2}, v{O1+2}")
    A.ds(f"ds_write2_b32 v{vOW}, v{TT}, v{TT+1} offset0:0 offset1:80", "ow")
    stamp(A, cfg, 'ow')
    nz = cfg.get('nz', 12)
    zw = [f"v_mov_b64 {vr(r,2)}, 0" for r in range(WA + 2, WA + 32, 2)]
    for _ in range(nz):
        A(pop(zw))
    for _ in range(nO):
        if wl2:
            pop(wl2)()
    A.wl("ow")
    A("s_barrier")
    stamp(A, cfg, 4)
    OA = AQ
    for t in range(2):
        A.ds(f"ds_read_b128 {vr(OA+4*t,4)}, v{vTO} offset:{t*128}", ("of", t))
    wol = wl2 + ldsf(('O', 4, 1), AV, "wo4") + ldsf(('O', 6, 0), KX + 16, "wo6") + ldsf(('O', 6, 1), KX + 24, "wo6")
    npre = cfg.get('npre', 2)
    for _ in range(npre):
        pop(wol)()
    for f in zw:
        A(f)
    loc = {('O', 0, 0): Reg('v', KX + 16), ('O', 0, 1): Reg('v', KX + 24), ('O', 2, 0): Reg('v', KX), ('O', 2, 1): Reg('v', KX + 8),
           ('O', 4, 0): Reg('v', AK), ('O', 4, 1): Reg('v', AV), ('O', 6, 0): Reg('v', KX + 16), ('O', 6, 1): Reg('v', KX + 24)}
    seq = [(j, t) for j in range(8) for t in range(2)]
    tails = []
    for j in range(8):
        x = WA + 4 * j
        d = WA + 16 * (j // 4) + (j % 4)
        it = fold(x) + [f"v_cvt_pk_bf16_f32 v{d}, v{x}, v{x+2}"]
        b = j // 4
        px2 = cfg.get('px2', 0)
        if (px2 == 1 or (px2 == 2 and b == 1)) and j % 2 == 1:
            hh = (j % 4) // 2
            it.append(lambda b=b, hh=hh: A.vmem(f"buffer_store_dwordx2 {vr(WA+16*b+2*hh,2)}, v{vPS}, {WS}, s{sP+b} offen offset:{8*hh}{st}", "ps"))
        elif j % 4 == 3:
            it.append(lambda b=b: A.vmem(f"buffer_store_dwordx4 {vr(WA+16*b,4)}, v{vPS}, {WS}, s{sP+b} offen{st}{cfg.get('fs','')}", "ps"))
        tails.append((2 * j + 3, it))
    pend = []
    A.wl(("of", 1))
    for i, (j, t) in enumerate(seq):
        key = ('O', j, t)
        while tails and tails[0][0] <= i:
            pend += tails.pop(0)[1]
        it = []
        if wol and (len(wol) > 4 or i >= 1):
            it.append(pop(wol))
        if i == 3:
            it.append(lambda: A.wl("wo2"))
        if i == 7:
            it.append(lambda: A.wl("wo4"))
        if i == 11:
            it.append(lambda: A.wl("wo6"))
        smf(A, WA + 4 * j, OA + 4 * t, loc.get(key) or RFF[key])
        for f in it:
            emit(A, f)
        n = {0: 2 if (i & 1) else 1, 1: 2, 2: 1 if i < 9 else 2, 3: 1 if (i & 1) else 2}[cfg.get('wtv', 3)]
        if cfg.get('wp'):
            n = int(cfg['wp'][i])
        nlast = 0
        while pend and (n > 0 or not isvalu(pend[0])):
            f = pend.pop(0)
            emit(A, f)
            n -= 1
            nlast += 1
        stamp(A, cfg, f'w{i}')
    n = nlast
    for f in pend:
        emit(A, f); n += 1
    A.nop(max(0, 8 - n))
    for f in tails.pop(0)[1]:
        emit(A, f)
    assert not tails
    stamp(A, cfg, 5)
    A(f"s_cmp_lg_u32 s{S_W}, 0\ns_cbranch_scc1 {Lg}_other\ns_branch {Lg}")
    A.label(Lg + "_last")
    if cfg.get('lite'):
        A(f"s_lshl_b32 s16, s{S_ID}, 2\ns_add_u32 s16, s16, s{S_W}\ns_lshl_b32 s16, s16, 8\ns_add_u32 s16, s16, 0x120000\nbuffer_store_dword v{VB+15}, v{TT+2}, {WS}, s16 offen")
    if cfg.get('tot'):
        A(f"""
        s_memtime s[16:17]
        s_memrealtime s[18:19]
        s_waitcnt lgkmcnt(0)
        s_sub_u32 s16, s16, s12
        s_sub_u32 s18, s18, s14
        v_mov_b32 v{TT}, s16
        v_mov_b32 v{TT+1}, s18
        s_lshl_b32 s16, s{S_ID}, 3
        s_add_u32 s16, s16, 0x11c000
        buffer_store_dwordx2 {vr(TT,2)}, v{vZ}, {WS}, s16 offen
        """)
        if cfg.get('dbgt'):
            A(f"""
            s_sub_u32 s14, s14, s100
            v_mov_b32 v{TT+3}, s14
            v_mov_b32 v{TT+2}, 36
            s_mov_b64 exec, 1
            global_atomic_umax v{TT+2}, v{TT+3}, s[{S_DBG}:{S_DBG+1}]
            global_atomic_umax v{TT+2}, v{TT+1}, s[{S_DBG}:{S_DBG+1}] offset:4
            global_atomic_umax v{TT+2}, v{TT}, s[{S_DBG}:{S_DBG+1}] offset:8
            s_mov_b64 exec, -1
            v_lshrrev_b32 v{TT+2}, 2, v{vL16}
            """)
    A.lg = ["gw", "gw"]
    A.vm = ["poll"] * 4
    mf, pub, side, _ = qkv_phases(True)
    A(f"v_lshrrev_b32 v{vL4}, 2, v{vL16}")
    weave(A, mf, pairfold(AK) + pub, per=1, lead=2)
    A.nop(8)
    A("\n".join(v_convert()))
    for f in v_publish(sKM):
        emit(A, f)
    A(f"""
    v_mov_b32 v{TT}, 64
    s_waitcnt vmcnt(0)
    s_barrier
    buffer_store_dword v{TT}, v{vZ+1}, {WS}, s{sProg} offen sc1
    s_waitcnt vmcnt(0)
    s_branch L_end
    """)
    A.label(Lg + "_other")
    house()
    pre_step(A)
    hop_addr(A)
    if cfg.get('lite'):
        A(("s_memrealtime s[12:13]\ns_waitcnt lgkmcnt(0)\ns_sub_u32 s12, s12, s100" if cfg['lite'] == 1 else "s_memtime s[12:13]\ns_waitcnt lgkmcnt(0)\ns_lshr_b32 s12, s12, 5") + f"\ns_and_b32 s12, s12, 0x3fff\ns_mov_b32 m0, s{sStep}\nv_writelane_b32 v{VB+15}, s12, m0")
    A(f"s_branch {Lg}_bar")
    A(f"""
    {slowlab}:
    s_add_u32 s{sT}, s{sStep}, 1
    s_and_b32 s{sT}, s{sT}, {(1 << LJ[0]) - 1}
    s_lshl_b32 s{sT}, s{sT}, 7
    s_add_u32 s{sT}, s{sT}, s{sFLc}
    {slowlab}_l:
    {GUARD}
    buffer_load_dword v{vFL}, v{vZ}, {WS}, s{sT} offen sc1
    s_waitcnt vmcnt(0)
    v_readfirstlane_b32 s{sF0}, v{vFL}
    s_cmp_le_u32 s{sF0}, s{sNeed}
    s_cbranch_scc1 {slowlab}_l
    s_branch {slowlab}_ret
    {Lg}_nan:
    {GUARD}
    s_mov_b32 s{sT+2}, {SENT_P:#x}
    s_mov_b64 s[{sT}:{sT+1}], 0
    s_waitcnt vmcnt(0)
    """)
    for i in range(32):
        A(f"v_cmp_eq_u32 vcc, s{sT+2}, v{MF+i}\ns_or_b64 s[{sT}:{sT+1}], s[{sT}:{sT+1}], vcc")
    A(f"""
    s_cmp_eq_u64 s[{sT}:{sT+1}], 0
    s_cbranch_scc1 {Lg}_acc
    """)
    rround()
    A(f"s_branch {Lg}_red\n{Lg}_acc:")
    for u in range(8):
        A(f"v_mfma_f32_16x16x32_bf16 {vr(TT,4)}, {vr(vSEL,4)}, {vr(MF+4*u,4)}, {'0' if u==0 else vr(TT,4)}")
    A(f"""
    s_nop 7
    v_cvt_pk_bf16_f32 v{TT}, v{TT}, v{TT+1}
    v_cvt_pk_bf16_f32 v{TT+1}, v{TT+2}, v{TT+3}
    v_min_u32 v{TT}, -2, v{TT}
    v_min_u32 v{TT+1}, -2, v{TT+1}
    s_branch {Lg}_ok
    """)


def chain(A, cfg):
    LJ[0] = cfg.get('lj', 2)
    chain_startup(A, cfg)
    A(f"s_mov_b32 s{sT+8}, s{sKM}\ns_mov_b32 s{sT+11}, 0\ns_mov_b32 s{sT+5}, {MRING:#x}")
    A(f"s_cmp_lt_u32 s{sT+7}, 32\ns_cbranch_scc1 Lchain_slow")
    if cfg.get('tot'):
        A("s_memtime s[12:13]\ns_memrealtime s[14:15]\ns_waitcnt lgkmcnt(0)")
    if cfg.get('forceslow'):
        A("s_branch Lchain_slow")
    chain_loop(A, cfg, 'fast')
    chain_loop(A, cfg, 'slow')
```

```python
from common import *
import common

WS = WSR
sDa, sDb = 60, 64
sOa, sOb = 68, 69
sW10 = 70
sSt, sFl, sXo, sI = 71, 72, 73, 74
sBI = 99
LJ = [2]
sT = 76
sR = [88, 89, 90, 91, 92, 93, 10, 11]


def wstamp(A, cfg, k, vtmp=126, wave=0, cyc=False):
    if cfg.get('wdiag'):
        lab = A.uid("Lst")
        A(f"""
        s_cmp_lg_u32 s{S_W}, {wave}
        s_cbranch_scc1 {lab}
        {'s_memtime' if cyc else 's_memrealtime'} s[96:97]
        s_lshl_b32 s98, s{S_ID}, 7
        s_add_u32 s98, s98, {0x110000 + 4*k:#x}
        s_waitcnt lgkmcnt(0)
        v_mov_b32 v{vtmp}, s96
        v_mov_b32 v{vtmp+1}, 0
        buffer_store_dword v{vtmp}, v{vtmp+1}, {WS}, s98 offen
        {lab}:
        """)


vSolo, vT0, vSt, vZero, vOne, vXr, vL16, vDm = 3, 4, 6, 8, 9, 10, 11, 12
FB = 16
SG = 32
ACC = 48


def wait_checked(A, uid, load, want, lds):
    A(f"""
    {uid}_o:
    s_cmp_lg_u32 s{S_W}, 0
    s_cbranch_scc1 {uid}_x
    s_mov_b32 s{sT+1}, 0
    {uid}:
    {GUARD}
    {load}
    s_waitcnt vmcnt(0)
    v_cmp_ne_u32 vcc, {want}, v112
    s_cbranch_vccz {uid}_y
    s_sleep 4
    s_add_u32 s{sT+1}, s{sT+1}, 1
    s_cmp_lt_u32 s{sT+1}, 32
    s_cbranch_scc1 {uid}
    {uid}_y:
    v_mov_b32 v112, s{sT+1}
    v_mov_b32 v114, {lds:#x}
    ds_write_b32 v114, v112
    {uid}_x:
    v_mov_b32 v114, {lds:#x}
    s_waitcnt vmcnt(0) lgkmcnt(0)
    s_barrier
    ds_read_b32 v112, v114
    s_waitcnt lgkmcnt(0)
    v_readfirstlane_b32 s{sT+1}, v112
    s_cmp_lt_u32 s{sT+1}, 32
    s_cbranch_scc1 {uid}_d
    """)
    common.validate(A, 116)
    A(f"s_barrier\ns_branch {uid}_o\n{uid}_d:")


def ln_flag_base(A, dst, off=0):
    A(f"s_lshr_b32 s{dst}, s{S_T}, 7\ns_and_b32 s{dst}, s{dst}, 32\ns_add_u32 s{dst}, s{dst}, {F_LN+off:#x}")


def wait_ln(A, uid, off=0, checked=False):
    A("v_and_b32 v113, 7, v0\nv_lshlrev_b32 v113, 2, v113")
    ln_flag_base(A, sT, off)
    load = f"buffer_load_dword v112, v113, {WS}, s{sT} offen sc1"
    if checked:
        wait_checked(A, uid, load, "0x01010101", 0x20000)
        return
    A(f"""
    s_cmp_lg_u32 s{S_W}, 0
    s_cbranch_scc1 {uid}_x
    {uid}:
    {GUARD}
    {load}
    s_waitcnt vmcnt(0)
    v_cmp_ne_u32 vcc, 0x01010101, v112
    s_cbranch_vccz {uid}_x
    s_sleep 8
    s_branch {uid}
    {uid}_x:
    s_waitcnt vmcnt(0)
    s_barrier
    """)


def ln_rows(A, cfg):
    A(f"""
    v_lshrrev_b32 v12, 3, v1
    v_and_b32 v13, 7, v1                   ; j
    s_lshl_b32 s{sT+2}, s{sT}, 16
    s_lshl_b32 s{sT+3}, s{S_W}, 14
    s_add_u32 s{sT+2}, s{sT+2}, s{sT+3}
    v_lshlrev_b32 v14, 10, v12
    v_lshl_add_u32 v14, v13, 4, v14
    v_add_u32 v14, s{sT+2}, v14            ; row*1024 + j*16
    v_add_u32 v128, 0x2000, v14
    """)
    for g in range(2):
        for i in range(8):
            A(f"buffer_load_dwordx4 {vr(32+32*g+4*i,4)}, v{14 if g == 0 else 128}, s[{S_X}:{S_X+3}], 0 offen offset:{i*128}")
    A(f"""
    s_lshl_b32 s{sT+2}, s{sT}, 16
    s_lshr_b32 s{sT+3}, s{S_W}, 1
    s_lshl_b32 s{sT+3}, s{sT+3}, 15
    s_add_u32 s{sT+2}, s{sT+2}, s{sT+3}
    s_and_b32 s{sT+3}, s{S_W}, 1
    s_lshl_b32 s{sT+3}, s{sT+3}, 8
    s_add_u32 s{sT+2}, s{sT+2}, s{sT+3}
    s_add_u32 s{sT+2}, s{sT+2}, {WS_XN:#x}
    v_lshrrev_b32 v15, 1, v13
    v_lshlrev_b32 v15, 10, v15
    v_and_b32 v16, 1, v13
    v_lshl_add_u32 v15, v16, 9, v15
    v_lshl_add_u32 v15, v12, 4, v15
    """)
    A(f"""
    v_mov_b32 v196, 0x7f817f81
    v_mov_b32 v197, 0x7f817f81
    v_mov_b32 v198, 0x7f817f81
    v_mov_b32 v199, 0x7f817f81
    v_mov_b32 v200, -1
    s_lshl_b32 s{sT+4}, s{sT}, 15
    s_lshl_b32 s{sT+5}, s{S_W}, 13
    s_add_u32 s{sT+4}, s{sT+4}, s{sT+5}
    s_add_u32 s{sT+4}, s{sT+4}, {PRING:#x}
    s_add_u32 s{sT+5}, s{sT+4}, 0x1000
    s_lshl_b32 s{sT+6}, s{sT}, 10
    s_lshl_b32 s{sT+7}, s{S_W}, 8
    s_add_u32 s{sT+6}, s{sT+6}, s{sT+7}
    s_add_u32 s{sT+6}, s{sT+6}, {MRING:#x}
    v_lshrrev_b32 v201, 2, v{vL16}
    """)
    ring = [f"buffer_store_dwordx4 v[196:199], v{vL16}, {WS}, s{sT+4+i//4} offen offset:{(i&3)*1024} sc1" for i in range(8)]
    ring.append(f"buffer_store_dword v200, v201, {WS}, s{sT+6} offen sc1")
    ring.append(f"s_lshl_b32 s{sT+6}, s{sT}, 13\ns_lshl_b32 s{sT+7}, s{S_W}, 10\ns_add_u32 s{sT+6}, s{sT+6}, s{sT+7}\n"
                f"s_add_u32 s{sT+6}, s{sT+6}, {WS_KVM + (62 << 18):#x}\ns_add_u32 s{sT+7}, s{sT+6}, {1 << 18:#x}")
    ring.append(f"buffer_store_dwordx4 v[196:199], v{vL16}, {WS}, s{sT+6} offen sc1")
    ring.append(f"buffer_store_dwordx4 v[196:199], v{vL16}, {WS}, s{sT+7} offen sc1")
    for g in range(2):
        A(f"s_waitcnt vmcnt({8 if g == 0 else 8})")
        layernorm8(A, 32 + 32 * g, 132 + 32 * g, 16)
        for i in range(8):
            A(f"s_add_u32 s{sT+3}, s{sT+2}, {i*4096}")
            A(f"buffer_store_dwordx4 {vr(132+32*g+4*i,4)}, v15, {WS}, s{sT+3} offen offset:{g*128} sc1")
    A("\n".join(ring))
    common.wait_zero(A, 116)
    ln_flag_base(A, sT + 4)
    A(f"""
    s_barrier
    s_add_u32 s{sT}, s{sT}, s{sT+4}
    buffer_store_byte v{vOne}, v{vSolo}, {WS}, s{sT} offen sc1
    """)
    wstamp(A, cfg, 5)
    A(f"s_mov_b32 s{sT+3}, {WS_H:#x}")
    for g in range(2):
        layernorm8(A, 132 + 32 * g, 32 + 32 * g, 16)
        for i in range(8):
            A(f"buffer_store_dwordx4 {vr(32+32*g+4*i,4)}, v{14 if g == 0 else 128}, {WS}, s{sT+3} offen offset:{i*128} sc1")
    A(f"""
    s_waitcnt vmcnt(0)
    s_barrier
    buffer_store_byte v{vOne}, v{vSolo}, {WS}, s{sT} offen offset:128 sc1
    """)


def xn_dma(A, slot):
    out = []
    for i in range(8):
        def f(i=i):
            A(f"s_add_u32 m0, s{sW10}, {slot*32768 + i*4096:#x}")
            A(f"s_add_u32 s{sT+8}, s{sXo}, s{sR[i]}")
            A.vmem(f"buffer_load_dwordx4 v{vL16}, {WS}, s{sT+8} offen lds", "xn")
        out.append(f)
    return out


def tile_loop(A, cfg, vtype):
    L = "L_p2v" if vtype else "L_p2k"
    A.label(L)

    def rd(par, u):
        A.ds(f"ds_read_b128 {vr(FB+4*(u&3),4)}, v{vXr} offset:{par*32768 + u*1024}", ("x", u & 3))

    def epilogue(acc):
        ins = []
        for ctl in range(2):
            for a in range(2):
                for i in range(4):
                    p, q = (8 * a + 2 * i, 8 * a + 2 * i + 1) if vtype else (8 * a + i, 8 * a + 4 + i)
                    ins.append(f"v_cvt_pk_bf16_f32 v{SG+8*ctl+4*a+i}, v{acc+16*ctl+p}, v{acc+16*ctl+q}")
                if not cfg.get('nost'): ins.append(lambda ctl=ctl, a=a: A.vmem(
                    f"buffer_store_dwordx4 {vr(SG+8*ctl+4*a,4)}, v{vSt+a}, {WS}, s{sSt} offen offset:{ctl*2048} sc1", "st"))
        return ins

    tight = []
    for par in range(2):
        acc = ACC + 32 * par
        epi = epilogue(ACC + 32 * (1 - par))
        dma = []
        for u in range(32):
            if u == 24:
                tl = A.uid("Ltight")
                if par == 1:
                    A(f"s_cmp_eq_u32 s{sI}, 0\ns_cbranch_scc1 {tl}")
                    tight.append(tl)
                if cfg.get('wdiag'):
                    A(f"""
                    s_memtime s[{sT}:{sT+1}]
                    s_waitcnt vmcnt(13) lgkmcnt(0)
                    s_memtime s[{sT+2}:{sT+3}]
                    s_barrier
                    s_waitcnt lgkmcnt(0)
                    s_memtime s[{sT+4}:{sT+5}]
                    s_sub_u32 s{sT}, s{sT+2}, s{sT}
                    s_add_u32 s94, s94, s{sT}
                    s_waitcnt lgkmcnt(0)
                    s_sub_u32 s{sT}, s{sT+4}, s{sT+2}
                    s_add_u32 s95, s95, s{sT}
                    """)
                else:
                    A("s_waitcnt vmcnt(13)\ns_barrier")
                A(f"""
                buffer_store_dword v117, v116, {WS}, s{sFl} offen sc1
                {tl}_ret:
                v_add_u32 v117, 1, v117
                s_add_u32 s{sSt}, s{sSt}, {0x40000 << LJ[0]:#x}
                v_mov_b32 v{vSt}, v112
                v_mov_b32 v{vSt+1}, v113
                """)
                A(f"s_xor_b32 s{sW10}, s{sW10}, 0x10000" if par == 1 else "")
                dma = xn_dma(A, 1 - par)
            A.wl(("x", u & 3))
            for ctl in range(2):
                w = ar((ctl * 32 + u) * 4, 4)
                x = vr(FB + 4 * (u & 3), 4)
                a_, b_ = (x, w) if vtype else (w, x)
                c = "0" if u == 0 else vr(acc + 16 * ctl, 16)
                A(f"v_mfma_f32_32x32x16_bf16 {vr(acc+16*ctl,16)}, {a_}, {b_}, {c}")
                if ctl == 0:
                    if u == 29 and par == 1:
                        A(f"v_xor_b32 v{vXr}, 0x10000, v{vXr}")
                    n = u + 3
                    rd(par if n < 32 else 1 - par, n & 31)
                    if dma:
                        dma.pop(0)()
                if u >= 1:
                    for _ in range(2):
                        if epi:
                            f = epi.pop(0)
                            f() if callable(f) else A(f)
            if u == 31:
                A(f"s_add_u32 s{sXo}, s{sXo}, {0x8000 << LJ[0]:#x}")
    A(f"""
    s_add_u32 s{sI}, s{sI}, 2
    s_cmp_lt_u32 s{sI}, {64 >> LJ[0]}
    s_cbranch_scc1 {L}
    """)
    A.nop(12)
    for f in epilogue(ACC + 32):
        f() if callable(f) else A(f)
    A(f"""
    s_waitcnt vmcnt(0) lgkmcnt(0)
    s_barrier
    v_mov_b32 v117, {64 >> LJ[0]}
    buffer_store_dword v117, v116, {WS}, s{sFl} offen sc1
    s_branch L_p2_done
    {tight[0]}:
    s_waitcnt vmcnt(0)
    s_barrier
    v_mov_b32 v116, v118
    buffer_store_dword v{vOne}, v116, {WS}, s{sFl} offen sc1
    s_branch {tight[0]}_ret
    """)


def p2(A, cfg):
    LJ[0] = cfg.get('lj', 2)
    A.c("===== worker P2: K/V/Q projections (weights resident, tokens streamed) =====")
    A(f"""
    v_and_b32 v1, 63, v0
    v_lshlrev_b32 v{vL16}, 4, v1
    v_mov_b32 v{vZero}, 0
    v_mov_b32 v{vOne}, 1
    s_lshl_b32 s{sT}, s{S_W}, 6
    v_or_b32 v2, s{sT}, v1
    v_bfrev_b32 v{vSolo}, 1
    v_cmp_eq_u32 vcc, 0, v2
    s_nop 1
    v_cndmask_b32 v{vSolo}, v{vSolo}, v{vZero}, vcc
    s_mul_i32 s{sT}, s{S_ID}, 9363
    s_lshr_b32 s{sT}, s{sT}, 16                ; rank / 7
    s_mul_i32 s{sT+1}, s{sT}, 7
    s_sub_u32 s{sT+1}, s{S_ID}, s{sT+1}        ; rank % 7
    s_mov_b32 s{sBI}, s{sT}
    s_cmp_eq_u32 s{sT+1}, 6
    s_cbranch_scc1 L_p2_idle
    s_mul_i32 s{sT}, s{sT}, 6
    s_add_u32 s{sT}, s{sT}, s{sT+1}
    s_mov_b32 s{sT+11}, s{sT}
    s_lshr_b32 s{sT+2}, s{sT}, 2
    s_and_b32 s{sT+3}, s{sT}, 3                ; j
    s_lshl1_add_u32 s{sBI}, s{sT+2}, s{sT+3}
    s_add_u32 s{sBI}, s{sBI}, 30
    s_cmp_ge_u32 s{sT+3}, {1 << LJ[0]}
    s_cbranch_scc1 L_p2_skip
    s_mov_b32 s{sBI}, -1
    s_mov_b32 s{sDa+2}, {512*4096*2:#x}
    s_mov_b32 s{sDa+3}, 0x20000
    s_mov_b32 s{sDb+2}, {512*4096*2:#x}
    s_mov_b32 s{sDb+3}, 0x20000
    s_sub_u32 s{sT+4}, s{sT+2}, 32
    s_lshl_b32 s{sT+4}, s{sT+4}, 1
    s_add_u32 s{sT+5}, s{sT+4}, 1
    s_cmp_lt_u32 s{sT+2}, 32
    s_cselect_b64 s[{sDa}:{sDa+1}], s[{S_WK}:{S_WK+1}], s[{S_WQ}:{S_WQ+1}]
    s_cselect_b64 s[{sDb}:{sDb+1}], s[{S_WV}:{S_WV+1}], s[{S_WQ}:{S_WQ+1}]
    s_cselect_b32 s{sT+4}, s{sT+2}, s{sT+4}
    s_cselect_b32 s{sT+5}, s{sT+2}, s{sT+5}
    s_cselect_b32 s{sT+7}, 1, 3
    s_cselect_b32 s{sT+9}, 2, 3
    s_lshl_b32 s{sOa}, s{sT+4}, 8
    s_lshl_b32 s{sOb}, s{sT+5}, 8
    s_cmp_lt_u32 s{S_W}, 2
    s_cselect_b32 s{sT+4}, s{sT+4}, s{sT+5}
    s_cselect_b32 s{sT+7}, s{sT+7}, s{sT+9}
    s_lshl_b32 s{sSt}, s{sT+7}, 24
    s_lshl_b32 s{sT+9}, s{sT+3}, 18
    s_add_u32 s{sSt}, s{sSt}, s{sT+9}
    s_lshl_b32 s{sT+9}, s{sT+4}, 13
    s_add_u32 s{sSt}, s{sSt}, s{sT+9}
    s_and_b32 s{sT+9}, s{S_W}, 1
    s_lshl_b32 s{sT+9}, s{sT+9}, 12
    s_add_u32 s{sSt}, s{sSt}, s{sT+9}
    s_sub_u32 s{sSt}, s{sSt}, {0x40000 << LJ[0]:#x}
    s_lshl_b32 s{sFl}, s{sT+11}, 7
    s_add_u32 s{sFl}, s{sFl}, {F_P2:#x}
    s_lshl_b32 s{sW10}, s{S_W}, 10
    s_lshl_b32 s{sXo}, s{sT+3}, 15
    s_add_u32 s{sXo}, s{sXo}, s{sW10}
    s_add_u32 s{sXo}, s{sXo}, {WS_XN:#x}
    s_mov_b32 s{sI}, 0
    s_mov_b32 s{sT+10}, s{sT+7}
    v_and_b32 v80, 15, v1              ; n
    v_lshrrev_b32 v81, 4, v1           ; g
    v_lshlrev_b32 v82, 2, v81
    v_xor_b32 v82, v80, v82
    v_lshlrev_b32 v82, 4, v82
    s_lshl_b32 s{sT}, s{S_W}, 2
    v_add_u32 v83, s{sT}, v81
    v_lshl_add_u32 v{vDm}, v83, 13, v82
    v_add_u32 v{vDm+1}, 0x20000, v{vDm}
    v_add_u32 v{vDm+2}, 0x40000, v{vDm}
    v_add_u32 v{vDm+3}, 0x60000, v{vDm}
    """)
    for p in range(8):
        A(f"s_lshl{3-LJ[0]}_add_u32 s{sT}, s{sT+3}, {p}\ns_and_b32 s{sT}, s{sT}, 7\ns_lshl_b32 s{sR[p]}, s{sT}, 12" if not cfg.get('norot') else f"s_mov_b32 s{sR[p]}, {p*4096}")
    chunks = [(mh, t) for t in range(8) for mh in range(2)]

    def issue(ci):
        mh, t = chunks[ci]
        srd, so = (sDa, sOa) if mh == 0 else (sDb, sOb)
        A(f"s_lshl_b32 s{sT+8}, s{sR[t]}, 7\ns_add_u32 s{sT+8}, s{sT+8}, s{so}")
        for i in range(4):
            A(f"s_add_u32 m0, s{sW10}, {(2 + (ci & 7))*16384 + i*4096:#x}\ns_nop 0")
            A.vmem(f"buffer_load_dwordx4 v{vDm+i}, s[{srd}:{srd+3}], s{sT+8} offen lds", ("ch", ci))
    if cfg.get('zfirst', 1):
        common.wait_zero(A, 116)
        wstamp(A, cfg, 10)
    A.vm = []
    for ci in range(8):
        issue(ci)
    wstamp(A, cfg, 6)
    A(f"""
    v_lshrrev_b32 v87, 5, v1           ; hf
    v_lshrrev_b32 v82, 2, v80          ; r
    v_and_b32 v83, 3, v80              ; c
    v_lshl_add_u32 v84, v87, 3, v82
    v_lshlrev_b32 v84, 8, v84
    v_lshl_add_u32 v84, v82, 6, v84
    v_and_b32 v85, 1, v81
    v_lshl_add_u32 v84, v85, 5, v84
    v_lshl_add_u32 v84, v83, 3, v84
    s_and_b32 s{sT}, s{S_W}, 1
    s_lshl_b32 s{sT}, s{sT}, 7
    v_xor_b32 v{vT0}, s{sT}, v84
    v_xor_b32 v{vT0+1}, 64, v{vT0}
    v_and_b32 v88, 31, v1
    v_lshlrev_b32 v84, 10, v87
    v_lshl_add_u32 v84, v88, 4, v84
    s_cmp_eq_u32 s{sT+10}, 2
    s_cselect_b64 vcc, -1, 0
    s_movk_i32 s{sT+1}, 0x400
    s_cselect_b32 s{sT}, 512, s{sT+1}
    v_cndmask_b32 v112, v{vL16}, v84, vcc
    v_add_u32 v113, s{sT}, v112
    v_bfrev_b32 v{vSt}, 1
    v_bfrev_b32 v{vSt+1}, 1
    v_mov_b32 v{vXr}, v{vL16}
    """)
    A("v_mov_b32 v110, v112\nv_mov_b32 v111, v113")
    if not cfg.get('zfirst', 1):
        common.wait_zero(A, 116)
        wstamp(A, cfg, 10)
    ln_flag_base(A, sT)
    A(f"s_lshr_b32 s{sT+1}, s{sXo}, 16\ns_and_b32 s{sT+1}, s{sT+1}, 1\ns_add_u32 s{sT}, s{sT}, s{sT+1}")
    wait_checked(A, "L_p2_t0", f"buffer_load_ubyte v112, v{vZero}, {WS}, s{sT} offen sc1", "1", 0)
    A("s_barrier")
    wstamp(A, cfg, 7)
    A.vm = []
    for f in xn_dma(A, 0):
        f()
    A(f"s_add_u32 s{sXo}, s{sXo}, {0x8000 << LJ[0]:#x}")
    for ci in range(16):
        mh, t = chunks[ci]
        A.wv(("ch", ci))
        A("s_barrier")
        lab = A.uid("Lskw")
        A(f"s_cmp_{'ge' if mh == 0 else 'lt'}_u32 s{S_W}, 2\ns_cbranch_scc1 {lab}")
        sb = (2 + (ci & 7)) * 16384
        hi = sb & ~0xffff
        for ctl in range(2):
            A(f"v_add_u32 v86, {hi:#x}, v{vT0+ctl}")
            for kk in range(4):
                for hh in range(2):
                    A(f"ds_read_b64_tr_b16 {ar((ctl*32+4*t+kk)*4+2*hh,2)}, v86 offset:{sb-hi+kk*4096+hh*1024}")
        A("s_waitcnt lgkmcnt(0)")
        A.label(lab)
        if ci < 8:
            A("s_barrier")
            issue(ci + 8)
        if ci == 7:
            wstamp(A, cfg, 8)
    wstamp(A, cfg, 1)
    wait_ln(A, "L_p2_lnall", checked=True)
    A.vm = []
    for f in xn_dma(A, 1):
        f()
    A(f"s_add_u32 s{sXo}, s{sXo}, {0x8000 << LJ[0]:#x}")
    A(f"buffer_load_dword v119, v{vZero}, {WS}, 0 offen")
    for f in xn_dma(A, 2):
        f()
    A(f"""
    s_add_u32 s{sXo}, s{sXo}, {0x8000 << LJ[0]:#x}
    v_mov_b32 v112, v110
    v_mov_b32 v113, v111
    v_bfrev_b32 v116, 1
    v_mov_b32 v117, -1
    v_mov_b32 v118, v{vSolo}
    s_xor_b32 s{sW10}, s{sW10}, 0x10000
    """)
    for u in range(3):
        A.ds(f"ds_read_b128 {vr(FB+4*u,4)}, v{vXr} offset:{u*1024}", ("x", u))
    wstamp(A, cfg, 2)
    if cfg.get('dbgs'):
        A(f"s_memrealtime s[96:97]\ns_waitcnt lgkmcnt(0)\ns_sub_u32 s96, s96, s100\nv_mov_b32 v126, s96\nv_mov_b32 v127, 60\ns_mov_b64 exec, 1\nglobal_atomic_umax v127, v126, s[{S_DBG}:{S_DBG+1}]\ns_mov_b64 exec, -1")
    wstamp(A, cfg, 12, cyc=True)
    A('s_mov_b32 s94, 0\ns_mov_b32 s95, 0')
    lg0 = list(A.lg)
    A(f"s_cmp_eq_u32 s{sT+10}, 2\ns_cbranch_scc1 L_p2v")
    tile_loop(A, cfg, False)
    A.lg = list(lg0)
    tile_loop(A, cfg, True)
    A.label("L_p2_skip")
    common.wait_zero(A, 116)
    A("s_branch L_p2_done")
    A.label("L_p2_idle")
    ln_rows(A, cfg)
    wstamp(A, cfg, 4)
    A.label("L_p2_done")
    common.validate(A, 116)
    wstamp(A, cfg, 3)
    wstamp(A, cfg, 13, cyc=True)
    if cfg.get('wdiag'):
        A(f"v_mov_b32 v124, s94\nv_mov_b32 v125, s95\nv_mov_b32 v126, 0\ns_lshl_b32 s98, s{S_ID}, 7\ns_lshl3_add_u32 s98, s{S_W}, s98\ns_add_u32 s98, s98, {0x110000+64:#x}\nbuffer_store_dwordx2 v[124:125], v126, {WS}, s98 offen")


def worker(A, cfg):
    if cfg.get('wdiag'):
        A(f"s_lshl_b32 s98, s{S_ID}, 7\ns_add_u32 s98, s98, 0x110000\nv_mov_b32 v124, s94\nv_mov_b32 v125, 0\nbuffer_store_dword v124, v125, {WS}, s98 offen")
    wstamp(A, cfg, 9)
    p2(A, cfg)
    if cfg.get('stop') == 2:
        A("s_waitcnt vmcnt(0)\ns_branch L_end")
        return
    import importlib
    importlib.import_module(cfg.get('w2mod', 'worker2')).p345(A, cfg)
```

```python
import sys, json
from common import *
import chain as chain_mod
import common

HEADER = open('parallel_sum__memory_aug_recurrent_mem_tr__mixer_token_mlp__prompt.s.ref').read().split("; Override launch")[0]


def prologue(A, cfg):
    A(f"""
    s_cmp_ge_u32 s2, 256
    s_cbranch_scc1 L_end
    """)
    if cfg.get('wdiag') or cfg.get('dbgt') or cfg.get('dbgs') or cfg.get('lite'):
        A("s_memrealtime s[94:95]")
    build_srds(A)
    if cfg.get('wdiag') or cfg.get('dbgt') or cfg.get('dbgs') or cfg.get('lite'):
        A("s_mov_b32 s100, s94")
    DBG = f"s[{S_DBG}:{S_DBG+1}]"
    A(f"""
    s_mov_b32 s{S_SPIN}, 0
    s_getreg_b32 s{S_XCC}, hwreg(HW_REG_XCC_ID, 0, 4)
    {'s_xor_b32 s58, s58, ' + str(cfg['xccx']) if cfg.get('xccx') else ''}
    v_lshrrev_b32 v1, 6, v0
    v_and_b32 v2, 63, v0
    s_nop 0
    v_readfirstlane_b32 s{S_W}, v1
    s_add_u32 s{S_XCC}, s{S_XCC}, 1
    v_mov_b32 v16, 0
    s_cmp_lg_u32 s{S_W}, 0
    s_cbranch_scc1 L_role_wait
    s_cmp_ge_u32 s2, 8
    s_cbranch_scc1 L_role_wait
    """)
    if not cfg.get('chain_only'):
        A(f"""
        v_lshlrev_b32 v8, 4, v2
        v_mov_b32 v17, 0
        v_mov_b32 v18, 0
        v_mov_b32 v19, 0
        s_lshl_b32 s61, s2, 13
        s_add_u32 s62, s61, 0x1000
        """)
        for i in range(8):
            A(f"buffer_store_dwordx4 v[16:19], v8, {WSR}, s{61 + i//4} offen offset:{(i&3)*1024} sc1")
    A(f"""
    s_lshl_b32 s61, s2, 2
    v_mov_b32 v3, s61
    v_mov_b32 v4, 1
    s_waitcnt vmcnt(0)
    s_mov_b64 exec, 1
    global_store_dword v3, v4, {DBG} sc1
    s_mov_b64 exec, -1
    L_role_wait:
    s_lshr_b32 s60, s2, 3
    s_sub_u32 s61, s{S_XCC}, 1
    s_and_b32 s61, s61, 7
    s_lshl_b32 s61, s61, 5
    s_add_u32 s{S_ID}, s60, s61
    s_mov_b32 s{S_T}, 0
    L_dispatch:
    s_cmp_ge_u32 s{S_ID}, 32
    s_cbranch_scc1 L_worker
    """)


def zero_load(A, v):
    A(f"""
    v_mbcnt_lo_u32_b32 v{v+1}, -1, 0
    v_and_b32 v{v+1}, 7, v{v+1}
    v_lshlrev_b32 v{v+1}, 2, v{v+1}
    global_load_dword v{v}, v{v+1}, s[{S_DBG}:{S_DBG+1}] sc1
    """)


def announce(A, v):
    u = A.uid("Lann")
    A(f"""
    s_cmp_lg_u32 s{S_W}, 0
    s_cbranch_scc1 {u}
    s_lshr_b32 s3, s2, 3
    s_lshl_b32 s3, s3, 7
    s_and_b32 vcc_lo, s2, 7
    s_add_u32 s3, s3, vcc_lo
    s_add_u32 s3, s3, {F_TAB:#x}
    v_mov_b32 v{v}, s3
    v_mov_b32 v{v+1}, s{S_XCC}
    s_mov_b64 exec, 1
    buffer_store_byte v{v+1}, v{v}, {WSR}, 0 offen sc1
    s_mov_b64 exec, -1
    {u}:
    """)


def wait_zero(A, v):
    u = A.uid("Lwz")
    A(f"{u}:\n{GUARD}")
    zero_load(A, v)
    A(f"s_waitcnt vmcnt(0)\nv_cmp_ne_u32 vcc, 1, v{v}\ns_cbranch_vccnz {u}")
    announce(A, v)


def table_load(A, dst, t):
    A(f"""
    v_mbcnt_lo_u32_b32 v{t}, -1, 0
    v_lshlrev_b32 v{t}, 7, v{t}
    v_and_b32 v{t}, 0xf80, v{t}
    v_add_u32 v{t}, {F_TAB:#x}, v{t}
    buffer_load_dwordx2 {dst}, v{t}, {WSR}, 0 offen sc1
    """)


def validate(A, v, preloaded=False):
    u = A.uid("Lval")
    if preloaded:
        A(f"s_branch {u}_chk")
    A(f"{u}:\n{GUARD}")
    table_load(A, vr(v, 2), v + 2)
    A(f"s_waitcnt vmcnt(0)\n{u}_chk:")
    for b in range(8):
        A(f"v_bfe_u32 v{v+2+b}, v{v + b//4}, {8*(b&3)}, 5")
    A(f"""
    v_min3_u32 v{v+10}, v{v+2}, v{v+3}, v{v+4}
    v_min3_u32 v{v+10}, v{v+10}, v{v+5}, v{v+6}
    v_min3_u32 v{v+10}, v{v+10}, v{v+7}, v{v+8}
    v_min_u32 v{v+10}, v{v+10}, v{v+9}
    v_cmp_eq_u32 vcc, 0, v{v+10}
    s_cbranch_vccnz {u}
    s_mov_b32 s3, s{S_T}
    s_cmp_lg_u32 s{S_T}, 0
    s_cbranch_scc1 {u}_ok
    v_lshlrev_b32 v{v+10}, v{v+2}, 1
    """)
    for b in range(1, 8):
        A(f"v_lshlrev_b32 v{v+11}, v{v+2+b}, 1\nv_or_b32 v{v+10}, v{v+10}, v{v+11}")
    A(f"""
    v_cmp_ne_u32 vcc, 0x1fe, v{v+10}
    s_mov_b32 s3, 32
    s_cbranch_vccz {u}_ok
    s_lshr_b32 s60, s2, 3
    s_lshl_b32 s62, 1, s60
    s_sub_u32 s64, s62, 1
    s_or_b32 s66, s62, s64
    s_and_b32 s61, s2, 7
    s_mov_b32 s68, 0
    s_mov_b32 s69, 0
    s_mov_b32 s70, 0
    """)
    for b in range(8):
        A(f"""
        v_cmp_eq_u32 vcc, s{S_XCC}, v{v+2+b}
        s_cmp_gt_u32 s61, {b}
        s_cselect_b32 s74, s66, s64
        s_and_b32 s74, s74, vcc_lo
        s_bcnt1_i32_b32 s71, s74
        s_add_u32 s68, s68, s71
        v_cmp_eq_u32 vcc, 1, v{v+2+b}
        s_bcnt1_i32_b32 s71, vcc_lo
        s_add_u32 s69, s69, s71
        v_cmp_gt_u32 vcc, s{S_XCC}, v{v+2+b}
        s_bcnt1_i32_b32 s71, vcc_lo
        s_add_u32 s70, s70, s71
        """)
    A(f"""
    s_min_u32 s71, s69, 32                 ; c0
    s_sub_u32 s70, s70, s69
    s_add_u32 s70, s70, s71
    s_add_u32 s70, s70, s68
    s_sub_u32 s71, 256, s69
    s_add_u32 s71, s71, s68
    s_cmp_lt_u32 s68, 32
    s_cselect_b32 s71, s68, s71
    s_cmp_eq_u32 s{S_XCC}, 1
    s_cselect_b32 s{S_ID}, s71, s70
    s_or_b32 s{S_T}, s69, 0x1000
    v_mbcnt_lo_u32_b32 v0, -1, 0
    v_mbcnt_hi_u32_b32 v0, -1, v0
    v_mov_b32 v{v}, s2
    v_mov_b32 v{v+1}, 1
    s_waitcnt vmcnt(0) lgkmcnt(0)
    s_barrier
    buffer_store_byte v{v+1}, v{v}, {WSR}, 0 offen sc1
    s_branch L_dispatch
    {u}_ok:
    s_and_b32 s3, s3, 0xfff
    """)
    assert F_RS == 0


DEFAULTS = {'lj': 1, 'split': 1, 'gate': 12, 'wpf': 4, 'p4map': 1}


def generate(cfg):
    cfg = {**DEFAULTS, **cfg}
    A = Asm()
    for f in (validate, wait_zero, zero_load, announce, table_load):
        setattr(common, f.__name__, f)
    prologue(A, cfg)
    if cfg.get('nochain'):
        wait_zero(A, 20)
        A("s_waitcnt vmcnt(0)\ns_branch L_end")
    import importlib
    importlib.import_module(cfg.get('chainmod', 'chain')).chain(A, cfg)
    A.label("L_worker")
    if cfg.get('chain_only'):
        wait_zero(A, 20)
        A("s_waitcnt vmcnt(0)")
    if not cfg.get('chain_only'):
        import worker as worker_mod
        A(f"s_sub_u32 s{S_ID}, s{S_ID}, 32")
        worker_mod.worker(A, cfg)
    if cfg.get('dbgt'):
        A(f"""
        s_memrealtime s[96:97]
        s_waitcnt lgkmcnt(0)
        s_sub_u32 s96, s96, s100
        v_mov_b32 v0, 32
        v_mov_b32 v1, s96
        s_mov_b64 exec, 1
        global_atomic_umax v0, v1, s[{S_DBG}:{S_DBG+1}]
        s_waitcnt vmcnt(0)
        """)
    A.label("L_end")
    body = A.text()
    return f"""{HEADER}; @launch grid=(256,1,1) block=(256,1,1) lds=163840
.amdgcn_target "amdgcn-amd-amdhsa--gfx950"
.text
.globl {KNAME}
.p2align 8
.type {KNAME},@function
{KNAME}:
{body}    s_endpgm
.section .rodata,"a"
.p2align 6
.amdhsa_kernel {KNAME}
  .amdhsa_next_free_vgpr 512
  .amdhsa_next_free_sgpr 102
  .amdhsa_accum_offset 256
  .amdhsa_group_segment_fixed_size 0
  .amdhsa_kernarg_size 120
  .amdhsa_user_sgpr_count 2
  .amdhsa_user_sgpr_kernarg_segment_ptr 1
  .amdhsa_system_sgpr_workgroup_id_x 1
.end_amdhsa_kernel
"""


if __name__ == "__main__":
    cfg = json.loads(sys.argv[2]) if len(sys.argv) > 2 else {}
    open(sys.argv[1], "w").write(generate(cfg))
```
